```python
import torch

def _softmax(x, axis=-1):
    return torch.softmax(x, dim=axis)
def _gelu(x):
    return torch.nn.functional.gelu(x, approximate="tanh")
def _silu(x):
    return torch.nn.functional.silu(x)
def _sigmoid(x):
    return torch.sigmoid(x)
def _layernorm(x, axis=-1, eps=1e-5):
    m = x.mean(dim=axis, keepdim=True)
    v = x.var(dim=axis, keepdim=True, unbiased=False)
    return (x - m) / torch.sqrt(v + eps)
def _scatter_add(tgt, idx, src, axis=0):
    return tgt.clone().index_add_(axis, idx, src)
def _segment_sum(src, seg, n):
    out = torch.zeros((n,) + src.shape[1:], dtype=src.dtype)
    return out.index_add_(0, seg, src)
def _pad(x, pw):
    flat = tuple(v for pair in reversed(pw) for v in pair)
    return torch.nn.functional.pad(x, flat)

kernel_name = 'concat_heads__gqa_block_cached__mha_block_cached__near_ridge'

def setup_inputs():

    _w = (lambda a: (lambda t: t.to(torch.bfloat16) if t.is_floating_point() else t)(torch.as_tensor(a)))
    def _A_setup():
        B, Sq, D = 16, 48, 448
        Hq, Hkv, Sk, Dh = 16, 8, 512, 256
        assert Hq % Hkv == 0, (Hq, Hkv)
        return {
            "x": _w((lambda *s: torch.randn(*s, dtype=torch.bfloat16) * 0.8)(B, Sq, D)),
            "k_cache": _w((lambda *s: torch.randn(*s, dtype=torch.bfloat16) * 0.8)(B, Hkv, Sk, Dh)),
            "v_cache": _w((lambda *s: torch.randn(*s, dtype=torch.bfloat16) * 0.05)(B, Hkv, Sk, Dh)),
            "wq": _w((lambda *s: torch.randn(*s, dtype=torch.bfloat16) * 0.8)(D, Hq * Dh) * (D ** -0.5)),
            "wo": _w((lambda *s: torch.randn(*s, dtype=torch.bfloat16) * 0.05)(Hq * Dh, D) * ((Hq * Dh) ** -0.5)),
        }
    _A_in = _A_setup()

    def _B_setup():
        B, Sq, D = 16, 48, 448
        H, Sk, Dh = 16, 512, 256
        return {
            "x": _w((lambda *s: torch.randn(*s, dtype=torch.bfloat16) * 0.8)(B, Sq, D)),
            "k_cache": _w((lambda *s: torch.randn(*s, dtype=torch.bfloat16) * 0.8)(B, H, Sk, Dh)),
            "v_cache": _w((lambda *s: torch.randn(*s, dtype=torch.bfloat16) * 0.05)(B, H, Sk, Dh)),
            "wq": _w((lambda *s: torch.randn(*s, dtype=torch.bfloat16) * 0.8)(D, H * Dh) * (D ** -0.5)),
            "wo": _w((lambda *s: torch.randn(*s, dtype=torch.bfloat16) * 0.05)(H * Dh, D) * ((H * Dh) ** -0.5)),
        }
    _B_in = _B_setup()

    return {
        "A_x": _A_in["x"],
        "A_k_cache": _A_in["k_cache"],
        "A_v_cache": _A_in["v_cache"],
        "A_wq": _A_in["wq"],
        "A_wo": _A_in["wo"],
        "B_x": _B_in["x"],
        "B_k_cache": _B_in["k_cache"],
        "B_v_cache": _B_in["v_cache"],
        "B_wq": _B_in["wq"],
        "B_wo": _B_in["wo"],
    }

def reference(A_x, A_k_cache, A_v_cache, A_wq, A_wo, B_x, B_k_cache, B_v_cache, B_wq, B_wo):
    def _A_ref(x, k_cache, v_cache, wq, wo):
        B, Sq, D = x.shape
        Hq, Dh = 16, 256
        Hkv = k_cache.shape[1]
        rep = Hq // Hkv
        q = (lambda x, *d: x.permute(*d))((x @ wq).reshape(B, Sq, Hq, Dh), 0, 2, 1, 3)
        k = (lambda x, n, axis: torch.repeat_interleave(x, n, dim=axis))(k_cache, rep, axis=1)
        v = (lambda x, n, axis: torch.repeat_interleave(x, n, dim=axis))(v_cache, rep, axis=1)
        scores = torch.einsum("bhqd,bhkd->bhqk", q, k) * (Dh ** -0.5)
        p = _softmax(scores, axis=-1)
        o = torch.einsum("bhqk,bhkd->bhqd", p, v)
        return (lambda x, *d: x.permute(*d))(o, 0, 2, 1, 3).reshape(B, Sq, Hq * Dh) @ wo

    def _B_ref(x, k_cache, v_cache, wq, wo):
        B, Sq, D = x.shape
        H, Dh = 16, 256
        q = (lambda x, *d: x.permute(*d))((x @ wq).reshape(B, Sq, H, Dh), 0, 2, 1, 3)
        scores = torch.einsum("bhqd,bhkd->bhqk", q, k_cache) * (Dh ** -0.5)
        p = _softmax(scores, axis=-1)
        o = torch.einsum("bhqk,bhkd->bhqd", p, v_cache)
        return (lambda x, *d: x.permute(*d))(o, 0, 2, 1, 3).reshape(B, Sq, H * Dh) @ wo

    a = _A_ref(A_x, A_k_cache, A_v_cache, A_wq, A_wo)
    b = _B_ref(B_x, B_k_cache, B_v_cache, B_wq, B_wo)
    return torch.concatenate([a, b], axis=-1)
```

```python
import sys, struct
NAME = 'concat_heads__gqa_block_cached__mha_block_cached__near_ridge'

class Cfg:
    stamps = False
    kvpol = 'nt'
    wpol = ''
    stpol = ''
    rot = True
cfg = Cfg()

NQ = 6; QP = 4224
XB = 0; STAT = 49152; RING = 51200; RSZ = NQ * QP
LDS_TOTAL = RING + 4 * RSZ
PART = 43008
SX, SWQ, SK, SV, SWO, SWS = 4, 8, 12, 16, 20, 24
sJ, sB, sW, sRS, sRE, sRD, sWR, sLC, sY = 28, 29, 30, 31, 32, 33, 34, 35, 36
sPQK, sQH, sT0, sPK, sPV, sPOK, sOH = 37, 38, 39, 40, 41, 42, 43
sX0 = 44
sU, sC, sRQY, sRQK, sROK, sROY, sT1, sT2, sPART, sXM = 47, 48, 49, 50, 51, 52, 53, 54, 55, 56
sST = 60
vV, vQ, vOA, vOB, vK, vX = 2, 6, 10, 14, 18, 19
vTB, vTA, vKB, vKA, vLin, vYA = 20, 24, 28, 29, 30, 31
vQW, vStW, vStR, vF3, vF6 = 32, 33, 34, 35, 36
vM, vTmp, vSR = 37, 43, 44
vS = 64; vOUT = 160
aFR = 192; aONE = 96

def srd(n): return f's[{n}:{n+3}]'
def vr(b, n=4): return f'v[{b}:{b+n-1}]'
def ar(b, n=4): return f'a[{b}:{b+n-1}]'

class Gen:
    def __init__(s):
        s.L = []; s.q = []; s.nlab = 0; s.pseq = 0; s.cseq = 0; s.nst = 0
    def E(s, t): s.L.append(t)
    def vm(s, t, tag):
        s.L.append(t); s.q.append(tag)
    def need(s, tag):
        idx = max(i for i, t in enumerate(s.q) if t == tag)
        n = len(s.q) - 1 - idx
        assert n <= 63, n
        return f's_waitcnt vmcnt({n})'
    def lab(s, p):
        s.nlab += 1; return f'L_{p}{s.nlab}'
    def stamp(s):
        if cfg.stamps:
            s.E(f's_memrealtime s[{sST+2*s.nst}:{sST+2*s.nst+1}]'); s.nst += 1
    def rolled(s, n, body, cnt=sLC):
        if n == 1:
            body(); return
        texts = []
        keep = s.L
        for it in range(n):
            s.L = []; body(); texts.append(s.L)
        for t in texts[1:]:
            assert t == texts[0], 'loop iterations differ:\n' + '\n'.join(f'{a} | {b}' for a, b in zip(texts[0], t) if a != b)
        s.L = keep
        lb = s.lab('loop')
        s.E(f's_mov_b32 s{cnt}, {n}')
        s.E(f'{lb}:')
        s.L += texts[0]
        s.E(f's_sub_u32 s{cnt}, s{cnt}, 1'); s.E(f's_cmp_lg_u32 s{cnt}, 0'); s.E(f's_cbranch_scc1 {lb}')

    def emit_item(s, it):
        if isinstance(it, str): s.E(it)
        elif it[0] == 'vm': s.vm(it[1], it[2])
        elif it[0] == 'need': s.E(s.need(it[1]))
    def interleave(s, mf, groups, start=0):
        n = len(mf); g = len(groups)
        pos = {}
        for k in range(g):
            p = min(n - 1, start + (k * (n - start)) // max(g, 1))
            pos.setdefault(p, []).append(k)
        for i, m in enumerate(mf):
            s.E(m)
            for k in pos.get(i, []):
                for it in groups[k]: s.emit_item(it)

    def adv(s, reg, step):
        return [f's_add_u32 s{reg}, s{reg}, {step}', f's_cmp_ge_u32 s{reg}, s{sRE}', f's_cselect_b32 s{reg}, s{sRS}, s{reg}']

    def prod(s, kind):
        tag = ('q', s.pseq); s.pseq += 1
        G = [[], [], [], []]
        if kind == 'K':
            for p in range(4):
                G[p] += [f's_add_u32 m0, s{sWR}, {p*32}', 's_nop 0',
                         ('vm', f'buffer_load_dwordx4 v{vK}, {srd(SK)}, s{sPK} offen offset:{p*1024} {cfg.kvpol} lds', tag)]
            G[3] += [f's_add_u32 s{sPK}, s{sPK}, 0x1000', f's_bitcmp1_b32 s{sPK}, 14', f's_cselect_b32 s{sT1}, 0xc000, 0', f's_add_u32 s{sPK}, s{sPK}, s{sT1}']
        else:
            if kind == 'V': vo, sr, so, pol, pre = vV, SV, sPV, cfg.kvpol, 's_nop 0'
            elif kind == 'Q': vo, sr, so, pol, pre = vQ, SWQ, sT0, cfg.wpol, f's_add_u32 s{sT0}, s{sPQK}, s{sQH}'
            elif kind == 'OA': vo, sr, so, pol, pre = vOA, SWO, sT0, cfg.wpol, f's_add_u32 s{sT0}, s{sPOK}, s{sOH}'
            elif kind == 'OB': vo, sr, so, pol, pre = vOB, SWO, sT0, cfg.wpol, f's_add_u32 s{sT0}, s{sPOK}, s{sOH}'
            G[0] += [f's_mov_b32 m0, s{sWR}', pre]
            for p in range(4):
                G[p] += [('vm', f'buffer_load_dwordx4 v{vo+p}, {srd(sr)}, s{so} offen offset:{p*1024} {pol} lds', tag)]
            if kind == 'V': G[3] += [f's_add_u32 s{sPV}, s{sPV}, 0x4000']
            elif kind == 'Q': G[3] += [f's_add_u32 s{sPQK}, s{sPQK}, 0x40000', f's_cmp_ge_u32 s{sPQK}, {14*0x40000}', f's_cselect_b32 s{sPQK}, 0, s{sPQK}']
            elif kind == 'OB': G[3] += [f's_add_u32 s{sPOK}, s{sPOK}, 28672', f's_cmp_ge_u32 s{sPOK}, {8*28672}', f's_cselect_b32 s{sPOK}, 0, s{sPOK}']
        G[3] += s.adv(sWR, QP)
        return G
    def prod_x(s):
        g = []
        for t in range(3):
            for m in range(4):
                g += [f's_add_u32 m0, s{sXM}, {XB + (12*m + t)*1024 - m*256}', 's_nop 0',
                      ('vm', f'buffer_load_dwordx4 v{vX}, {srd(SX)}, s{sX0+t} offen offset:{m*256} {cfg.wpol} lds', 'x')]
        return g

    def tg_bufs(s, T, par, ylds, base):
        sz = 16 + (4 * T if ylds else 0)
        a = base + par * sz
        return a, a + 16
    def tg_fetch(s, T, par, ylds, ywrap, base):
        a, y = s.tg_bufs(T, par, ylds, base)
        tag = ('q', s.cseq); s.cseq += 1
        g0 = [('need', tag)] + [f'v_add_u32 v{vTA+d}, s{sRD}, v{vTB+d}' for d in range(4)]
        if ylds: g0 += [f'v_add_u32 v{vYA}, s{sY}, v{vLin}']
        rd = []
        for d in range(4):
            rd.append([f'ds_read_b64_tr_b16 {ar(a+4*d,2)}, v{vTA+d}', f'ds_read_b64_tr_b16 {ar(a+4*d+2,2)}, v{vTA+d} offset:2048'])
        yr = []
        if ylds:
            yr = [f'ds_read_b128 {ar(y+4*t)}, v{vYA} offset:{t*1024}' for t in range(T)]
        tail = s.adv(sRD, QP)
        if ylds:
            tail += [f's_add_u32 s{sY}, s{sY}, {T*1024}']
            if ywrap: tail += [f's_cmp_ge_u32 s{sY}, {XB+ywrap}', f's_cselect_b32 s{sY}, {XB}, s{sY}']
        G = [g0 + rd[0]]
        if ylds:
            h = (T + 1) // 2
            G += [yr[:h], rd[1], yr[h:], rd[2], rd[3] + tail]
        else:
            G += [rd[1], rd[2], rd[3] + tail]
        return G
    def tg_prime(s, T, par, ylds, ywrap, base):
        for g in s.tg_fetch(T, par, ylds, ywrap, base):
            for it in g: s.emit_item(it)
    def tg_step(s, T, par, acc, pref, prodkind, ylds=True, ywrap=0, ystat=None, lacc=None, base=aFR, extra=None):
        a, y = s.tg_bufs(T, par, ylds, base)
        if not ylds: y = ystat
        s.E('s_waitcnt lgkmcnt(0)')
        mf = []
        for d in range(4):
            for t in range(T):
                c = vr(acc + (d * T + t) * 4)
                mf.append(f'v_mfma_f32_16x16x32_bf16 {c}, {ar(a+4*d)}, {ar(y+4*t)}, {c}')
        if lacc is not None:
            for t in range(T):
                c = vr(lacc + 4 * t)
                mf.append(f'v_mfma_f32_16x16x32_bf16 {c}, {ar(aONE)}, {ar(y+4*t)}, {c}')
        G = []
        if pref: G += s.tg_fetch(T, par ^ 1, ylds, ywrap, base)
        if extra: G += [extra]
        if prodkind: G += s.prod(prodkind)
        s.interleave(mf, G)
    def tg_phase(s, n, T, acc, kinds, ywrap=0, lacc=None, base=aFR, first=True, last=True):
        if first: s.tg_prime(T, 0, True, ywrap, base)
        done = 0
        for cnt, kd in kinds:
            k0, k1 = (kd if isinstance(kd, tuple) else (kd, kd))
            assert cnt % 2 == 0
            its = cnt // 2
            is_last = last and (done + cnt == n)
            def body():
                s.tg_step(T, 0, acc, True, k0, True, ywrap, None, lacc, base)
                s.tg_step(T, 1, acc, True, k1, True, ywrap, None, lacc, base)
            if is_last:
                if its > 1: s.rolled(its - 1, body)
                s.tg_step(T, 0, acc, True, k0, True, ywrap, None, lacc, base)
                s.tg_step(T, 1, acc, False, k1, True, ywrap, None, lacc, base)
            else:
                s.rolled(its, body)
            done += cnt
        assert done == n
    def zero(s, base, n):
        for r in range(base, base + n): s.E(f'v_mov_b32 v{r}, 0')

    def k_fetch(s, par):
        a = aFR + par * 32
        s.cseq += 2
        tag = ('q', s.cseq - 1)
        g0 = [('need', tag), f'v_add_u32 v{vKA}, s{sRD}, v{vKB}']
        rd = [f'ds_read_b128 {ar(a+4*k)}, v{vKA} offset:{k*64}' for k in range(8)]
        return [g0 + rd[0:2], rd[2:4], rd[4:6], rd[6:8] + s.adv(sRD, 2 * QP)]
    def s_phase(s, T, kinds):
        for g in s.k_fetch(0):
            for it in g: s.emit_item(it)
        for tau in range(8):
            par = tau & 1
            a = aFR + par * 32
            s.E('s_waitcnt lgkmcnt(0)')
            mf = []
            for k in range(8):
                for t in range(T):
                    c = vr(vS + (tau * T + t) * 4)
                    qf = ((t // 3) * 24 + k * 3 + (t % 3)) * 4
                    mf.append(f'v_mfma_f32_16x16x32_bf16 {c}, {ar(a+4*k)}, {ar(qf)}, {c if k else 0}')
            G = []
            if tau < 7: G += s.k_fetch(par ^ 1)
            G += s.prod(kinds[2 * tau]); G += s.prod(kinds[2 * tau + 1])
            s.interleave(mf, G)
    def softmax(s, T):
        E = s.E
        E('s_nop 7'); E('s_nop 1')
        S = lambda tau, t, r: vS + (tau * T + t) * 4 + r
        vals = {t: [S(tau, t, r) for tau in range(8) for r in range(4)] for t in range(T)}
        for t in range(T): E(f'v_max3_f32 v{vM+t}, v{vals[t][0]}, v{vals[t][1]}, v{vals[t][2]}')
        for k in range(14):
            for t in range(T): E(f'v_max3_f32 v{vM+t}, v{vM+t}, v{vals[t][3+2*k]}, v{vals[t][4+2*k]}')
        for t in range(T): E(f'v_max_f32 v{vM+t}, v{vM+t}, v{vals[t][31]}')
        for op in ('v_permlane32_swap_b32', 'v_permlane16_swap_b32'):
            for t in range(T): E(f'v_mov_b32 v{vSR+t}, v{vM+t}')
            E('s_nop 1')
            for t in range(T): E(f'{op} v{vM+t}, v{vSR+t}')
            E('s_nop 1')
            for t in range(T): E(f'v_max_f32 v{vM+t}, v{vM+t}, v{vSR+t}')
        for t in range(T): E(f'ds_write_b32 v{vStW}, v{vM+t} offset:{t*256}')
        E('s_waitcnt lgkmcnt(0)'); E('s_barrier')
        for t0 in range(0, T, 3):
            for t in range(t0, t0 + 3): E(f'ds_read_b128 {vr(vSR+4*(t-t0))}, v{vStR} offset:{t*256}')
            E('s_waitcnt lgkmcnt(0)')
            for t in range(t0, t0 + 3):
                b = vSR + 4 * (t - t0)
                E(f'v_max3_f32 v{vM+t}, v{b}, v{b+1}, v{b+2}')
            for t in range(t0, t0 + 3):
                b = vSR + 4 * (t - t0)
                E(f'v_max_f32 v{vM+t}, v{vM+t}, v{b+3}')
            for t in range(t0, t0 + 3): E(f'v_mul_f32 v{vM+t}, s{sC}, v{vM+t}')
        E(f'v_mov_b32 v{vTmp}, 0x3f803f80')
        for r in range(4): E(f'v_accvgpr_write_b32 a{aONE+r}, v{vTmp}')
    def exp_pack(s, T, n):
        E = s.E
        S = lambda tau, t, r: vS + (tau * T + t) * 4 + r
        for t in range(T):
            regs = [S(2 * n, t, r) for r in range(4)] + [S(2 * n + 1, t, r) for r in range(4)]
            for r in regs: E(f'v_fma_f32 v{r}, v{r}, s{sC}, -v{vM+t}')
            for r in regs: E(f'v_exp_f32 v{r}, v{r}')
            E('s_nop 0')
            d = vS + (n * T + t) * 4
            for k in range(4): E(f'v_cvt_pk_bf16_f32 v{d+k}, v{regs[2*k]}, v{regs[2*k+1]}')
    def q_pack(s, acc, dst):
        for d in range(4):
            for t in range(3):
                a = acc + (d * 3 + t) * 4; o = dst + (d * 3 + t) * 2
                s.E(f'v_cvt_pk_bf16_f32 v{o}, v{a}, v{a+1}'); s.E(f'v_cvt_pk_bf16_f32 v{o+1}, v{a+2}, v{a+3}')
    def q_write(s, src, hd):
        for d in range(4):
            for t in range(3):
                o = src + (d * 3 + t) * 2
                s.E(f'ds_write_b64 v{vQW}, {vr(o,2)} offset:{XB + hd*24576 + (d>>1)*3072 + t*1024 + (d&1)*512}')
    def frag_read(s, n, off=0):
        for f in range(n):
            s.E(f'ds_read_b128 {ar(4*f)}, v{vLin} offset:{XB + off + f*1024}')
            if f % 12 == 11 and f != n - 1: s.E('s_waitcnt lgkmcnt(4)')
    def o_write(s, T, acc, lacc):
        E = s.E
        E('s_nop 7'); E('s_nop 1')
        for t in range(T): E(f'v_rcp_f32 v{vM+t}, v{lacc+4*t}')
        E('s_nop 0')
        for kk in range(2):
            for t in range(T):
                a0 = acc + ((2 * kk) * T + t) * 4; a1 = acc + ((2 * kk + 1) * T + t) * 4
                for r in range(4): E(f'v_mul_f32 v{a0+r}, v{a0+r}, v{vM+t}')
                for r in range(4): E(f'v_mul_f32 v{a1+r}, v{a1+r}, v{vM+t}')
                E(f'v_cvt_pk_bf16_f32 v{a0}, v{a0}, v{a0+1}'); E(f'v_cvt_pk_bf16_f32 v{a0+1}, v{a0+2}, v{a0+3}')
                E(f'v_cvt_pk_bf16_f32 v{a0+2}, v{a1}, v{a1+1}'); E(f'v_cvt_pk_bf16_f32 v{a0+3}, v{a1+2}, v{a1+3}')
        E('s_barrier')
        for kk in range(2):
            for t in range(T):
                a0 = acc + ((2 * kk) * T + t) * 4
                E(f'ds_write_b128 v{vF6}, {vr(a0)} offset:{XB + (t//3)*24576 + kk*3072 + (t%3)*1024}')
        E('s_waitcnt lgkmcnt(0)'); E('s_barrier')
    def o_frag_read(s, hdoff_sgpr=None):
        E = s.E
        E(f's_mov_b32 s{sT1}, s{sROY}')
        for jj in range(8):
            E(f's_add_u32 s{sT2}, s{sT1}, s{sY}')
            E(f'v_add_u32 v{vYA}, s{sT2}, v{vLin}')
            for t in range(3): E(f'ds_read_b128 {ar((jj*3+t)*4)}, v{vYA} offset:{t*1024}')
            E(f's_add_u32 s{sT1}, s{sT1}, 3072'); E(f's_cmp_ge_u32 s{sT1}, 24576'); E(f's_cselect_b32 s{sT1}, 0, s{sT1}')
            if jj % 4 == 3: E('s_waitcnt lgkmcnt(0)')
    def o_proj(s, kinds, extra_at=None, extra=None):
        s.tg_prime(3, 0, False, 0, aFR)
        for st in range(16):
            ex = extra() if st == extra_at else None
            s.tg_step(3, st & 1, vOUT + (st & 1) * 48, st < 15, kinds[st], False, 0, (st >> 1) * 12, None, aFR, ex)
    def store_partial(s):
        E = s.E
        E('s_nop 7'); E('s_nop 1')
        lb = s.lab('nost')
        for sg in range(2):
            if sg == 1:
                E(f's_cmp_eq_u32 s{sW}, 3'); E(f's_cbranch_scc1 {lb}')
            for u in range(2):
                E(f's_add_u32 s{sT0}, s{sPART}, {sg*24576 + u*3072}')
                for t in range(3):
                    a0 = vOUT + ((sg * 4 + 2 * u) * 3 + t) * 4; a1 = a0 + 12
                    E(f'v_cvt_pk_bf16_f32 v{a0}, v{a0}, v{a0+1}'); E(f'v_cvt_pk_bf16_f32 v{a0+1}, v{a0+2}, v{a0+3}')
                    E(f'v_cvt_pk_bf16_f32 v{a0+2}, v{a1}, v{a1+1}'); E(f'v_cvt_pk_bf16_f32 v{a0+3}, v{a1+2}, v{a1+3}')
                    E(f'buffer_store_dwordx4 {vr(a0)}, v{vF6}, {srd(SWS)}, s{sT0} offen offset:{t*1024} {cfg.stpol}')
        E(f'{lb}:')

    def setup_common(s):
        E = s.E
        E('v_and_b32 v1, 63, v0'); E('v_lshrrev_b32 v40, 6, v0'); E('s_nop 0')
        E(f'v_readfirstlane_b32 s{sW}, v40')
        E(f's_and_b32 s{sJ}, s2, 7'); E(f's_lshr_b32 s{sB}, s2, 4')
        E('v_and_b32 v41, 15, v1')
        E('v_lshrrev_b32 v42, 4, v1')
        E('v_lshrrev_b32 v43, 3, v1')
        E('v_and_b32 v44, 7, v1')
        E('v_and_b32 v45, 6, v43'); E('v_xor_b32 v44, v44, v45'); E('v_lshlrev_b32 v44, 4, v44')
        E('v_lshl_add_u32 v44, v40, 7, v44')
        E(f'v_mul_u32_u24 v{vX}, 896, v41'); E(f'v_lshl_add_u32 v{vX}, v42, 4, v{vX}'); E(f'v_lshl_add_u32 v{vX}, v40, 6, v{vX}')
        E('v_lshrrev_b32 v45, 2, v43'); E('v_lshlrev_b32 v45, 3, v45'); E('v_and_b32 v46, 3, v43'); E('v_add_u32 v45, v45, v46')
        E(f'v_lshl_add_u32 v{vQ}, v45, 13, v44')
        for p in range(1, 4): E(f'v_add_u32 v{vQ+p}, {(16*(p&1)+4*(p>>1))*8192 - p*1024}, v{vQ}')
        E(f's_mul_i32 s{sRS}, s{sW}, {RSZ}'); E(f's_add_u32 s{sRS}, s{sRS}, {RING}'); E(f's_add_u32 s{sRE}, s{sRS}, {RSZ}')
        E(f's_mov_b32 s{sRD}, s{sRS}'); E(f's_mov_b32 s{sWR}, s{sRS}')
        E(f's_mul_i32 s{sXM}, s{sW}, 3072')
        E(f's_mul_i32 s{sX0}, s{sB}, 43008'); E(f's_add_u32 s{sX0+1}, s{sX0}, 14336'); E(f's_add_u32 s{sX0+2}, s{sX0}, 28672')
        if cfg.rot:
            E(f's_mul_i32 s{sT0}, s{sB}, 14'); E(f's_lshr_b32 s{sT0}, s{sT0}, 4')
            E(f's_lshr_b32 s{sT1}, s{sB}, 1')
        else:
            E(f's_mov_b32 s{sT0}, 0'); E(f's_mov_b32 s{sT1}, 0')
        E(f's_mul_i32 s{sRQY}, s{sT0}, 3072'); E(f's_lshl_b32 s{sRQK}, s{sT0}, 18')
        E(f's_mul_i32 s{sROK}, s{sT1}, 28672'); E(f's_mul_i32 s{sROY}, s{sT1}, 3072')
        E(f's_mov_b32 s{sPQK}, s{sRQK}'); E(f's_mov_b32 s{sPOK}, s{sROK}')
        E(f's_lshl_b32 s{sQH}, s{sJ}, 10'); E(f's_mul_i32 s{sOH}, s{sJ}, {512*896}')
    def setup_late(s):
        E = s.E
        E(f'v_lshl_add_u32 v{vV}, v43, 9, v44')
        for p in range(1, 4): E(f'v_add_u32 v{vV+p}, {p*3072}, v{vV}')
        E(f'v_mul_u32_u24 v{vOA}, 896, v43'); E(f'v_add_u32 v{vOA}, v{vOA}, v44')
        for p in range(1, 4): E(f'v_add_u32 v{vOA+p}, {p*(8*896-1024)}, v{vOA}')
        E(f's_cmp_eq_u32 s{sW}, 3'); E(f's_cselect_b32 s{sT0}, 0x40000000, 512')
        for p in range(4): E(f'v_add_u32 v{vOB+p}, s{sT0}, v{vOA+p}')
        E('v_lshrrev_b32 v45, 5, v1'); E('v_and_b32 v46, 31, v1'); E('v_xor_b32 v46, v46, v45'); E('v_lshlrev_b32 v46, 4, v46')
        E('v_lshl_add_u32 v46, v45, 9, v46'); E(f'v_lshl_add_u32 v{vK}, v40, 14, v46')
        E('v_lshrrev_b32 v45, 2, v41')
        E('v_and_b32 v46, 1, v42'); E('v_lshl_add_u32 v45, v46, 2, v45')
        E('v_lshrrev_b32 v46, 1, v42'); E('v_lshlrev_b32 v46, 10, v46'); E('v_lshl_add_u32 v46, v45, 7, v46')
        E('v_and_b32 v47, 3, v41'); E('v_lshl_add_u32 v46, v47, 3, v46')
        E('v_lshrrev_b32 v45, 1, v45')
        for d in range(4):
            E(f'v_xor_b32 v47, {d}, v45'); E(f'v_lshl_add_u32 v{vTB+d}, v47, 5, v46')
        E('v_lshrrev_b32 v45, 1, v41'); E(f'v_mul_u32_u24 v{vKB}, 1056, v45'); E('v_and_b32 v45, 1, v41')
        E(f'v_lshl_add_u32 v{vKB}, v45, 9, v{vKB}'); E('v_xor_b32 v45, v45, v42'); E(f'v_lshl_add_u32 v{vKB}, v45, 4, v{vKB}')
        E(f'v_lshlrev_b32 v{vLin}, 4, v1')
        E(f'v_mul_u32_u24 v45, 3072, v40'); E(f'v_add_u32 v{vF3}, v45, v{vLin}'); E(f'v_add_u32 v{vF6}, v45, v{vF3}')
        E('v_lshlrev_b32 v45, 1, v45'); E('v_lshrrev_b32 v46, 1, v42'); E('v_lshl_add_u32 v45, v46, 8, v45')
        E('v_lshl_add_u32 v45, v41, 4, v45'); E('v_and_b32 v46, 1, v42'); E(f'v_lshl_add_u32 v{vQW}, v46, 3, v45')
        E(f'v_lshlrev_b32 v45, 4, v41'); E(f'v_add_u32 v{vStR}, {STAT}, v45'); E(f'v_lshl_add_u32 v{vStW}, v40, 2, v{vStR}')
        c = struct.unpack('<I', struct.pack('<f', 1.4426950408889634 / 16.0))[0]
        E(f's_mov_b32 s{sC}, {c:#x}')
    def load_ptrs(s, br):
        E = s.E
        o = 40 * br
        E(f's_load_dwordx2 s[{SX}:{SX+1}], s[0:1], {o}')
        E(f's_load_dwordx2 s[{SWQ}:{SWQ+1}], s[0:1], {o+24}')
        E(f's_load_dwordx2 s[{SK}:{SK+1}], s[0:1], {o+8}')
        E(f's_load_dwordx2 s[{SV}:{SV+1}], s[0:1], {o+16}')
        E(f's_load_dwordx2 s[{SWO}:{SWO+1}], s[0:1], {o+32}')
        E(f's_load_dwordx2 s[{SWS}:{SWS+1}], s[0:1], 96')
        kv = 16 * (16 if br else 8) * 262144
        for r, n in ((SX, 16 * 43008), (SWQ, 448 * 8192), (SK, kv), (SV, kv), (SWO, 4096 * 896), (SWS, 256 * PART)):
            E(f's_mov_b32 s{r+2}, {n}'); E(f's_mov_b32 s{r+3}, 0x20000')
    def emit_groups(s, G):
        for g in G:
            for it in g: s.emit_item(it)
    def finish(s):
        E = s.E
        s.store_partial()
        if cfg.stamps:
            E('s_waitcnt vmcnt(0)')
            s.stamp()
            while s.nst < 16: s.stamp()
            E('s_branch L_stamps')
        else:
            E('s_endpgm')

def path_B():
    s = Gen(); E = s.E; s.nlab = 1000
    s.stamp()
    s.load_ptrs(1)
    s.setup_common()
    E(f's_lshl_b32 s{sPK}, s{sB}, 3'); E(f's_add_u32 s{sPK}, s{sPK}, s{sJ}')
    E(f's_add_u32 s{sPART}, s{sPK}, 128'); E(f's_mul_i32 s{sPART}, s{sPART}, {PART}')
    E(f's_lshl_b32 s{sPK}, s{sPK}, 19'); E(f's_mov_b32 s{sPV}, s{sPK}')
    E('s_waitcnt lgkmcnt(0)')
    s.emit_groups([s.prod_x()])
    for _ in range(NQ): s.emit_groups(s.prod('Q'))
    s.setup_late()
    s.zero(vOUT, 96)
    nst0 = s.nst
    def unit():
        s.nst = nst0
        s.zero(vS, 48)
        E(f's_add_u32 s{sY}, s{sRQY}, {XB}')
        E(s.need('x')); E('s_barrier')
        s.stamp()
        s.tg_phase(14, 3, vS, [(8, 'Q'), (6, 'K')], ywrap=43008)
        E(f's_add_u32 s{sQH}, s{sQH}, 512')
        E('s_nop 7'); E('s_nop 1')
        s.q_pack(vS, vS + 48)
        E('s_barrier')
        s.q_write(vS + 48, 0)
        E('s_waitcnt lgkmcnt(0)'); E('s_barrier')
        s.stamp()
        s.frag_read(24)
        s.s_phase(3, ['K'] * 10 + ['V'] * 6)
        s.stamp()
        s.softmax(3)
        for n in range(4):
            s.exp_pack(3, n)
        for n in range(4):
            for t in range(3): E(f'ds_write_b128 v{vF3}, {vr(vS+(n*3+t)*4)} offset:{XB + n*12288 + t*1024}')
        E(f's_mov_b32 s{sY}, {XB}')
        E('s_waitcnt lgkmcnt(0)'); E('s_barrier')
        s.zero(vS, 60)
        s.stamp()
        s.tg_phase(16, 3, vS, [(10, 'V'), (6, ('OA', 'OB'))], lacc=vS + 48)
        s.stamp()
        s.o_write(3, vS, vS + 48)
        E(f's_mov_b32 s{sY}, {XB}')
        s.o_frag_read()
        E('s_barrier')
        E(f's_cmp_eq_u32 s{sU}, 1'); E(f's_cselect_b32 s{SX+2}, 0, s{SX+2}'); E(f's_cselect_b32 s{SWQ+2}, 0, s{SWQ+2}')
        s.stamp()
        s.o_proj(['OA', 'OB'] * 5 + ['Q'] * 6, extra_at=10, extra=s.prod_x)
        E(f's_add_u32 s{sOH}, s{sOH}, {256*896}')
        s.stamp()
        if cfg.stamps:
            lb = 'L_cpst'
            E('s_waitcnt lgkmcnt(0)')
            E(f's_cmp_eq_u32 s{sU}, 1'); E(f's_cbranch_scc1 {lb}')
            for k in range(nst0, s.nst): E(f's_mov_b64 s[{sST+2*(k+7)}:{sST+2*(k+7)+1}], s[{sST+2*k}:{sST+2*k+1}]')
            E(f'{lb}:')
    texts = []; keep = s.L
    for it in range(2):
        s.L = []; s.nlab = 1100; E2 = None
        unit_E(s, unit); texts.append(s.L)
    assert texts[0] == texts[1], [f'{a} | {b}' for a, b in zip(*texts) if a != b][:10]
    s.L = keep
    s.E(f's_mov_b32 s{sU}, 2'); s.E('L_unit:'); s.L += texts[0]
    s.E(f's_sub_u32 s{sU}, s{sU}, 1'); s.E(f's_cmp_lg_u32 s{sU}, 0'); s.E('s_cbranch_scc1 L_unit')
    s.nlab = 1900
    if cfg.stamps: s.nst = 15
    s.finish()
    return s.L
def unit_E(s, f): f()

def path_A():
    s = Gen(); E = s.E; s.nlab = 2000
    s.stamp()
    s.load_ptrs(0)
    s.setup_common()
    E(f's_lshl_b32 s{sPK}, s{sB}, 3'); E(f's_add_u32 s{sPK}, s{sPK}, s{sJ}')
    E(f's_mul_i32 s{sPART}, s{sPK}, {PART}')
    E(f's_lshl_b32 s{sPK}, s{sPK}, 18'); E(f's_mov_b32 s{sPV}, s{sPK}')
    E('s_waitcnt lgkmcnt(0)')
    s.emit_groups([s.prod_x()])
    for _ in range(NQ): s.emit_groups(s.prod('Q'))
    s.setup_late()
    s.zero(vS, 48)
    E(f's_add_u32 s{sY}, s{sRQY}, {XB}')
    E(s.need('x')); E('s_barrier')
    s.stamp()
    s.tg_phase(8, 3, vS, [(8, 'Q')], ywrap=43008, last=False)
    E(f's_add_u32 s{sQH}, s{sQH}, 512')
    s.tg_phase(6, 3, vS, [(6, 'Q')], ywrap=43008, first=False)
    E('s_nop 7'); E('s_nop 1')
    s.q_pack(vS, vS + 48)
    E('s_nop 1')
    s.zero(vS, 48)
    s.tg_phase(14, 3, vS, [(8, 'Q'), (6, 'K')], ywrap=43008)
    E('s_nop 7'); E('s_nop 1')
    s.q_pack(vS, vS + 72)
    E('s_barrier')
    s.q_write(vS + 48, 0); s.q_write(vS + 72, 1)
    E('s_waitcnt lgkmcnt(0)'); E('s_barrier')
    s.stamp()
    s.frag_read(48)
    s.s_phase(6, ['K'] * 10 + ['V'] * 6)
    s.stamp()
    s.softmax(6)
    for n in range(4): s.exp_pack(6, n)
    def pwrite(n0):
        for n in range(2):
            for t in range(6): E(f'ds_write_b128 v{vF6}, {vr(vS+((n0+n)*6+t)*4)} offset:{XB + n*24576 + t*1024}')
        E(f's_mov_b32 s{sY}, {XB}')
        E('s_waitcnt lgkmcnt(0)'); E('s_barrier')
    pwrite(0)
    s.zero(vOUT, 96); s.zero(vS, 24)
    s.stamp()
    s.tg_phase(8, 6, vOUT, [(8, 'V')], lacc=vS, base=0)
    E('s_barrier')
    pwrite(2)
    s.tg_phase(8, 6, vOUT, [(2, 'V'), (6, ('OA', 'OB'))], lacc=vS, base=0)
    s.stamp()
    s.o_write(6, vOUT, vS)
    s.zero(vOUT, 96)
    E(f's_mov_b32 s{sY}, {XB}')
    def head():
        s.o_frag_read()
        def sw():
            return [f's_add_u32 s{sOH}, s{sOH}, {256*896}', f's_cmp_eq_u32 s{sU}, 1', f's_cselect_b32 s{SWO+2}, 0, s{SWO+2}']
        s.o_proj(['OA', 'OB'] * 8, extra_at=10, extra=sw)
        E(f's_add_u32 s{sY}, s{sY}, 24576')
    s.stamp()
    s.rolled(2, head, cnt=sU)
    s.stamp()
    s.finish()
    return s.L

def reduce_kernel():
    L = []; E = L.append
    E('.p2align 8'); E('.type red_kernel,@function'); E('.globl red_kernel'); E('red_kernel:')
    E('s_cmp_ge_u32 s2, 224'); E('s_cbranch_scc1 L_rend')
    E('s_load_dwordx2 s[4:5], s[0:1], 96'); E('s_load_dwordx2 s[8:9], s[0:1], 80')
    E(f's_mov_b32 s6, {256*PART}'); E('s_mov_b32 s7, 0x20000'); E(f's_mov_b32 s10, {16*48*896*2}'); E('s_mov_b32 s11, 0x20000')
    E('v_lshrrev_b32 v2, 6, v0'); E('v_and_b32 v1, 63, v0'); E('s_nop 0'); E('v_readfirstlane_b32 s12, v2')
    E('s_mov_b32 s13, 0x24924925'); E('s_mul_hi_u32 s14, s2, s13')
    E('s_mul_i32 s15, s14, 7'); E('s_sub_u32 s15, s2, s15')
    E(f's_mul_i32 s16, s14, {8*PART}'); E('s_mul_i32 s17, s15, 6144'); E('s_add_u32 s16, s16, s17')
    E('s_lshl_b32 s17, s12, 10'); E('s_add_u32 s16, s16, s17')
    E('v_lshlrev_b32 v3, 4, v1')
    E('s_waitcnt lgkmcnt(0)')
    for j in range(8):
        E(f'buffer_load_dwordx4 v[{16+4*j}:{19+4*j}], v3, s[4:7], s16 offen')
        if j < 7: E(f's_add_u32 s16, s16, {PART}')
    E('s_cmp_ge_u32 s12, 3'); E('s_cselect_b32 s18, 1, 0'); E('s_mul_i32 s19, s18, 3'); E('s_sub_u32 s19, s12, s19')
    E('s_and_b32 s20, s14, 15'); E('s_lshr_b32 s21, s14, 4')
    E('s_mul_i32 s20, s20, 48'); E('s_lshl_b32 s19, s19, 4'); E('s_add_u32 s20, s20, s19'); E('s_mul_i32 s20, s20, 1792')
    E('s_mul_i32 s21, s21, 896'); E('s_add_u32 s20, s20, s21'); E('s_lshl_b32 s21, s15, 7'); E('s_add_u32 s20, s20, s21')
    E('s_lshl_b32 s21, s18, 6'); E('s_add_u32 s20, s20, s21')
    E('v_and_b32 v4, 15, v1'); E('v_mul_u32_u24 v4, 1792, v4'); E('v_lshrrev_b32 v5, 4, v1'); E('v_lshl_add_u32 v4, v5, 3, v4')
    E('s_mov_b32 s22, 0xffff0000')
    for j in range(8):
        E(f's_waitcnt vmcnt({7-j})')
        for r in range(4):
            src = 16 + 4 * j + r
            if j == 0:
                E(f'v_lshlrev_b32 v{8+2*r}, 16, v{src}'); E(f'v_and_b32 v{9+2*r}, s22, v{src}')
            else:
                E(f'v_lshlrev_b32 v6, 16, v{src}'); E(f'v_and_b32 v7, s22, v{src}')
                E(f'v_add_f32 v{8+2*r}, v{8+2*r}, v6'); E(f'v_add_f32 v{9+2*r}, v{9+2*r}, v7')
    for r in range(4): E(f'v_cvt_pk_bf16_f32 v{16+r}, v{8+2*r}, v{9+2*r}')
    E('buffer_store_dwordx2 v[16:17], v4, s[8:11], s20 offen')
    E('buffer_store_dwordx2 v[18:19], v4, s[8:11], s20 offen offset:32')
    E('L_rend:'); E('s_endpgm')
    return L

def kd(name, nv, ao):
    return ['.p2align 6', f'.amdhsa_kernel {name}', f'  .amdhsa_next_free_vgpr {nv}', '  .amdhsa_next_free_sgpr 102', f'  .amdhsa_accum_offset {ao}',
            '  .amdhsa_group_segment_fixed_size 0', '  .amdhsa_kernarg_size 104', '  .amdhsa_user_sgpr_count 2',
            '  .amdhsa_user_sgpr_kernarg_segment_ptr 1', '  .amdhsa_system_sgpr_workgroup_id_x 1', '.end_amdhsa_kernel']

def build(fname):
    hdr = [l for l in open('cdna_kernels/' + NAME + '.s.ref').read().split('\n') if l.startswith(';') and '@launch' not in l and 'Override' not in l and 'grid=ceil' not in l]
    L = hdr[:]
    L.append(f'; @launch kernel={NAME}_kernel grid=(256,1,1) block=(256,1,1) lds={LDS_TOTAL}')
    L.append('; @launch kernel=red_kernel grid=(224,1,1) block=(384,1,1) lds=0')
    L += ['.amdgcn_target "amdgcn-amd-amdhsa--gfx950"', '.text', f'.globl {NAME}_kernel', '.p2align 8', f'.type {NAME}_kernel,@function', f'{NAME}_kernel:']
    L += ['s_cmp_ge_u32 s2, 256', 's_cbranch_scc1 L_exit', 's_bitcmp1_b32 s2, 3', 's_cbranch_scc0 L_pathA']
    L += path_B()
    L += ['L_exit:', 's_endpgm', 'L_pathA:']
    L += path_A()
    if cfg.stamps:
        L += ['L_stamps:', 's_waitcnt lgkmcnt(0)', f's_add_u32 s{SWS}, s{SWS}, 0xc800000', f's_addc_u32 s{SWS+1}, s{SWS+1}, 0',
              's_lshl_b32 s58, s2, 7', 'v_mov_b32 v40, s58', 'v_cmp_eq_u32 vcc, 0, v0', 's_and_saveexec_b64 s[58:59], vcc', 's_cbranch_execz L_exit2']
        for k in range(16):
            L += [f'v_mov_b32 v42, s{sST+2*k}', f'v_mov_b32 v43, s{sST+2*k+1}', f'buffer_store_dwordx2 v[42:43], v40, {srd(SWS)}, 0 offen offset:{8*k}', 's_nop 1']
        L += ['L_exit2:', 's_endpgm']
    L += reduce_kernel()
    L += ['.section .rodata,"a"'] + kd(NAME + '_kernel', 512, 256) + kd('red_kernel', 48, 48)
    txt = '\n'.join(l if (l.startswith(';') or l.startswith('.') or l.endswith(':') or l.startswith('  ')) else '    ' + l for l in L) + '\n'
    open(fname, 'w').write(txt)

if __name__ == '__main__':
    out = sys.argv[1] if len(sys.argv) > 1 else 'cdna_kernels/' + NAME + '.s'
    for a in sys.argv[2:]:
        k, v = a.split('=')
        val = {'True': True, 'False': False}.get(v, v)
        setattr(cfg, k, val.replace('+', ' ') if isinstance(val, str) else val)
    build(out)
```

```python
import sys, struct
NAME = 'concat_heads__gqa_block_cached__mha_block_cached__near_ridge'

class Cfg:
    stamps = False
    kvpol = 'nt'
    wpol = ''
    stpol = ''
    rot = True
    fuse = True
    warm = True
    pfK = 64
    pfB2 = 0
    pfB2s = 64
    pfV2 = 0
    pfpol = ''
    dmafirst = True
    fillV = 4
    fillK = 4
    fillpol = 'nt'
    noA = False
    eV2 = 0
    eK2 = 0
    ramp = 2
cfg = Cfg()

NQ = 6; QP = 4224
XB = 0; STAT = 49152; RING = 51200; RSZ = NQ * QP
LDS_TOTAL = RING + 4 * RSZ
PART = 43008
SX, SWQ, SK, SV, SWO, SWS = 4, 8, 12, 16, 20, 24
sJ, sB, sW, sRS, sRE, sRD, sWR, sLC, sY = 28, 29, 30, 31, 32, 33, 34, 35, 36
sPQK, sQH, sT0, sPK, sPV, sPOK, sOH = 37, 38, 39, 40, 41, 42, 43
sX0 = 44
sU, sC, sRQY, sRQK, sROK, sROY, sT1, sT2, sPART, sXM = 47, 48, 49, 50, 51, 52, 53, 54, 55, 56
sST = 60
SPF = 92
SOUT = 96
SDBG = 12
vV, vQ, vOA, vOB, vK, vX = 2, 6, 10, 14, 18, 19
vTB, vTA, vKB, vKA, vLin, vYA = 20, 24, 28, 29, 30, 31
vQW, vStW, vStR, vF3, vF6 = 32, 33, 34, 35, 36
vM, vTmp, vSR = 37, 43, 44
vXR = 60
vPF = 56
vS = 64; vOUT = 160
aFR = 192; aONE = 96

def srd(n): return f's[{n}:{n+3}]'
def vr(b, n=4): return f'v[{b}:{b+n-1}]'
def ar(b, n=4): return f'a[{b}:{b+n-1}]'

class Gen:
    def __init__(s):
        s.L = []; s.q = []; s.nlab = 0; s.pseq = 0; s.cseq = 0; s.nst = 0
    def E(s, t): s.L.append(t)
    def vm(s, t, tag):
        s.L.append(t); s.q.append(tag)
    def need(s, tag):
        idx = max(i for i, t in enumerate(s.q) if t == tag)
        n = len(s.q) - 1 - idx
        assert n <= 63, n
        return f's_waitcnt vmcnt({n})'
    def lab(s, p):
        s.nlab += 1; return f'L_{p}{s.nlab}'
    def stamp(s, k):
        if cfg.stamps:
            s.E(f's_memrealtime s[{sST+2*k}:{sST+2*k+1}]')
    def rolled(s, n, body, cnt=sLC):
        if n == 1:
            body(); return
        texts = []
        keep = s.L
        for it in range(n):
            s.L = []; body(); texts.append(s.L)
        for t in texts[1:]:
            assert t == texts[0], 'loop iterations differ:\n' + '\n'.join(f'{a} | {b}' for a, b in zip(texts[0], t) if a != b)
        s.L = keep
        lb = s.lab('loop')
        s.E(f's_mov_b32 s{cnt}, {n}')
        s.E(f'{lb}:')
        s.L += texts[0]
        s.E(f's_sub_u32 s{cnt}, s{cnt}, 1'); s.E(f's_cmp_lg_u32 s{cnt}, 0'); s.E(f's_cbranch_scc1 {lb}')

    def emit_item(s, it):
        if isinstance(it, str): s.E(it)
        elif it[0] == 'vm': s.vm(it[1], it[2])
        elif it[0] == 'need': s.E(s.need(it[1]))
    def interleave(s, mf, groups, start=0):
        n = len(mf); g = len(groups)
        pos = {}
        for k in range(g):
            p = min(n - 1, start + (k * (n - start)) // max(g, 1))
            pos.setdefault(p, []).append(k)
        for i, m in enumerate(mf):
            s.E(m)
            for k in pos.get(i, []):
                for it in groups[k]: s.emit_item(it)

    def adv(s, reg, step):
        return [f's_add_u32 s{reg}, s{reg}, {step}', f's_cmp_ge_u32 s{reg}, s{sRE}', f's_cselect_b32 s{reg}, s{sRS}, s{reg}']

    def prod(s, kind):
        tag = ('q', s.pseq); s.pseq += 1
        G = [[], [], [], []]
        if kind == 'K':
            for p in range(4):
                G[p] += [f's_add_u32 m0, s{sWR}, {p*32}', 's_nop 0',
                         ('vm', f'buffer_load_dwordx4 v{vK}, {srd(SK)}, s{sPK} offen offset:{p*1024} {cfg.kvpol} lds', tag)]
            G[3] += [f's_add_u32 s{sPK}, s{sPK}, 0x1000', f's_bitcmp1_b32 s{sPK}, 14', f's_cselect_b32 s{sT1}, 0xc000, 0', f's_add_u32 s{sPK}, s{sPK}, s{sT1}']
        else:
            if kind == 'V': vo, sr, so, pol, pre = vV, SV, sPV, cfg.kvpol, 's_nop 0'
            elif kind == 'Q': vo, sr, so, pol, pre = vQ, SWQ, sT0, cfg.wpol, f's_add_u32 s{sT0}, s{sPQK}, s{sQH}'
            elif kind == 'OA': vo, sr, so, pol, pre = vOA, SWO, sT0, cfg.wpol, f's_add_u32 s{sT0}, s{sPOK}, s{sOH}'
            elif kind == 'OB': vo, sr, so, pol, pre = vOB, SWO, sT0, cfg.wpol, f's_add_u32 s{sT0}, s{sPOK}, s{sOH}'
            G[0] += [f's_mov_b32 m0, s{sWR}', pre]
            for p in range(4):
                G[p] += [('vm', f'buffer_load_dwordx4 v{vo+p}, {srd(sr)}, s{so} offen offset:{p*1024} {pol} lds', tag)]
            if kind == 'V': G[3] += [f's_add_u32 s{sPV}, s{sPV}, 0x4000']
            elif kind == 'Q': G[3] += [f's_add_u32 s{sPQK}, s{sPQK}, 0x40000', f's_cmp_ge_u32 s{sPQK}, {14*0x40000}', f's_cselect_b32 s{sPQK}, 0, s{sPQK}']
            elif kind == 'OB': G[3] += [f's_add_u32 s{sPOK}, s{sPOK}, 28672', f's_cmp_ge_u32 s{sPOK}, {8*28672}', f's_cselect_b32 s{sPOK}, 0, s{sPOK}']
        G[3] += s.adv(sWR, QP)
        return G
    def prod_x(s):
        g = []
        for t in range(3):
            for m in range(4):
                g += [f's_add_u32 m0, s{sXM}, {XB + (12*m + 2*t)*1024 - m*256}', 's_nop 0',
                      ('vm', f'buffer_load_dwordx4 v{vX}, {srd(SX)}, s{sX0+t} offen offset:{m*256} {cfg.wpol} lds', 'x')]
        return g

    def tg_bufs(s, T, par, ylds, base):
        sz = 16 + (4 * T if ylds else 0)
        a = base + par * sz
        return a, a + 16
    def tg_fetch(s, T, par, ylds, ywrap, base):
        a, y = s.tg_bufs(T, par, ylds, base)
        tag = ('q', s.cseq); s.cseq += 1
        g0 = [('need', tag)] + [f'v_add_u32 v{vTA+d}, s{sRD}, v{vTB+d}' for d in range(4)]
        xm = bool(ywrap)
        if ylds: g0 += [f'v_add_u32 v{vYA}, s{sY}, v{(vXR+par) if xm else vLin}']
        rd = []
        for d in range(4):
            rd.append([f'ds_read_b64_tr_b16 {ar(a+4*d,2)}, v{vTA+d}', f'ds_read_b64_tr_b16 {ar(a+4*d+2,2)}, v{vTA+d} offset:2048'])
        yr = []
        if ylds:
            yr = [f'ds_read_b128 {ar(y+4*t)}, v{vYA} offset:{t*(2048 if xm else 1024)}' for t in range(T)]
        tail = s.adv(sRD, QP)
        if ylds and not xm:
            tail += [f's_add_u32 s{sY}, s{sY}, {T*1024}']
        if xm and par == 1:
            tail += [f's_add_u32 s{sY}, s{sY}, 6144', f's_cmp_ge_u32 s{sY}, {XB+ywrap}', f's_cselect_b32 s{sY}, {XB}, s{sY}']
        G = [g0 + rd[0]]
        if ylds:
            h = (T + 1) // 2
            G += [yr[:h], rd[1], yr[h:], rd[2], rd[3] + tail]
        else:
            G += [rd[1], rd[2], rd[3] + tail]
        return G
    def tg_prime(s, T, par, ylds, ywrap, base):
        for g in s.tg_fetch(T, par, ylds, ywrap, base):
            for it in g: s.emit_item(it)
    def tg_step(s, T, par, acc, pref, prodkind, ylds=True, ywrap=0, ystat=None, lacc=None, base=aFR, extra=None, c0=False):
        a, y = s.tg_bufs(T, par, ylds, base)
        if not ylds: y = ystat
        s.E('s_waitcnt lgkmcnt(0)')
        mf = []
        for d in range(4):
            for t in range(T):
                c = vr(acc + (d * T + t) * 4)
                mf.append(f'v_mfma_f32_16x16x32_bf16 {c}, {ar(a+4*d)}, {ar(y+4*t)}, {0 if c0 else c}')
        if lacc is not None:
            for t in range(T):
                c = vr(lacc + 4 * t)
                mf.append(f'v_mfma_f32_16x16x32_bf16 {c}, {ar(aONE)}, {ar(y+4*t)}, {0 if c0 else c}')
        kinds = prodkind if isinstance(prodkind, list) else ([prodkind] if prodkind else [])
        F = s.tg_fetch(T, par ^ 1, ylds, ywrap, base) if pref else []
        P = [extra] if extra else []
        for k in kinds: P += s.prod(k)
        first = cfg.dmafirst and lacc is not None
        s.interleave(mf, (P + F) if first else (F + P))
    def tg_phase(s, n, T, acc, kinds, ywrap=0, lacc=None, base=aFR, pre=None, c0=True, mid=None):
        s.tg_prime(T, 0, True, ywrap, base)
        seq = []
        for cnt, kd in kinds:
            k0, k1 = (kd if isinstance(kd, tuple) else (kd, kd))
            assert cnt % 2 == 0
            seq += [(k0, k1)] * (cnt // 2)
        pre = pre or []
        assert len(pre) % 2 == 0 and len(pre) + 2 * len(seq) == n
        pairs = [(pre[i], pre[i+1]) for i in range(0, len(pre), 2)] + seq
        def pair(k0, k1, z=False, last=False):
            s.tg_step(T, 0, acc, True, k0, True, ywrap, None, lacc, base, c0=z)
            s.tg_step(T, 1, acc, not last, k1, True, ywrap, None, lacc, base)
        i = 0; np_ = len(pairs)
        while i < np_:
            if mid and i == mid[0]:
                for t in mid[1]: s.E(t)
            if (i == 0 and c0) or i == np_ - 1 or i < len(pre) // 2:
                pair(*pairs[i], z=(i == 0 and c0), last=(i == np_ - 1)); i += 1; continue
            j = i
            while j < np_ - 1 and pairs[j] == pairs[i] and not (mid and j == mid[0] and j != i): j += 1
            s.rolled(j - i, lambda: pair(*pairs[i]))
            i = j
    def fill(s, kind, n):
        if not n: return
        if kind == 'V':
            s.E(f's_mov_b32 s{sT2}, s{sPV}')
            for k in range(n):
                for p in range(4): s.E(f'buffer_load_dwordx4 {vr(vPF)}, v{vV+p}, {srd(SV)}, s{sT2} offen offset:{p*1024} {cfg.fillpol}')
                s.E(f's_add_u32 s{sT2}, s{sT2}, 0x4000')
        else:
            s.E(f's_mov_b32 s{sT2}, s{sPK}')
            for k in range(n):
                for p in range(4): s.E(f'buffer_load_dwordx4 {vr(vPF)}, v{vK}, {srd(SK)}, s{sT2} offen offset:{p*1024} {cfg.fillpol}')
                s.E(f's_add_u32 s{sT2}, s{sT2}, {0x1000 if k % 4 != 3 else 0xd000}')
    def zero(s, base, n):
        for r in range(base, base + n): s.E(f'v_mov_b32 v{r}, 0')

    def k_fetch(s, par):
        a = aFR + par * 32
        s.cseq += 2
        tag = ('q', s.cseq - 1)
        g0 = [('need', tag), f'v_add_u32 v{vKA}, s{sRD}, v{vKB}']
        rd = [f'ds_read_b128 {ar(a+4*k)}, v{vKA} offset:{k*64}' for k in range(8)]
        return [g0 + rd[0:2], rd[2:4], rd[4:6], rd[6:8] + s.adv(sRD, 2 * QP)]
    def s_phase(s, T, kinds):
        for g in s.k_fetch(0):
            for it in g: s.emit_item(it)
        for tau in range(8):
            par = tau & 1
            a = aFR + par * 32
            s.E('s_waitcnt lgkmcnt(0)')
            mf = []
            for k in range(8):
                for t in range(T):
                    c = vr(vS + (tau * T + t) * 4)
                    qf = ((t // 3) * 24 + k * 3 + (t % 3)) * 4
                    mf.append(f'v_mfma_f32_16x16x32_bf16 {c}, {ar(a+4*k)}, {ar(qf)}, {c if k else 0}')
            F = s.k_fetch(par ^ 1) if tau < 7 else []
            P = s.prod(kinds[2 * tau]) + s.prod(kinds[2 * tau + 1])
            G = (P + F) if cfg.dmafirst else (F + P)
            if tau > 0: G[-1] = G[-1] + s.tile_max(T, tau - 1)
            s.interleave(mf, G)
    def tile_max(s, T, tau):
        S = lambda t, r: vS + (tau * T + t) * 4 + r
        o = []
        if tau == 0:
            o += [f'v_max3_f32 v{vM+t}, v{S(t,0)}, v{S(t,1)}, v{S(t,2)}' for t in range(T)]
            o += [f'v_max_f32 v{vM+t}, v{vM+t}, v{S(t,3)}' for t in range(T)]
        else:
            o += [f'v_max3_f32 v{vM+t}, v{vM+t}, v{S(t,0)}, v{S(t,1)}' for t in range(T)]
            o += [f'v_max3_f32 v{vM+t}, v{vM+t}, v{S(t,2)}, v{S(t,3)}' for t in range(T)]
        return o
    def softmax(s, T):
        E = s.E
        E('s_nop 7'); E('s_nop 1')
        for x in s.tile_max(T, 7): E(x)
        for op in ('v_permlane32_swap_b32', 'v_permlane16_swap_b32'):
            for t in range(T): E(f'v_mov_b32 v{vSR+t}, v{vM+t}')
            E('s_nop 1')
            for t in range(T): E(f'{op} v{vM+t}, v{vSR+t}')
            E('s_nop 1')
            for t in range(T): E(f'v_max_f32 v{vM+t}, v{vM+t}, v{vSR+t}')
        for t in range(T): E(f'ds_write_b32 v{vStW}, v{vM+t} offset:{t*256}')
        E('s_waitcnt lgkmcnt(0)'); E('s_barrier')
        for t0 in range(0, T, 3):
            for t in range(t0, t0 + 3): E(f'ds_read_b128 {vr(vSR+4*(t-t0))}, v{vStR} offset:{t*256}')
            E('s_waitcnt lgkmcnt(0)')
            for t in range(t0, t0 + 3):
                b = vSR + 4 * (t - t0)
                E(f'v_max3_f32 v{vM+t}, v{b}, v{b+1}, v{b+2}')
            for t in range(t0, t0 + 3):
                b = vSR + 4 * (t - t0)
                E(f'v_max_f32 v{vM+t}, v{vM+t}, v{b+3}')
            for t in range(t0, t0 + 3): E(f'v_mul_f32 v{vM+t}, s{sC}, v{vM+t}')
        E(f'v_mov_b32 v{vTmp}, 0x3f803f80')
        for r in range(4): E(f'v_accvgpr_write_b32 a{aONE+r}, v{vTmp}')
    def exp_pack(s, T, n, wr=None):
        E = s.E
        S = lambda tau, t, r: vS + (tau * T + t) * 4 + r
        for t in range(T):
            regs = [S(2 * n, t, r) for r in range(4)] + [S(2 * n + 1, t, r) for r in range(4)]
            for r in regs: E(f'v_fma_f32 v{r}, v{r}, s{sC}, -v{vM+t}')
            for r in regs: E(f'v_exp_f32 v{r}, v{r}')
            E('s_nop 0')
            d = vS + (n * T + t) * 4
            for k in range(4): E(f'v_cvt_pk_bf16_f32 v{d+k}, v{regs[2*k]}, v{regs[2*k+1]}')
            if wr: E(wr(n, t, d))
    def q_pack(s, acc, dst):
        for d in range(4):
            for t in range(3):
                a = acc + (d * 3 + t) * 4; o = dst + (d * 3 + t) * 2
                s.E(f'v_cvt_pk_bf16_f32 v{o}, v{a}, v{a+1}'); s.E(f'v_cvt_pk_bf16_f32 v{o+1}, v{a+2}, v{a+3}')
    def q_write(s, src, hd):
        for d in range(4):
            for t in range(3):
                o = src + (d * 3 + t) * 2
                s.E(f'ds_write_b64 v{vQW}, {vr(o,2)} offset:{XB + hd*24576 + (d>>1)*3072 + t*1024 + (d&1)*512}')
    def frag_read(s, n, off=0):
        for f in range(n):
            s.E(f'ds_read_b128 {ar(4*f)}, v{vLin} offset:{XB + off + f*1024}')
            if f % 12 == 11 and f != n - 1: s.E('s_waitcnt lgkmcnt(4)')
    def o_write(s, T, acc, lacc):
        E = s.E
        E('s_nop 7'); E('s_nop 1')
        for t in range(T): E(f'v_rcp_f32 v{vM+t}, v{lacc+4*t}')
        E('s_nop 0')
        for kk in range(2):
            for t in range(T):
                a0 = acc + ((2 * kk) * T + t) * 4; a1 = acc + ((2 * kk + 1) * T + t) * 4
                for r in range(4): E(f'v_mul_f32 v{a0+r}, v{a0+r}, v{vM+t}')
                for r in range(4): E(f'v_mul_f32 v{a1+r}, v{a1+r}, v{vM+t}')
                E(f'v_cvt_pk_bf16_f32 v{a0}, v{a0}, v{a0+1}'); E(f'v_cvt_pk_bf16_f32 v{a0+1}, v{a0+2}, v{a0+3}')
                E(f'v_cvt_pk_bf16_f32 v{a0+2}, v{a1}, v{a1+1}'); E(f'v_cvt_pk_bf16_f32 v{a0+3}, v{a1+2}, v{a1+3}')
        E('s_barrier')
        for kk in range(2):
            for t in range(T):
                a0 = acc + ((2 * kk) * T + t) * 4
                E(f'ds_write_b128 v{vF6}, {vr(a0)} offset:{XB + (t//3)*24576 + kk*3072 + (t%3)*1024}')
        E('s_waitcnt lgkmcnt(0)'); E('s_barrier')
    def o_frag_read(s, hdoff_sgpr=None):
        E = s.E
        E(f's_mov_b32 s{sT1}, s{sROY}')
        for jj in range(8):
            E(f's_add_u32 s{sT2}, s{sT1}, s{sY}')
            E(f'v_add_u32 v{vYA}, s{sT2}, v{vLin}')
            for t in range(3): E(f'ds_read_b128 {ar((jj*3+t)*4)}, v{vYA} offset:{t*1024}')
            E(f's_add_u32 s{sT1}, s{sT1}, 3072'); E(f's_cmp_ge_u32 s{sT1}, 24576'); E(f's_cselect_b32 s{sT1}, 0, s{sT1}')
            if jj % 4 == 3: E('s_waitcnt lgkmcnt(0)')
    def o_proj(s, kinds, extra_at=None, extra=None):
        s.tg_prime(3, 0, False, 0, aFR)
        for st in range(16):
            ex = extra() if st == extra_at else None
            s.tg_step(3, st & 1, vOUT + (st & 1) * 48, st < 15, kinds[st], False, 0, (st >> 1) * 12, None, aFR, ex)
    def store_partial(s):
        E = s.E
        E('s_nop 7'); E('s_nop 1')
        lb = s.lab('nost')
        for sg in range(2):
            if sg == 1:
                E(f's_cmp_eq_u32 s{sW}, 3'); E(f's_cbranch_scc1 {lb}')
            for u in range(2):
                E(f's_add_u32 s{sT0}, s{sPART}, {sg*24576 + u*3072}')
                for t in range(3):
                    a0 = vOUT + ((sg * 4 + 2 * u) * 3 + t) * 4; a1 = a0 + 12
                    E(f'v_cvt_pk_bf16_f32 v{a0}, v{a0}, v{a0+1}'); E(f'v_cvt_pk_bf16_f32 v{a0+1}, v{a0+2}, v{a0+3}')
                    E(f'v_cvt_pk_bf16_f32 v{a0+2}, v{a1}, v{a1+1}'); E(f'v_cvt_pk_bf16_f32 v{a0+3}, v{a1+2}, v{a1+3}')
                    E(f'buffer_store_dwordx4 {vr(a0)}, v{vF6}, {srd(SWS)}, s{sT0} offen offset:{t*1024} {cfg.stpol}')
        E(f'{lb}:')

    def setup_common(s):
        E = s.E
        E('v_and_b32 v1, 63, v0'); E('v_lshrrev_b32 v40, 6, v0'); E('s_nop 0')
        E(f'v_readfirstlane_b32 s{sW}, v40')
        E(f's_and_b32 s{sJ}, s2, 7'); E(f's_lshr_b32 s{sB}, s2, 4')
        E('v_and_b32 v41, 15, v1')
        E(f'v_lshlrev_b32 v{vLin}, 4, v1')
        E('v_lshrrev_b32 v42, 4, v1')
        E('v_lshrrev_b32 v43, 3, v1')
        E('v_and_b32 v44, 7, v1')
        E('v_and_b32 v45, 6, v43'); E('v_xor_b32 v44, v44, v45'); E('v_lshlrev_b32 v44, 4, v44')
        E('v_lshl_add_u32 v44, v40, 7, v44')
        E('v_and_b32 v45, 1, v40'); E('v_lshl_add_u32 v46, v45, 3, v43'); E(f'v_mul_u32_u24 v{vX}, 896, v46')
        E('v_lshrrev_b32 v46, 1, v46'); E('v_and_b32 v47, 7, v1'); E('v_xor_b32 v46, v46, v47'); E(f'v_lshl_add_u32 v{vX}, v46, 4, v{vX}')
        E('v_lshrrev_b32 v46, 1, v40'); E(f'v_lshl_add_u32 v{vX}, v46, 7, v{vX}')
        E('v_lshrrev_b32 v45, 2, v43'); E('v_lshlrev_b32 v45, 3, v45'); E('v_and_b32 v46, 3, v43'); E('v_add_u32 v45, v45, v46')
        E(f'v_lshl_add_u32 v{vQ}, v45, 13, v44')
        for p in range(1, 4): E(f'v_add_u32 v{vQ+p}, {(16*(p&1)+4*(p>>1))*8192 - p*1024}, v{vQ}')
        E(f's_mul_i32 s{sRS}, s{sW}, {RSZ}'); E(f's_add_u32 s{sRS}, s{sRS}, {RING}'); E(f's_add_u32 s{sRE}, s{sRS}, {RSZ}')
        E(f's_mov_b32 s{sRD}, s{sRS}'); E(f's_mov_b32 s{sWR}, s{sRS}')
        E(f's_lshr_b32 s{sXM}, s{sW}, 1'); E(f's_mul_i32 s{sXM}, s{sXM}, 6'); E(f's_and_b32 s{sT0}, s{sW}, 1'); E(f's_add_u32 s{sXM}, s{sXM}, s{sT0}'); E(f's_lshl_b32 s{sXM}, s{sXM}, 10')
        E(f's_mul_i32 s{sX0}, s{sB}, 43008'); E(f's_add_u32 s{sX0+1}, s{sX0}, 14336'); E(f's_add_u32 s{sX0+2}, s{sX0}, 28672')
        if cfg.rot:
            E(f's_mul_i32 s{sT0}, s{sB}, 7'); E(f's_lshr_b32 s{sT0}, s{sT0}, 4')
            E(f's_lshr_b32 s{sT1}, s{sB}, 1')
        else:
            E(f's_mov_b32 s{sT0}, 0'); E(f's_mov_b32 s{sT1}, 0')
        E(f's_mul_i32 s{sRQY}, s{sT0}, 6144'); E(f's_lshl_b32 s{sRQK}, s{sT0}, 19')
        E(f's_mul_i32 s{sROK}, s{sT1}, 28672'); E(f's_mul_i32 s{sROY}, s{sT1}, 3072')
        E(f's_mov_b32 s{sPQK}, s{sRQK}'); E(f's_mov_b32 s{sPOK}, s{sROK}')
        E(f's_lshl_b32 s{sQH}, s{sJ}, 10'); E(f's_mul_i32 s{sOH}, s{sJ}, {512*896}')
    def setup_late(s):
        E = s.E
        E(f'v_lshl_add_u32 v{vV}, v43, 9, v44')
        for p in range(1, 4): E(f'v_add_u32 v{vV+p}, {p*3072}, v{vV}')
        E(f'v_mul_u32_u24 v{vOA}, 896, v43'); E(f'v_add_u32 v{vOA}, v{vOA}, v44')
        for p in range(1, 4): E(f'v_add_u32 v{vOA+p}, {p*(8*896-1024)}, v{vOA}')
        E(f's_cmp_eq_u32 s{sW}, 3'); E(f's_cselect_b32 s{sT0}, 0x40000000, 512')
        for p in range(4): E(f'v_add_u32 v{vOB+p}, s{sT0}, v{vOA+p}')
        E('v_lshrrev_b32 v45, 5, v1'); E('v_and_b32 v46, 31, v1'); E('v_xor_b32 v46, v46, v45'); E('v_lshlrev_b32 v46, 4, v46')
        E('v_lshl_add_u32 v46, v45, 9, v46'); E(f'v_lshl_add_u32 v{vK}, v40, 14, v46')
        E('v_lshrrev_b32 v45, 2, v41')
        E('v_and_b32 v46, 1, v42'); E('v_lshl_add_u32 v45, v46, 2, v45')
        E('v_lshrrev_b32 v46, 1, v42'); E('v_lshlrev_b32 v46, 10, v46'); E('v_lshl_add_u32 v46, v45, 7, v46')
        E('v_and_b32 v47, 3, v41'); E('v_lshl_add_u32 v46, v47, 3, v46')
        E('v_lshrrev_b32 v45, 1, v45')
        for d in range(4):
            E(f'v_xor_b32 v47, {d}, v45'); E(f'v_lshl_add_u32 v{vTB+d}, v47, 5, v46')
        E('v_lshrrev_b32 v45, 1, v41'); E(f'v_mul_u32_u24 v{vKB}, 1056, v45'); E('v_and_b32 v45, 1, v41')
        E(f'v_lshl_add_u32 v{vKB}, v45, 9, v{vKB}'); E('v_xor_b32 v45, v45, v42'); E(f'v_lshl_add_u32 v{vKB}, v45, 4, v{vKB}')
        E('v_lshrrev_b32 v45, 3, v41'); E('v_lshlrev_b32 v45, 10, v45'); E('v_and_b32 v46, 7, v41'); E('v_lshl_add_u32 v45, v46, 7, v45')
        E('v_lshrrev_b32 v46, 1, v41'); E('v_xor_b32 v46, v46, v42'); E(f'v_lshl_add_u32 v{vXR}, v46, 4, v45'); E(f'v_xor_b32 v{vXR+1}, 64, v{vXR}')
        E(f'v_mul_u32_u24 v45, 3072, v40'); E(f'v_add_u32 v{vF3}, v45, v{vLin}'); E(f'v_add_u32 v{vF6}, v45, v{vF3}')
        E('v_lshlrev_b32 v45, 1, v45'); E('v_lshrrev_b32 v46, 1, v42'); E('v_lshl_add_u32 v45, v46, 8, v45')
        E('v_lshl_add_u32 v45, v41, 4, v45'); E('v_and_b32 v46, 1, v42'); E(f'v_lshl_add_u32 v{vQW}, v46, 3, v45')
        E(f'v_lshlrev_b32 v45, 4, v41'); E(f'v_add_u32 v{vStR}, {STAT}, v45'); E(f'v_lshl_add_u32 v{vStW}, v40, 2, v{vStR}')
        c = struct.unpack('<I', struct.pack('<f', 1.4426950408889634 / 16.0))[0]
        E(f's_mov_b32 s{sC}, {c:#x}')
    def load_ptrs(s, br):
        E = s.E
        o = 40 * br
        E(f's_load_dwordx2 s[{SX}:{SX+1}], s[0:1], {o}')
        E(f's_load_dwordx2 s[{SWQ}:{SWQ+1}], s[0:1], {o+24}')
        E(f's_load_dwordx2 s[{SK}:{SK+1}], s[0:1], {o+8}')
        E(f's_load_dwordx2 s[{SV}:{SV+1}], s[0:1], {o+16}')
        E(f's_load_dwordx2 s[{SWO}:{SWO+1}], s[0:1], {o+32}')
        E(f's_load_dwordx2 s[{SWS}:{SWS+1}], s[0:1], 96')
        kv = 16 * (16 if br else 8) * 262144
        for r, n in ((SX, 16 * 43008), (SWQ, 448 * 8192), (SK, kv), (SV, kv), (SWO, 4096 * 896), (SWS, 256 * PART)):
            E(f's_mov_b32 s{r+2}, {n}'); E(f's_mov_b32 s{r+3}, 0x20000')
    def emit_groups(s, G):
        for g in G:
            for it in g: s.emit_item(it)
    def prefetch(s, kb, step=1024, sreg=sT2):
        n = kb
        for k in range(n):
            s.E(f'buffer_load_dwordx4 {vr(vPF)}, v{vLin}, {srd(SPF)}, s{sreg} offen {cfg.pfpol}')
            s.E(f's_add_u32 s{sreg}, s{sreg}, s{sT1}' if step is None else f's_add_u32 s{sreg}, s{sreg}, {step}')
    def pf_loop(s, n, step):
        if n == 0: return
        assert n % 4 == 0
        def body():
            s.prefetch(4, step)
            s.E('s_waitcnt vmcnt(24)')
        s.rolled(n // 4, body)
    def finish(s, br):
        E = s.E
        s.store_partial()
        assert cfg.fuse
        E(f's_mov_b32 s{sU}, {br}')
        E('s_branch L_reduce')

def reduce_tail():
    L = []; E = L.append
    def st(k):
        if cfg.stamps: E(f's_memrealtime s[{sST+2*k}:{sST+2*k+1}]')
    E('L_reduce:')
    E(f's_load_dwordx2 s[{SDBG}:{SDBG+1}], s[0:1], 88'); E(f's_load_dwordx2 s[{SOUT}:{SOUT+1}], s[0:1], 80')
    E(f's_lshl_b32 s{sT0}, s{sU}, 4'); E(f's_add_u32 s{sT0}, s{sT0}, s{sB}')
    E(f's_lshl_b32 s{sT1}, s{sT0}, 3'); E(f'v_mov_b32 v40, s{sT1}'); E('v_mov_b32 v41, 1')
    E(f's_mul_i32 s{sPART}, s{sT0}, {8*PART}')
    E(f's_lshl_b32 s{sT2}, s{sJ}, 2'); E(f's_add_u32 s{sT2}, s{sT2}, s{sW}')
    E('v_and_b32 v42, 15, v1'); E('v_mul_u32_u24 v42, 1792, v42'); E('v_lshrrev_b32 v43, 4, v1'); E('v_lshl_add_u32 v42, v43, 3, v42')
    E(f's_mul_i32 s{sY}, s{sB}, {48*1792}'); E(f's_mul_i32 s{sT1}, s{sU}, 896'); E(f's_add_u32 s{sY}, s{sY}, s{sT1}')
    E('s_waitcnt lgkmcnt(0)')
    E(f's_mov_b32 s{SDBG+2}, 256'); E(f's_mov_b32 s{SDBG+3}, 0x20000'); E(f's_mov_b32 s{SOUT+2}, {16*48*896*2}'); E(f's_mov_b32 s{SOUT+3}, 0x20000')
    E('s_waitcnt vmcnt(0)')
    E('s_barrier')
    st(11)
    E(f's_cmp_lg_u32 s{sW}, 0'); E('s_cbranch_scc1 L_rwait')
    E('s_mov_b64 exec, 1')
    E(f'buffer_atomic_add v41, v40, {srd(SDBG)}, 0 offen sc0 sc1')
    E('s_waitcnt vmcnt(0)')
    st(12)
    E(f'v_readfirstlane_b32 s{sT1}, v41')
    E(f's_cmp_ge_u32 s{sT1}, 7'); E('s_cbranch_scc1 L_rgo')
    E(f's_mov_b32 s{sLC}, 0x100000')
    E('L_poll:')
    E(f's_sub_u32 s{sLC}, s{sLC}, 1'); E('s_cbranch_scc1 L_rgo')
    E('s_sleep 2')
    E(f'buffer_load_dword v41, v40, {srd(SDBG)}, 0 offen sc1')
    E('s_waitcnt vmcnt(0)')
    E(f'v_readfirstlane_b32 s{sT1}, v41')
    E(f's_cmp_lt_u32 s{sT1}, 8'); E('s_cbranch_scc1 L_poll')
    E('L_rgo:')
    E('s_mov_b64 exec, -1')
    E('L_rwait:')
    E('s_barrier')
    st(13)
    def loads(base, freg):
        E(f's_lshl_b32 s{sT0}, s{freg}, 10'); E(f's_add_u32 s{sT0}, s{sT0}, s{sPART}')
        for j in range(8):
            E(f'buffer_load_dwordx4 {vr(base+4*j)}, v{vLin}, {srd(SWS)}, s{sT0} offen sc1')
            if j < 7: E(f's_add_u32 s{sT0}, s{sT0}, {PART}')
    def task(base, freg, extra):
        E(f's_mul_i32 s{sT0}, s{freg}, 43'); E(f's_lshr_b32 s{sT0}, s{sT0}, 8')
        E(f's_mul_i32 s{sT1}, s{sT0}, 6'); E(f's_sub_u32 s{sT1}, s{freg}, s{sT1}')
        E(f's_lshl_b32 s{sT0}, s{sT0}, 7'); E(f's_add_u32 s{sT0}, s{sT0}, s{sY}')
        E(f's_cmp_ge_u32 s{sT1}, 3'); E(f's_cselect_b32 s{sLC}, {64 - 3*16*1792}, 0'); E(f's_add_u32 s{sT0}, s{sT0}, s{sLC}')
        E(f's_mul_i32 s{sT1}, s{sT1}, {16*1792}'); E(f's_add_u32 s{sT0}, s{sT0}, s{sT1}')
        E(f's_mov_b32 s{sLC}, 0xffff0000')
        for j in range(8):
            E(f's_waitcnt vmcnt({7-j+extra})')
            for r in range(4):
                src = base + 4 * j + r
                if j == 0:
                    E(f'v_lshlrev_b32 v{48+2*r}, 16, v{src}'); E(f'v_and_b32 v{49+2*r}, s{sLC}, v{src}')
                else:
                    E(f'v_lshlrev_b32 v46, 16, v{src}'); E(f'v_and_b32 v47, s{sLC}, v{src}')
                    E(f'v_add_f32 v{48+2*r}, v{48+2*r}, v46'); E(f'v_add_f32 v{49+2*r}, v{49+2*r}, v47')
        for r in range(4): E(f'v_cvt_pk_bf16_f32 v{base+r}, v{48+2*r}, v{49+2*r}')
        E(f'buffer_store_dwordx2 {vr(base,2)}, v42, {srd(SOUT)}, s{sT0} offen')
        E(f'buffer_store_dwordx2 {vr(base+2,2)}, v42, {srd(SOUT)}, s{sT0} offen offset:32')
    loads(64, sT2)
    E(f's_cmp_ge_u32 s{sT2}, 10'); E('s_cbranch_scc1 L_r1')
    E(f's_add_u32 s{sRD}, s{sT2}, 32')
    loads(96, sRD)
    task(96, sRD, 0)
    E('s_waitcnt vmcnt(2)')
    E('L_r1:')
    task(64, sT2, 0)
    st(14)
    if cfg.stamps:
        E('s_waitcnt vmcnt(0)')
        E(f's_memrealtime s[{sST+30}:{sST+31}]')
        E('s_branch L_stamps')
    else:
        E('s_endpgm')
    return L

def ramp_pre(kind_list):
    extra = NQ - cfg.ramp
    n = extra + (extra & 1)
    return [([kind_list, kind_list] if i < extra else [kind_list]) for i in range(n)]

def path_B():
    s = Gen(); E = s.E; s.nlab = 1000
    s.stamp(0)
    s.load_ptrs(1)
    s.setup_common()
    E(f's_lshl_b32 s{sPK}, s{sB}, 3'); E(f's_add_u32 s{sPK}, s{sPK}, s{sJ}')
    E(f's_add_u32 s{sPART}, s{sPK}, 128'); E(f's_mul_i32 s{sPART}, s{sPART}, {PART}')
    E(f's_lshl_b32 s{sPK}, s{sPK}, 19'); E(f's_mov_b32 s{sPV}, s{sPK}')
    E('s_waitcnt lgkmcnt(0)')
    s.emit_groups([s.prod_x()])
    for _ in range(cfg.ramp): s.emit_groups(s.prod('Q'))
    s.setup_late()
    s.zero(vOUT, 96)
    def qproj(first):
        E(f's_add_u32 s{sY}, s{sRQY}, {XB}')
        E(s.need('x')); E('s_barrier')
        if first:
            s.stamp(1)
            pre = ramp_pre('Q')
            s.tg_phase(14, 3, vS, [(8 - len(pre), 'Q'), (6, 'K')], ywrap=43008, pre=pre)
        else:
            s.tg_phase(14, 3, vS, [(8, 'Q'), (6, 'K')], ywrap=43008)
        s.stamp(2 if first else 7)
    def rest():
        E(f's_add_u32 s{sQH}, s{sQH}, 512')
        E('s_nop 7'); E('s_nop 1')
        s.q_pack(vS, vS + 48)
        E('s_barrier')
        s.q_write(vS + 48, 0)
        E('s_waitcnt lgkmcnt(0)'); E('s_barrier')
        s.frag_read(24)
        s.s_phase(3, ['K'] * 10 + ['V'] * 6)
        s.stamp(8)
        s.fill('V', cfg.fillV)
        s.softmax(3)
        for n in range(4):
            s.exp_pack(3, n, lambda n, t, d: f'ds_write_b128 v{vF3}, {vr(d)} offset:{XB + n*12288 + t*1024}')
        E(f's_mov_b32 s{sY}, {XB}')
        E('s_waitcnt lgkmcnt(0)'); E('s_barrier')
        s.stamp(11)
        npre = 0
        s.tg_phase(16, 3, vS, [(10 - npre, 'V'), (6, ('OA', 'OB'))], lacc=vS + 48, pre=['V'] * npre)
        s.stamp(9)
        E(f's_cmp_eq_u32 s{sU}, 1'); E(f's_cselect_b32 s{SX+2}, 0, s{SX+2}'); E(f's_cselect_b32 s{SWQ+2}, 0, s{SWQ+2}'); E(f's_cselect_b32 s{SK+2}, 0, s{SK+2}')
        s.fill('K', cfg.fillK)
        s.o_write(3, vS, vS + 48)
        E(f's_mov_b32 s{sY}, {XB}')
        s.o_frag_read()
        E('s_barrier')
        s.o_proj(['OA', 'OB'] * 5 + ['Q'] * 6, extra_at=10, extra=s.prod_x)
        E(f's_add_u32 s{sOH}, s{sOH}, {256*896}')
        s.stamp(10)
    qproj(True)
    keep = s.L
    s.L = []; s.nlab = 1100; rest(); t1 = s.L
    s.L = []; qproj(False); tq = s.L
    s.L = []; s.nlab = 1100; rest(); t2 = s.L
    assert t1 == t2, [f'{a} | {b}' for a, b in zip(t1, t2) if a != b][:10]
    s.L = keep
    s.E(f's_mov_b32 s{sU}, 0'); s.E('L_unit:'); s.L += t1
    s.E(f's_cmp_eq_u32 s{sU}, 1'); s.E('s_cbranch_scc1 L_bdone')
    s.E(f's_mov_b32 s{sU}, 1')
    if cfg.stamps:
        s.E('s_waitcnt lgkmcnt(0)')
        for d, k in ((3, 8), (4, 11), (5, 9), (6, 10)): s.E(f's_mov_b64 s[{sST+2*d}:{sST+2*d+1}], s[{sST+2*k}:{sST+2*k+1}]')
    s.L += tq
    s.E('s_branch L_unit'); s.E('L_bdone:')
    s.nlab = 1900
    s.finish(1)
    return s.L

def path_A():
    s = Gen(); E = s.E; s.nlab = 2000
    s.stamp(0)
    s.load_ptrs(0)
    s.setup_common()
    E(f's_lshl_b32 s{sPK}, s{sB}, 3'); E(f's_add_u32 s{sPK}, s{sPK}, s{sJ}')
    E(f's_mul_i32 s{sPART}, s{sPK}, {PART}')
    E(f's_lshl_b32 s{sPK}, s{sPK}, 18'); E(f's_mov_b32 s{sPV}, s{sPK}')
    E(f's_load_dwordx4 s[{sST+8}:{sST+11}], s[0:1], 64')
    E('s_waitcnt lgkmcnt(0)')
    if cfg.warm:
        E(f's_bitcmp1_b32 s{sW}, 1')
        E(f's_cselect_b32 s{SPF}, s{sST+8}, s{SWQ}'); E(f's_cselect_b32 s{SPF+1}, s{sST+9}, s{SWQ+1}')
        E(f's_cselect_b32 s{sT0}, s{sST+10}, s{SWO}'); E(f's_cselect_b32 s{sT1}, s{sST+11}, s{SWO+1}')
        E(f's_bitcmp1_b32 s{sW}, 0')
        E(f's_cselect_b32 s{SPF}, s{sT0}, s{SPF}'); E(f's_cselect_b32 s{SPF+1}, s{sT1}, s{SPF+1}')
        E(f's_mov_b32 s{SPF+2}, {448*8192}'); E(f's_mov_b32 s{SPF+3}, 0x20000')
        E(f's_mul_i32 s{sT0}, s{sB}, {28*8192}'); E(f's_add_u32 s{sT0}, s{sT0}, s{sQH}')
        E(f's_mul_i32 s{sT2}, s{sB}, {28*1024}'); E(f's_add_u32 s{sT2}, s{sT2}, s{sOH}')
        E(f's_bitcmp1_b32 s{sW}, 0')
        E(f's_cselect_b32 s{sT2}, s{sT2}, s{sT0}'); E(f's_movk_i32 s{sT1}, 0x2000'); E(f's_cselect_b32 s{sT1}, 0x400, s{sT1}')
        s.pf_loop(28, None)
    def pf_partner(argoff, kb, startkb):
        E(f's_load_dwordx2 s[{SPF}:{SPF+1}], s[0:1], {argoff}')
        E(f's_lshl_b32 s{sT2}, s{sB}, 3'); E(f's_add_u32 s{sT2}, s{sT2}, s{sJ}'); E(f's_lshl_b32 s{sT2}, s{sT2}, 19')
        E(f's_add_u32 s{sT2}, s{sT2}, {262144 + startkb*1024}'); E(f's_lshl_b32 s{sT1}, s{sW}, 10'); E(f's_add_u32 s{sT2}, s{sT2}, s{sT1}')
        E('s_waitcnt lgkmcnt(0)')
        E(f's_mov_b32 s{SPF+2}, {256*262144}'); E(f's_mov_b32 s{SPF+3}, 0x20000')
        s.pf_loop(kb // 4, 4096)
    if cfg.eV2: pf_partner(56, cfg.eV2, 256 - cfg.eV2)
    if cfg.eK2: pf_partner(48, cfg.eK2, 256 - cfg.eK2)
    if cfg.pfK:
        E(f's_mov_b32 s{SPF}, s{SK}'); E(f's_mov_b32 s{SPF+1}, s{SK+1}'); E(f's_mov_b32 s{SPF+2}, s{SK+2}'); E(f's_mov_b32 s{SPF+3}, 0x20000')
        E(f's_lshl_b32 s{sT2}, s{sW}, 10'); E(f's_add_u32 s{sT2}, s{sT2}, s{sPK}')
        s.pf_loop(cfg.pfK // 4, 4096)
    s.emit_groups([s.prod_x()])
    for _ in range(cfg.ramp): s.emit_groups(s.prod('Q'))
    s.setup_late()
    E(f's_add_u32 s{sY}, s{sRQY}, {XB}')
    E(s.need('x')); E('s_barrier')
    s.stamp(1)
    pre = ramp_pre('Q')
    s.tg_phase(14, 3, vS, [(14 - len(pre), 'Q')], ywrap=43008, pre=pre, mid=(4, [f's_add_u32 s{sQH}, s{sQH}, 512']))
    E('s_nop 7'); E('s_nop 1')
    s.q_pack(vS, vS + 48)
    s.tg_phase(14, 3, vS, [(8, 'Q'), (6, 'K')], ywrap=43008)
    s.stamp(2)
    E('s_nop 7'); E('s_nop 1')
    s.q_pack(vS, vS + 72)
    E('s_barrier')
    s.q_write(vS + 48, 0); s.q_write(vS + 72, 1)
    E('s_waitcnt lgkmcnt(0)'); E('s_barrier')
    s.frag_read(48)
    s.s_phase(6, ['K'] * 10 + ['V'] * 6)
    s.stamp(3)
    s.softmax(6)
    pw = lambda n, t, d: f'ds_write_b128 v{vF6}, {vr(d)} offset:{XB + (n&1)*24576 + t*1024}'
    for n in range(2): s.exp_pack(6, n, pw)
    for n in range(2, 4): s.exp_pack(6, n)
    E(f's_mov_b32 s{sY}, {XB}')
    E('s_waitcnt lgkmcnt(0)'); E('s_barrier')
    s.stamp(4)
    s.tg_phase(8, 6, vOUT, [(8, 'V')], lacc=vS, base=0)
    E('s_barrier')
    for n in range(2, 4):
        for t in range(6): E(pw(n, t, vS + (n * 6 + t) * 4))
    E(f's_mov_b32 s{sY}, {XB}')
    E('s_waitcnt lgkmcnt(0)'); E('s_barrier')
    s.tg_phase(8, 6, vOUT, [(2, 'V'), (6, ('OA', 'OB'))], lacc=vS, base=0, c0=False)
    s.stamp(5)
    if cfg.pfB2: pf_partner(48, cfg.pfB2, cfg.pfB2s)
    s.o_write(6, vOUT, vS)
    s.zero(vOUT, 96)
    E(f's_mov_b32 s{sY}, {XB}')
    def head():
        s.o_frag_read()
        def sw():
            return [f's_add_u32 s{sOH}, s{sOH}, {256*896}', f's_cmp_eq_u32 s{sU}, 1', f's_cselect_b32 s{SWO+2}, 0, s{SWO+2}']
        s.o_proj(['OA', 'OB'] * 8, extra_at=10, extra=sw)
        E(f's_add_u32 s{sY}, s{sY}, 24576')
    s.stamp(6)
    s.rolled(2, head, cnt=sU)
    if cfg.pfV2: pf_partner(56, cfg.pfV2, 256 - cfg.pfV2)
    for k in range(7, 11): s.stamp(k)
    s.finish(0)
    return s.L

def reduce_kernel():
    L = []; E = L.append
    E('.p2align 8'); E('.type red_kernel,@function'); E('.globl red_kernel'); E('red_kernel:')
    E('s_cmp_ge_u32 s2, 224'); E('s_cbranch_scc1 L_rend')
    E('s_load_dwordx2 s[4:5], s[0:1], 96'); E('s_load_dwordx2 s[8:9], s[0:1], 80')
    E(f's_mov_b32 s6, {256*PART}'); E('s_mov_b32 s7, 0x20000'); E(f's_mov_b32 s10, {16*48*896*2}'); E('s_mov_b32 s11, 0x20000')
    E('v_lshrrev_b32 v2, 6, v0'); E('v_and_b32 v1, 63, v0'); E('s_nop 0'); E('v_readfirstlane_b32 s12, v2')
    E('s_mov_b32 s13, 0x24924925'); E('s_mul_hi_u32 s14, s2, s13')
    E('s_mul_i32 s15, s14, 7'); E('s_sub_u32 s15, s2, s15')
    E(f's_mul_i32 s16, s14, {8*PART}'); E('s_mul_i32 s17, s15, 6144'); E('s_add_u32 s16, s16, s17')
    E('s_lshl_b32 s17, s12, 10'); E('s_add_u32 s16, s16, s17')
    E('v_lshlrev_b32 v3, 4, v1')
    E('s_waitcnt lgkmcnt(0)')
    for j in range(8):
        E(f'buffer_load_dwordx4 v[{16+4*j}:{19+4*j}], v3, s[4:7], s16 offen')
        if j < 7: E(f's_add_u32 s16, s16, {PART}')
    E('s_cmp_ge_u32 s12, 3'); E('s_cselect_b32 s18, 1, 0'); E('s_mul_i32 s19, s18, 3'); E('s_sub_u32 s19, s12, s19')
    E('s_and_b32 s20, s14, 15'); E('s_lshr_b32 s21, s14, 4')
    E('s_mul_i32 s20, s20, 48'); E('s_lshl_b32 s19, s19, 4'); E('s_add_u32 s20, s20, s19'); E('s_mul_i32 s20, s20, 1792')
    E('s_mul_i32 s21, s21, 896'); E('s_add_u32 s20, s20, s21'); E('s_lshl_b32 s21, s15, 7'); E('s_add_u32 s20, s20, s21')
    E('s_lshl_b32 s21, s18, 6'); E('s_add_u32 s20, s20, s21')
    E('v_and_b32 v4, 15, v1'); E('v_mul_u32_u24 v4, 1792, v4'); E('v_lshrrev_b32 v5, 4, v1'); E('v_lshl_add_u32 v4, v5, 3, v4')
    E('s_mov_b32 s22, 0xffff0000')
    for j in range(8):
        E(f's_waitcnt vmcnt({7-j})')
        for r in range(4):
            src = 16 + 4 * j + r
            if j == 0:
                E(f'v_lshlrev_b32 v{8+2*r}, 16, v{src}'); E(f'v_and_b32 v{9+2*r}, s22, v{src}')
            else:
                E(f'v_lshlrev_b32 v6, 16, v{src}'); E(f'v_and_b32 v7, s22, v{src}')
                E(f'v_add_f32 v{8+2*r}, v{8+2*r}, v6'); E(f'v_add_f32 v{9+2*r}, v{9+2*r}, v7')
    for r in range(4): E(f'v_cvt_pk_bf16_f32 v{16+r}, v{8+2*r}, v{9+2*r}')
    E('buffer_store_dwordx2 v[16:17], v4, s[8:11], s20 offen')
    E('buffer_store_dwordx2 v[18:19], v4, s[8:11], s20 offen offset:32')
    E('L_rend:'); E('s_endpgm')
    return L

def kd(name, nv, ao):
    return ['.p2align 6', f'.amdhsa_kernel {name}', f'  .amdhsa_next_free_vgpr {nv}', '  .amdhsa_next_free_sgpr 102', f'  .amdhsa_accum_offset {ao}',
            '  .amdhsa_group_segment_fixed_size 0', '  .amdhsa_kernarg_size 104', '  .amdhsa_user_sgpr_count 2',
            '  .amdhsa_user_sgpr_kernarg_segment_ptr 1', '  .amdhsa_system_sgpr_workgroup_id_x 1', '.end_amdhsa_kernel']

def build(fname):
    hdr = [l for l in open('cdna_kernels/' + NAME + '.s.ref').read().split('\n') if l.startswith(';') and '@launch' not in l and 'Override' not in l and 'grid=ceil' not in l]
    L = hdr[:]
    if cfg.fuse:
        cfg.stpol = 'sc1'
        L.append(f'; @launch grid=(256,1,1) block=(256,1,1) lds={LDS_TOTAL}')
    else:
        L.append(f'; @launch kernel={NAME}_kernel grid=(256,1,1) block=(256,1,1) lds={LDS_TOTAL}')
        L.append('; @launch kernel=red_kernel grid=(224,1,1) block=(384,1,1) lds=0')
    L += ['.amdgcn_target "amdgcn-amd-amdhsa--gfx950"', '.text', f'.globl {NAME}_kernel', '.p2align 8', f'.type {NAME}_kernel,@function', f'{NAME}_kernel:']
    L += ['s_cmp_ge_u32 s2, 256', 's_cbranch_scc1 L_exit', 's_bitcmp1_b32 s2, 3', 's_cbranch_scc0 ' + ('L_exit' if cfg.noA else 'L_pathA')]
    L += path_B()
    if cfg.fuse: L += reduce_tail()
    L += ['L_exit:', 's_endpgm', 'L_pathA:']
    L += path_A()
    if cfg.stamps:
        L += ['L_stamps:', 's_waitcnt lgkmcnt(0)', f's_add_u32 s{SWS}, s{SWS}, 0xc800000', f's_addc_u32 s{SWS+1}, s{SWS+1}, 0',
              's_lshl_b32 s58, s2, 7', 'v_mov_b32 v40, s58', 'v_cmp_eq_u32 vcc, 0, v0', 's_and_saveexec_b64 s[58:59], vcc', 's_cbranch_execz L_exit2']
        for k in range(16):
            L += [f'v_mov_b32 v42, s{sST+2*k}', f'v_mov_b32 v43, s{sST+2*k+1}', f'buffer_store_dwordx2 v[42:43], v40, {srd(SWS)}, 0 offen offset:{8*k}', 's_nop 1']
        L += ['L_exit2:', 's_endpgm']
    if not cfg.fuse: L += reduce_kernel()
    L += ['.section .rodata,"a"'] + kd(NAME + '_kernel', 512, 256) + ([] if cfg.fuse else kd('red_kernel', 48, 48))
    txt = '\n'.join(l if (l.startswith(';') or l.startswith('.') or l.endswith(':') or l.startswith('  ')) else '    ' + l for l in L) + '\n'
    open(fname, 'w').write(txt)

if __name__ == '__main__':
    out = sys.argv[1] if len(sys.argv) > 1 else 'cdna_kernels/' + NAME + '.s'
    for a in sys.argv[2:]:
        k, v = a.split('=')
        val = {'True': True, 'False': False}.get(v, int(v) if v.isdigit() else v)
        setattr(cfg, k, val.replace('+', ' ') if isinstance(val, str) else val)
    build(out)
```

```python
import sys, struct
NAME = 'concat_heads__gqa_block_cached__mha_block_cached__near_ridge'

class Cfg:
    stamps = False
    kvpol = 'nt'
    wpol = ''
    stpol = ''
    rot = True
    fuse = True
    warm = True
    pfK = 64
    pfB2 = 0
    pfB2s = 64
    pfV2 = 0
    pfpol = ''
    dmafirst = True
    fillV = 4
    fillK = 4
    fillpol = 'nt'
    noA = False
    eV2 = 0
    eK2 = 0
    dbgspan = False
    ramp = 2
cfg = Cfg()

NQ = 6; QP = 4224
XB = 0; STAT = 49152; RING = 51200; RSZ = NQ * QP
LDS_TOTAL = RING + 4 * RSZ
PART = 43008
SX, SWQ, SK, SV, SWO, SWS = 4, 8, 12, 16, 20, 24
sJ, sB, sW, sRS, sRE, sRD, sWR, sLC, sY = 28, 29, 30, 31, 32, 33, 34, 35, 36
sPQK, sQH, sT0, sPK, sPV, sPOK, sOH = 37, 38, 39, 40, 41, 42, 43
sX0 = 44
sU, sC, sRQY, sRQK, sROK, sROY, sT1, sT2, sPART, sXM = 47, 48, 49, 50, 51, 52, 53, 54, 55, 56
sST = 60
SPF = 92
SOUT = 96
SDBG = 12
vV, vQ, vOA, vOB, vK, vX = 2, 6, 10, 14, 18, 19
vTB, vTA, vKB, vKA, vLin, vYA = 20, 24, 28, 29, 30, 31
vQW, vStW, vStR, vF3, vF6 = 32, 33, 34, 35, 36
vM, vTmp, vSR = 37, 43, 44
vXR = 60
vPF = 56
vS = 64; vOUT = 160
aFR = 192; aONE = 96

def srd(n): return f's[{n}:{n+3}]'
def vr(b, n=4): return f'v[{b}:{b+n-1}]'
def ar(b, n=4): return f'a[{b}:{b+n-1}]'

class Gen:
    def __init__(s):
        s.L = []; s.q = []; s.nlab = 0; s.pseq = 0; s.cseq = 0; s.nst = 0
    def E(s, t): s.L.append(t)
    def vm(s, t, tag):
        s.L.append(t); s.q.append(tag)
    def need(s, tag):
        idx = max(i for i, t in enumerate(s.q) if t == tag)
        n = len(s.q) - 1 - idx
        assert n <= 63, n
        return f's_waitcnt vmcnt({n})'
    def lab(s, p):
        s.nlab += 1; return f'L_{p}{s.nlab}'
    def stamp(s, k):
        if cfg.stamps:
            s.E(f's_memrealtime s[{sST+2*k}:{sST+2*k+1}]')
    def rolled(s, n, body, cnt=sLC):
        if n == 1:
            body(); return
        texts = []
        keep = s.L
        for it in range(n):
            s.L = []; body(); texts.append(s.L)
        for t in texts[1:]:
            assert t == texts[0], 'loop iterations differ:\n' + '\n'.join(f'{a} | {b}' for a, b in zip(texts[0], t) if a != b)
        s.L = keep
        lb = s.lab('loop')
        s.E(f's_mov_b32 s{cnt}, {n}')
        s.E(f'{lb}:')
        s.L += texts[0]
        s.E(f's_sub_u32 s{cnt}, s{cnt}, 1'); s.E(f's_cmp_lg_u32 s{cnt}, 0'); s.E(f's_cbranch_scc1 {lb}')

    def emit_item(s, it):
        if isinstance(it, str): s.E(it)
        elif it[0] == 'vm': s.vm(it[1], it[2])
        elif it[0] == 'need': s.E(s.need(it[1]))
    def interleave(s, mf, groups, start=0):
        n = len(mf); g = len(groups)
        pos = {}
        for k in range(g):
            p = min(n - 1, start + (k * (n - start)) // max(g, 1))
            pos.setdefault(p, []).append(k)
        for i, m in enumerate(mf):
            s.E(m)
            for k in pos.get(i, []):
                for it in groups[k]: s.emit_item(it)

    def adv(s, reg, step):
        return [f's_add_u32 s{reg}, s{reg}, {step}', f's_cmp_ge_u32 s{reg}, s{sRE}', f's_cselect_b32 s{reg}, s{sRS}, s{reg}']

    def prod(s, kind):
        tag = ('q', s.pseq); s.pseq += 1
        G = [[], [], [], []]
        if kind == 'K':
            for p in range(4):
                G[p] += [f's_add_u32 m0, s{sWR}, {p*32}', 's_nop 0',
                         ('vm', f'buffer_load_dwordx4 v{vK}, {srd(SK)}, s{sPK} offen offset:{p*1024} {cfg.kvpol} lds', tag)]
            G[3] += [f's_add_u32 s{sPK}, s{sPK}, 0x1000', f's_bitcmp1_b32 s{sPK}, 14', f's_cselect_b32 s{sT1}, 0xc000, 0', f's_add_u32 s{sPK}, s{sPK}, s{sT1}']
        else:
            if kind == 'V': vo, sr, so, pol, pre = vV, SV, sPV, cfg.kvpol, 's_nop 0'
            elif kind == 'Q': vo, sr, so, pol, pre = vQ, SWQ, sT0, cfg.wpol, f's_add_u32 s{sT0}, s{sPQK}, s{sQH}'
            elif kind == 'OA': vo, sr, so, pol, pre = vOA, SWO, sT0, cfg.wpol, f's_add_u32 s{sT0}, s{sPOK}, s{sOH}'
            elif kind == 'OB': vo, sr, so, pol, pre = vOB, SWO, sT0, cfg.wpol, f's_add_u32 s{sT0}, s{sPOK}, s{sOH}'
            G[0] += [f's_mov_b32 m0, s{sWR}', pre]
            for p in range(4):
                G[p] += [('vm', f'buffer_load_dwordx4 v{vo+p}, {srd(sr)}, s{so} offen offset:{p*1024} {pol} lds', tag)]
            if kind == 'V': G[3] += [f's_add_u32 s{sPV}, s{sPV}, 0x4000']
            elif kind == 'Q': G[3] += [f's_add_u32 s{sPQK}, s{sPQK}, 0x40000', f's_cmp_ge_u32 s{sPQK}, {14*0x40000}', f's_cselect_b32 s{sPQK}, 0, s{sPQK}']
            elif kind == 'OB': G[3] += [f's_add_u32 s{sPOK}, s{sPOK}, 28672', f's_cmp_ge_u32 s{sPOK}, {8*28672}', f's_cselect_b32 s{sPOK}, 0, s{sPOK}']
        G[3] += s.adv(sWR, QP)
        return G
    def prod_x(s):
        g = []
        for t in range(3):
            for m in range(4):
                g += [f's_add_u32 m0, s{sXM}, {XB + (12*m + 2*t)*1024 - m*256}', 's_nop 0',
                      ('vm', f'buffer_load_dwordx4 v{vX}, {srd(SX)}, s{sX0+t} offen offset:{m*256} {cfg.wpol} lds', 'x')]
        return g

    def tg_bufs(s, T, par, ylds, base):
        sz = 16 + (4 * T if ylds else 0)
        a = base + par * sz
        return a, a + 16
    def tg_fetch(s, T, par, ylds, ywrap, base):
        a, y = s.tg_bufs(T, par, ylds, base)
        tag = ('q', s.cseq); s.cseq += 1
        g0 = [('need', tag)] + [f'v_add_u32 v{vTA+d}, s{sRD}, v{vTB+d}' for d in range(4)]
        xm = bool(ywrap)
        if ylds: g0 += [f'v_add_u32 v{vYA}, s{sY}, v{(vXR+par) if xm else vLin}']
        rd = []
        for d in range(4):
            rd.append([f'ds_read_b64_tr_b16 {ar(a+4*d,2)}, v{vTA+d}', f'ds_read_b64_tr_b16 {ar(a+4*d+2,2)}, v{vTA+d} offset:2048'])
        yr = []
        if ylds:
            yr = [f'ds_read_b128 {ar(y+4*t)}, v{vYA} offset:{t*(2048 if xm else 1024)}' for t in range(T)]
        tail = s.adv(sRD, QP)
        if ylds and not xm:
            tail += [f's_add_u32 s{sY}, s{sY}, {T*1024}']
        if xm and par == 1:
            tail += [f's_add_u32 s{sY}, s{sY}, 6144', f's_cmp_ge_u32 s{sY}, {XB+ywrap}', f's_cselect_b32 s{sY}, {XB}, s{sY}']
        G = [g0 + rd[0]]
        if ylds:
            h = (T + 1) // 2
            G += [yr[:h], rd[1], yr[h:], rd[2], rd[3] + tail]
        else:
            G += [rd[1], rd[2], rd[3] + tail]
        return G
    def tg_prime(s, T, par, ylds, ywrap, base):
        for g in s.tg_fetch(T, par, ylds, ywrap, base):
            for it in g: s.emit_item(it)
    def tg_step(s, T, par, acc, pref, prodkind, ylds=True, ywrap=0, ystat=None, lacc=None, base=aFR, extra=None, c0=False):
        a, y = s.tg_bufs(T, par, ylds, base)
        if not ylds: y = ystat
        s.E('s_waitcnt lgkmcnt(0)')
        mf = []
        for d in range(4):
            for t in range(T):
                c = vr(acc + (d * T + t) * 4)
                mf.append(f'v_mfma_f32_16x16x32_bf16 {c}, {ar(a+4*d)}, {ar(y+4*t)}, {0 if c0 else c}')
        if lacc is not None:
            for t in range(T):
                c = vr(lacc + 4 * t)
                mf.append(f'v_mfma_f32_16x16x32_bf16 {c}, {ar(aONE)}, {ar(y+4*t)}, {0 if c0 else c}')
        kinds = prodkind if isinstance(prodkind, list) else ([prodkind] if prodkind else [])
        F = s.tg_fetch(T, par ^ 1, ylds, ywrap, base) if pref else []
        P = [extra] if extra else []
        for k in kinds: P += s.prod(k)
        first = cfg.dmafirst and lacc is not None
        s.interleave(mf, (P + F) if first else (F + P))
    def tg_phase(s, n, T, acc, kinds, ywrap=0, lacc=None, base=aFR, pre=None, c0=True, mid=None):
        s.tg_prime(T, 0, True, ywrap, base)
        seq = []
        for cnt, kd in kinds:
            k0, k1 = (kd if isinstance(kd, tuple) else (kd, kd))
            assert cnt % 2 == 0
            seq += [(k0, k1)] * (cnt // 2)
        pre = pre or []
        assert len(pre) % 2 == 0 and len(pre) + 2 * len(seq) == n
        pairs = [(pre[i], pre[i+1]) for i in range(0, len(pre), 2)] + seq
        def pair(k0, k1, z=False, last=False):
            s.tg_step(T, 0, acc, True, k0, True, ywrap, None, lacc, base, c0=z)
            s.tg_step(T, 1, acc, not last, k1, True, ywrap, None, lacc, base)
        i = 0; np_ = len(pairs)
        while i < np_:
            if mid and i == mid[0]:
                for t in mid[1]: s.E(t)
            if (i == 0 and c0) or i == np_ - 1 or i < len(pre) // 2:
                pair(*pairs[i], z=(i == 0 and c0), last=(i == np_ - 1)); i += 1; continue
            j = i
            while j < np_ - 1 and pairs[j] == pairs[i] and not (mid and j == mid[0] and j != i): j += 1
            s.rolled(j - i, lambda: pair(*pairs[i]))
            i = j
    def fill(s, kind, n):
        if not n: return
        if kind == 'V':
            s.E(f's_mov_b32 s{sT2}, s{sPV}')
            for k in range(n):
                for p in range(4): s.E(f'buffer_load_dwordx4 {vr(vPF)}, v{vV+p}, {srd(SV)}, s{sT2} offen offset:{p*1024} {cfg.fillpol}')
                s.E(f's_add_u32 s{sT2}, s{sT2}, 0x4000')
        else:
            s.E(f's_mov_b32 s{sT2}, s{sPK}')
            for k in range(n):
                for p in range(4): s.E(f'buffer_load_dwordx4 {vr(vPF)}, v{vK}, {srd(SK)}, s{sT2} offen offset:{p*1024} {cfg.fillpol}')
                s.E(f's_add_u32 s{sT2}, s{sT2}, {0x1000 if k % 4 != 3 else 0xd000}')
    def zero(s, base, n):
        for r in range(base, base + n): s.E(f'v_mov_b32 v{r}, 0')

    def k_fetch(s, par):
        a = aFR + par * 32
        s.cseq += 2
        tag = ('q', s.cseq - 1)
        g0 = [('need', tag), f'v_add_u32 v{vKA}, s{sRD}, v{vKB}']
        rd = [f'ds_read_b128 {ar(a+4*k)}, v{vKA} offset:{k*64}' for k in range(8)]
        return [g0 + rd[0:2], rd[2:4], rd[4:6], rd[6:8] + s.adv(sRD, 2 * QP)]
    def s_phase(s, T, kinds):
        for g in s.k_fetch(0):
            for it in g: s.emit_item(it)
        for tau in range(8):
            par = tau & 1
            a = aFR + par * 32
            s.E('s_waitcnt lgkmcnt(0)')
            mf = []
            for k in range(8):
                for t in range(T):
                    c = vr(vS + (tau * T + t) * 4)
                    qf = ((t // 3) * 24 + k * 3 + (t % 3)) * 4
                    mf.append(f'v_mfma_f32_16x16x32_bf16 {c}, {ar(a+4*k)}, {ar(qf)}, {c if k else 0}')
            F = s.k_fetch(par ^ 1) if tau < 7 else []
            P = s.prod(kinds[2 * tau]) + s.prod(kinds[2 * tau + 1])
            G = (P + F) if cfg.dmafirst else (F + P)
            if tau > 0: G[-1] = G[-1] + s.tile_max(T, tau - 1)
            s.interleave(mf, G)
    def tile_max(s, T, tau):
        S = lambda t, r: vS + (tau * T + t) * 4 + r
        o = []
        if tau == 0:
            o += [f'v_max3_f32 v{vM+t}, v{S(t,0)}, v{S(t,1)}, v{S(t,2)}' for t in range(T)]
            o += [f'v_max_f32 v{vM+t}, v{vM+t}, v{S(t,3)}' for t in range(T)]
        else:
            o += [f'v_max3_f32 v{vM+t}, v{vM+t}, v{S(t,0)}, v{S(t,1)}' for t in range(T)]
            o += [f'v_max3_f32 v{vM+t}, v{vM+t}, v{S(t,2)}, v{S(t,3)}' for t in range(T)]
        return o
    def softmax(s, T):
        E = s.E
        E('s_nop 7'); E('s_nop 1')
        for x in s.tile_max(T, 7): E(x)
        for op in ('v_permlane32_swap_b32', 'v_permlane16_swap_b32'):
            for t in range(T): E(f'v_mov_b32 v{vSR+t}, v{vM+t}')
            E('s_nop 1')
            for t in range(T): E(f'{op} v{vM+t}, v{vSR+t}')
            E('s_nop 1')
            for t in range(T): E(f'v_max_f32 v{vM+t}, v{vM+t}, v{vSR+t}')
        for t in range(T): E(f'ds_write_b32 v{vStW}, v{vM+t} offset:{t*256}')
        E('s_waitcnt lgkmcnt(0)'); E('s_barrier')
        for t0 in range(0, T, 3):
            for t in range(t0, t0 + 3): E(f'ds_read_b128 {vr(vSR+4*(t-t0))}, v{vStR} offset:{t*256}')
            E('s_waitcnt lgkmcnt(0)')
            for t in range(t0, t0 + 3):
                b = vSR + 4 * (t - t0)
                E(f'v_max3_f32 v{vM+t}, v{b}, v{b+1}, v{b+2}')
            for t in range(t0, t0 + 3):
                b = vSR + 4 * (t - t0)
                E(f'v_max_f32 v{vM+t}, v{vM+t}, v{b+3}')
            for t in range(t0, t0 + 3): E(f'v_mul_f32 v{vM+t}, s{sC}, v{vM+t}')
        E(f'v_mov_b32 v{vTmp}, 0x3f803f80')
        for r in range(4): E(f'v_accvgpr_write_b32 a{aONE+r}, v{vTmp}')
    def exp_pack(s, T, n, wr=None):
        E = s.E
        S = lambda tau, t, r: vS + (tau * T + t) * 4 + r
        for t in range(T):
            regs = [S(2 * n, t, r) for r in range(4)] + [S(2 * n + 1, t, r) for r in range(4)]
            for r in regs: E(f'v_fma_f32 v{r}, v{r}, s{sC}, -v{vM+t}')
            for r in regs: E(f'v_exp_f32 v{r}, v{r}')
            E('s_nop 0')
            d = vS + (n * T + t) * 4
            for k in range(4): E(f'v_cvt_pk_bf16_f32 v{d+k}, v{regs[2*k]}, v{regs[2*k+1]}')
            if wr: E(wr(n, t, d))
    def q_pack(s, acc, dst):
        for d in range(4):
            for t in range(3):
                a = acc + (d * 3 + t) * 4; o = dst + (d * 3 + t) * 2
                s.E(f'v_cvt_pk_bf16_f32 v{o}, v{a}, v{a+1}'); s.E(f'v_cvt_pk_bf16_f32 v{o+1}, v{a+2}, v{a+3}')
    def q_write(s, src, hd):
        for d in range(4):
            for t in range(3):
                o = src + (d * 3 + t) * 2
                s.E(f'ds_write_b64 v{vQW}, {vr(o,2)} offset:{XB + hd*24576 + (d>>1)*3072 + t*1024 + (d&1)*512}')
    def frag_read(s, n, off=0):
        for f in range(n):
            s.E(f'ds_read_b128 {ar(4*f)}, v{vLin} offset:{XB + off + f*1024}')
            if f % 12 == 11 and f != n - 1: s.E('s_waitcnt lgkmcnt(4)')
    def o_write(s, T, acc, lacc):
        E = s.E
        E('s_nop 7'); E('s_nop 1')
        for t in range(T): E(f'v_rcp_f32 v{vM+t}, v{lacc+4*t}')
        E('s_nop 0')
        for kk in range(2):
            for t in range(T):
                a0 = acc + ((2 * kk) * T + t) * 4; a1 = acc + ((2 * kk + 1) * T + t) * 4
                for r in range(4): E(f'v_mul_f32 v{a0+r}, v{a0+r}, v{vM+t}')
                for r in range(4): E(f'v_mul_f32 v{a1+r}, v{a1+r}, v{vM+t}')
                E(f'v_cvt_pk_bf16_f32 v{a0}, v{a0}, v{a0+1}'); E(f'v_cvt_pk_bf16_f32 v{a0+1}, v{a0+2}, v{a0+3}')
                E(f'v_cvt_pk_bf16_f32 v{a0+2}, v{a1}, v{a1+1}'); E(f'v_cvt_pk_bf16_f32 v{a0+3}, v{a1+2}, v{a1+3}')
        E('s_barrier')
        for kk in range(2):
            for t in range(T):
                a0 = acc + ((2 * kk) * T + t) * 4
                E(f'ds_write_b128 v{vF6}, {vr(a0)} offset:{XB + (t//3)*24576 + kk*3072 + (t%3)*1024}')
        E('s_waitcnt lgkmcnt(0)'); E('s_barrier')
    def o_frag_read(s, hdoff_sgpr=None):
        E = s.E
        E(f's_mov_b32 s{sT1}, s{sROY}')
        for jj in range(8):
            E(f's_add_u32 s{sT2}, s{sT1}, s{sY}')
            E(f'v_add_u32 v{vYA}, s{sT2}, v{vLin}')
            for t in range(3): E(f'ds_read_b128 {ar((jj*3+t)*4)}, v{vYA} offset:{t*1024}')
            E(f's_add_u32 s{sT1}, s{sT1}, 3072'); E(f's_cmp_ge_u32 s{sT1}, 24576'); E(f's_cselect_b32 s{sT1}, 0, s{sT1}')
            if jj % 4 == 3: E('s_waitcnt lgkmcnt(0)')
    def o_proj(s, kinds, extra_at=None, extra=None):
        s.tg_prime(3, 0, False, 0, aFR)
        for st in range(16):
            ex = extra() if st == extra_at else None
            s.tg_step(3, st & 1, vOUT + (st & 1) * 48, st < 15, kinds[st], False, 0, (st >> 1) * 12, None, aFR, ex)
    def store_partial(s):
        E = s.E
        E('s_nop 7'); E('s_nop 1')
        lb = s.lab('nost')
        for sg in range(2):
            if sg == 1:
                E(f's_cmp_eq_u32 s{sW}, 3'); E(f's_cbranch_scc1 {lb}')
            for u in range(2):
                E(f's_add_u32 s{sT0}, s{sPART}, {sg*24576 + u*3072}')
                for t in range(3):
                    a0 = vOUT + ((sg * 4 + 2 * u) * 3 + t) * 4; a1 = a0 + 12
                    E(f'v_cvt_pk_bf16_f32 v{a0}, v{a0}, v{a0+1}'); E(f'v_cvt_pk_bf16_f32 v{a0+1}, v{a0+2}, v{a0+3}')
                    E(f'v_cvt_pk_bf16_f32 v{a0+2}, v{a1}, v{a1+1}'); E(f'v_cvt_pk_bf16_f32 v{a0+3}, v{a1+2}, v{a1+3}')
                    E(f'buffer_store_dwordx4 {vr(a0)}, v{vF6}, {srd(SWS)}, s{sT0} offen offset:{t*1024} {cfg.stpol}')
        E(f'{lb}:')

    def setup_common(s):
        E = s.E
        E('v_and_b32 v1, 63, v0'); E('v_lshrrev_b32 v40, 6, v0'); E('s_nop 0')
        E(f'v_readfirstlane_b32 s{sW}, v40')
        E(f's_and_b32 s{sJ}, s2, 7'); E(f's_lshr_b32 s{sB}, s2, 4')
        E('v_and_b32 v41, 15, v1')
        E(f'v_lshlrev_b32 v{vLin}, 4, v1')
        E('v_lshrrev_b32 v42, 4, v1')
        E('v_lshrrev_b32 v43, 3, v1')
        E('v_and_b32 v44, 7, v1')
        E('v_and_b32 v45, 6, v43'); E('v_xor_b32 v44, v44, v45'); E('v_lshlrev_b32 v44, 4, v44')
        E('v_lshl_add_u32 v44, v40, 7, v44')
        E('v_and_b32 v45, 1, v40'); E('v_lshl_add_u32 v46, v45, 3, v43'); E(f'v_mul_u32_u24 v{vX}, 896, v46')
        E('v_lshrrev_b32 v46, 1, v46'); E('v_and_b32 v47, 7, v1'); E('v_xor_b32 v46, v46, v47'); E(f'v_lshl_add_u32 v{vX}, v46, 4, v{vX}')
        E('v_lshrrev_b32 v46, 1, v40'); E(f'v_lshl_add_u32 v{vX}, v46, 7, v{vX}')
        E('v_lshrrev_b32 v45, 2, v43'); E('v_lshlrev_b32 v45, 3, v45'); E('v_and_b32 v46, 3, v43'); E('v_add_u32 v45, v45, v46')
        E(f'v_lshl_add_u32 v{vQ}, v45, 13, v44')
        for p in range(1, 4): E(f'v_add_u32 v{vQ+p}, {(16*(p&1)+4*(p>>1))*8192 - p*1024}, v{vQ}')
        E(f's_mul_i32 s{sRS}, s{sW}, {RSZ}'); E(f's_add_u32 s{sRS}, s{sRS}, {RING}'); E(f's_add_u32 s{sRE}, s{sRS}, {RSZ}')
        E(f's_mov_b32 s{sRD}, s{sRS}'); E(f's_mov_b32 s{sWR}, s{sRS}')
        E(f's_lshr_b32 s{sXM}, s{sW}, 1'); E(f's_mul_i32 s{sXM}, s{sXM}, 6'); E(f's_and_b32 s{sT0}, s{sW}, 1'); E(f's_add_u32 s{sXM}, s{sXM}, s{sT0}'); E(f's_lshl_b32 s{sXM}, s{sXM}, 10')
        E(f's_mul_i32 s{sX0}, s{sB}, 43008'); E(f's_add_u32 s{sX0+1}, s{sX0}, 14336'); E(f's_add_u32 s{sX0+2}, s{sX0}, 28672')
        if cfg.rot:
            E(f's_mul_i32 s{sT0}, s{sB}, 7'); E(f's_lshr_b32 s{sT0}, s{sT0}, 4')
            E(f's_lshr_b32 s{sT1}, s{sB}, 1')
        else:
            E(f's_mov_b32 s{sT0}, 0'); E(f's_mov_b32 s{sT1}, 0')
        E(f's_mul_i32 s{sRQY}, s{sT0}, 6144'); E(f's_lshl_b32 s{sRQK}, s{sT0}, 19')
        E(f's_mul_i32 s{sROK}, s{sT1}, 28672'); E(f's_mul_i32 s{sROY}, s{sT1}, 3072')
        E(f's_mov_b32 s{sPQK}, s{sRQK}'); E(f's_mov_b32 s{sPOK}, s{sROK}')
        E(f's_lshl_b32 s{sQH}, s{sJ}, 10'); E(f's_mul_i32 s{sOH}, s{sJ}, {512*896}')
    def setup_late(s):
        E = s.E
        E(f'v_lshl_add_u32 v{vV}, v43, 9, v44')
        for p in range(1, 4): E(f'v_add_u32 v{vV+p}, {p*3072}, v{vV}')
        E(f'v_mul_u32_u24 v{vOA}, 896, v43'); E(f'v_add_u32 v{vOA}, v{vOA}, v44')
        for p in range(1, 4): E(f'v_add_u32 v{vOA+p}, {p*(8*896-1024)}, v{vOA}')
        E(f's_cmp_eq_u32 s{sW}, 3'); E(f's_cselect_b32 s{sT0}, 0x40000000, 512')
        for p in range(4): E(f'v_add_u32 v{vOB+p}, s{sT0}, v{vOA+p}')
        E('v_lshrrev_b32 v45, 5, v1'); E('v_and_b32 v46, 31, v1'); E('v_xor_b32 v46, v46, v45'); E('v_lshlrev_b32 v46, 4, v46')
        E('v_lshl_add_u32 v46, v45, 9, v46'); E(f'v_lshl_add_u32 v{vK}, v40, 14, v46')
        E('v_lshrrev_b32 v45, 2, v41')
        E('v_and_b32 v46, 1, v42'); E('v_lshl_add_u32 v45, v46, 2, v45')
        E('v_lshrrev_b32 v46, 1, v42'); E('v_lshlrev_b32 v46, 10, v46'); E('v_lshl_add_u32 v46, v45, 7, v46')
        E('v_and_b32 v47, 3, v41'); E('v_lshl_add_u32 v46, v47, 3, v46')
        E('v_lshrrev_b32 v45, 1, v45')
        for d in range(4):
            E(f'v_xor_b32 v47, {d}, v45'); E(f'v_lshl_add_u32 v{vTB+d}, v47, 5, v46')
        E('v_lshrrev_b32 v45, 1, v41'); E(f'v_mul_u32_u24 v{vKB}, 1056, v45'); E('v_and_b32 v45, 1, v41')
        E(f'v_lshl_add_u32 v{vKB}, v45, 9, v{vKB}'); E('v_xor_b32 v45, v45, v42'); E(f'v_lshl_add_u32 v{vKB}, v45, 4, v{vKB}')
        E('v_lshrrev_b32 v45, 3, v41'); E('v_lshlrev_b32 v45, 10, v45'); E('v_and_b32 v46, 7, v41'); E('v_lshl_add_u32 v45, v46, 7, v45')
        E('v_lshrrev_b32 v46, 1, v41'); E('v_xor_b32 v46, v46, v42'); E(f'v_lshl_add_u32 v{vXR}, v46, 4, v45'); E(f'v_xor_b32 v{vXR+1}, 64, v{vXR}')
        E(f'v_mul_u32_u24 v45, 3072, v40'); E(f'v_add_u32 v{vF3}, v45, v{vLin}'); E(f'v_add_u32 v{vF6}, v45, v{vF3}')
        E('v_lshlrev_b32 v45, 1, v45'); E('v_lshrrev_b32 v46, 1, v42'); E('v_lshl_add_u32 v45, v46, 8, v45')
        E('v_lshl_add_u32 v45, v41, 4, v45'); E('v_and_b32 v46, 1, v42'); E(f'v_lshl_add_u32 v{vQW}, v46, 3, v45')
        E(f'v_lshlrev_b32 v45, 4, v41'); E(f'v_add_u32 v{vStR}, {STAT}, v45'); E(f'v_lshl_add_u32 v{vStW}, v40, 2, v{vStR}')
        c = struct.unpack('<I', struct.pack('<f', 1.4426950408889634 / 16.0))[0]
        E(f's_mov_b32 s{sC}, {c:#x}')
    def load_ptrs(s, br):
        E = s.E
        o = 40 * br
        E(f's_load_dwordx2 s[{SX}:{SX+1}], s[0:1], {o}')
        E(f's_load_dwordx2 s[{SWQ}:{SWQ+1}], s[0:1], {o+24}')
        E(f's_load_dwordx2 s[{SK}:{SK+1}], s[0:1], {o+8}')
        E(f's_load_dwordx2 s[{SV}:{SV+1}], s[0:1], {o+16}')
        E(f's_load_dwordx2 s[{SWO}:{SWO+1}], s[0:1], {o+32}')
        E(f's_load_dwordx2 s[{SWS}:{SWS+1}], s[0:1], 96')
        kv = 16 * (16 if br else 8) * 262144
        for r, n in ((SX, 16 * 43008), (SWQ, 448 * 8192), (SK, kv), (SV, kv), (SWO, 4096 * 896), (SWS, 256 * PART)):
            E(f's_mov_b32 s{r+2}, {n}'); E(f's_mov_b32 s{r+3}, 0x20000')
    def emit_groups(s, G):
        for g in G:
            for it in g: s.emit_item(it)
    def prefetch(s, kb, step=1024, sreg=sT2):
        n = kb
        for k in range(n):
            s.E(f'buffer_load_dwordx4 {vr(vPF)}, v{vLin}, {srd(SPF)}, s{sreg} offen {cfg.pfpol}')
            s.E(f's_add_u32 s{sreg}, s{sreg}, s{sT1}' if step is None else f's_add_u32 s{sreg}, s{sreg}, {step}')
    def pf_loop(s, n, step):
        if n == 0: return
        assert n % 4 == 0
        def body():
            s.prefetch(4, step)
            s.E('s_waitcnt vmcnt(24)')
        s.rolled(n // 4, body)
    def finish(s, br):
        E = s.E
        s.store_partial()
        assert cfg.fuse
        E(f's_mov_b32 s{sU}, {br}')
        E('s_branch L_reduce')

def reduce_tail():
    L = []; E = L.append
    def st(k):
        if cfg.stamps: E(f's_memrealtime s[{sST+2*k}:{sST+2*k+1}]')
    E('L_reduce:')
    E(f's_load_dwordx2 s[{SDBG}:{SDBG+1}], s[0:1], 88'); E(f's_load_dwordx2 s[{SOUT}:{SOUT+1}], s[0:1], 80')
    E(f's_lshl_b32 s{sT0}, s{sU}, 4'); E(f's_add_u32 s{sT0}, s{sT0}, s{sB}')
    E(f's_lshl_b32 s{sT1}, s{sT0}, 3'); E(f'v_mov_b32 v40, s{sT1}'); E('v_mov_b32 v41, 1')
    E(f's_mul_i32 s{sPART}, s{sT0}, {8*PART}')
    E(f's_lshl_b32 s{sT2}, s{sJ}, 2'); E(f's_add_u32 s{sT2}, s{sT2}, s{sW}')
    E('v_and_b32 v42, 15, v1'); E('v_mul_u32_u24 v42, 1792, v42'); E('v_lshrrev_b32 v43, 4, v1'); E('v_lshl_add_u32 v42, v43, 3, v42')
    E(f's_mul_i32 s{sY}, s{sB}, {48*1792}'); E(f's_mul_i32 s{sT1}, s{sU}, 896'); E(f's_add_u32 s{sY}, s{sY}, s{sT1}')
    E('s_waitcnt lgkmcnt(0)')
    E(f's_mov_b32 s{SDBG+2}, 256'); E(f's_mov_b32 s{SDBG+3}, 0x20000'); E(f's_mov_b32 s{SOUT+2}, {16*48*896*2}'); E(f's_mov_b32 s{SOUT+3}, 0x20000')
    E('s_waitcnt vmcnt(0)')
    E('s_barrier')
    st(11)
    E(f's_cmp_lg_u32 s{sW}, 0'); E('s_cbranch_scc1 L_rwait')
    E('s_mov_b64 exec, 1')
    E(f'buffer_atomic_add v41, v40, {srd(SDBG)}, 0 offen sc0 sc1')
    E('s_waitcnt vmcnt(0)')
    st(12)
    E(f'v_readfirstlane_b32 s{sT1}, v41')
    E(f's_cmp_ge_u32 s{sT1}, 7'); E('s_cbranch_scc1 L_rgo')
    E(f's_mov_b32 s{sLC}, 0x100000')
    E('L_poll:')
    E(f's_sub_u32 s{sLC}, s{sLC}, 1'); E('s_cbranch_scc1 L_rgo')
    E('s_sleep 2')
    E(f'buffer_load_dword v41, v40, {srd(SDBG)}, 0 offen sc1')
    E('s_waitcnt vmcnt(0)')
    E(f'v_readfirstlane_b32 s{sT1}, v41')
    E(f's_cmp_lt_u32 s{sT1}, 8'); E('s_cbranch_scc1 L_poll')
    E('L_rgo:')
    E('s_mov_b64 exec, -1')
    E('L_rwait:')
    E('s_barrier')
    st(13)
    def loads(base, freg):
        E(f's_lshl_b32 s{sT0}, s{freg}, 10'); E(f's_add_u32 s{sT0}, s{sT0}, s{sPART}')
        for j in range(8):
            E(f'buffer_load_dwordx4 {vr(base+4*j)}, v{vLin}, {srd(SWS)}, s{sT0} offen sc1')
            if j < 7: E(f's_add_u32 s{sT0}, s{sT0}, {PART}')
    def task(base, freg, extra):
        E(f's_mul_i32 s{sT0}, s{freg}, 43'); E(f's_lshr_b32 s{sT0}, s{sT0}, 8')
        E(f's_mul_i32 s{sT1}, s{sT0}, 6'); E(f's_sub_u32 s{sT1}, s{freg}, s{sT1}')
        E(f's_lshl_b32 s{sT0}, s{sT0}, 7'); E(f's_add_u32 s{sT0}, s{sT0}, s{sY}')
        E(f's_cmp_ge_u32 s{sT1}, 3'); E(f's_cselect_b32 s{sLC}, {64 - 3*16*1792}, 0'); E(f's_add_u32 s{sT0}, s{sT0}, s{sLC}')
        E(f's_mul_i32 s{sT1}, s{sT1}, {16*1792}'); E(f's_add_u32 s{sT0}, s{sT0}, s{sT1}')
        E(f's_mov_b32 s{sLC}, 0xffff0000')
        for j in range(8):
            E(f's_waitcnt vmcnt({7-j+extra})')
            for r in range(4):
                src = base + 4 * j + r
                if j == 0:
                    E(f'v_lshlrev_b32 v{48+2*r}, 16, v{src}'); E(f'v_and_b32 v{49+2*r}, s{sLC}, v{src}')
                else:
                    E(f'v_lshlrev_b32 v46, 16, v{src}'); E(f'v_and_b32 v47, s{sLC}, v{src}')
                    E(f'v_add_f32 v{48+2*r}, v{48+2*r}, v46'); E(f'v_add_f32 v{49+2*r}, v{49+2*r}, v47')
        for r in range(4): E(f'v_cvt_pk_bf16_f32 v{base+r}, v{48+2*r}, v{49+2*r}')
        E(f'buffer_store_dwordx2 {vr(base,2)}, v42, {srd(SOUT)}, s{sT0} offen')
        E(f'buffer_store_dwordx2 {vr(base+2,2)}, v42, {srd(SOUT)}, s{sT0} offen offset:32')
    loads(64, sT2)
    E(f's_cmp_ge_u32 s{sT2}, 10'); E('s_cbranch_scc1 L_r1')
    E(f's_add_u32 s{sRD}, s{sT2}, 32')
    loads(96, sRD)
    task(96, sRD, 0)
    E('s_waitcnt vmcnt(2)')
    E('L_r1:')
    task(64, sT2, 0)
    st(14)
    if cfg.stamps:
        E('s_waitcnt vmcnt(0)')
        E(f's_memrealtime s[{sST+30}:{sST+31}]')
        E('s_branch L_stamps')
    else:
        E('s_endpgm')
    return L

def ramp_pre(kind_list):
    extra = NQ - cfg.ramp
    n = extra + (extra & 1)
    return [([kind_list, kind_list] if i < extra else [kind_list]) for i in range(n)]

def path_B():
    s = Gen(); E = s.E; s.nlab = 1000
    s.stamp(0)
    s.load_ptrs(1)
    s.setup_common()
    E(f's_lshl_b32 s{sPK}, s{sB}, 3'); E(f's_add_u32 s{sPK}, s{sPK}, s{sJ}')
    E(f's_add_u32 s{sPART}, s{sPK}, 128'); E(f's_mul_i32 s{sPART}, s{sPART}, {PART}')
    E(f's_lshl_b32 s{sPK}, s{sPK}, 19'); E(f's_mov_b32 s{sPV}, s{sPK}')
    E('s_waitcnt lgkmcnt(0)')
    s.emit_groups([s.prod_x()])
    for _ in range(cfg.ramp): s.emit_groups(s.prod('Q'))
    s.setup_late()
    s.zero(vOUT, 96)
    def qproj(first):
        E(f's_add_u32 s{sY}, s{sRQY}, {XB}')
        E(s.need('x')); E('s_barrier')
        if first:
            s.stamp(1)
            pre = ramp_pre('Q')
            s.tg_phase(14, 3, vS, [(8 - len(pre), 'Q'), (6, 'K')], ywrap=43008, pre=pre)
        else:
            s.tg_phase(14, 3, vS, [(8, 'Q'), (6, 'K')], ywrap=43008)
        s.stamp(2 if first else 7)
    def rest():
        E(f's_add_u32 s{sQH}, s{sQH}, 512')
        E('s_nop 7'); E('s_nop 1')
        s.q_pack(vS, vS + 48)
        E('s_barrier')
        s.q_write(vS + 48, 0)
        E('s_waitcnt lgkmcnt(0)'); E('s_barrier')
        s.frag_read(24)
        s.s_phase(3, ['K'] * 10 + ['V'] * 6)
        s.stamp(8)
        s.fill('V', cfg.fillV)
        s.softmax(3)
        for n in range(4):
            s.exp_pack(3, n, lambda n, t, d: f'ds_write_b128 v{vF3}, {vr(d)} offset:{XB + n*12288 + t*1024}')
        E(f's_mov_b32 s{sY}, {XB}')
        E('s_waitcnt lgkmcnt(0)'); E('s_barrier')
        s.stamp(11)
        npre = 0
        s.tg_phase(16, 3, vS, [(10 - npre, 'V'), (6, ('OA', 'OB'))], lacc=vS + 48, pre=['V'] * npre)
        s.stamp(9)
        E(f's_cmp_eq_u32 s{sU}, 1'); E(f's_cselect_b32 s{SX+2}, 0, s{SX+2}'); E(f's_cselect_b32 s{SWQ+2}, 0, s{SWQ+2}'); E(f's_cselect_b32 s{SK+2}, 0, s{SK+2}')
        s.fill('K', cfg.fillK)
        s.o_write(3, vS, vS + 48)
        E(f's_mov_b32 s{sY}, {XB}')
        s.o_frag_read()
        E('s_barrier')
        s.o_proj(['OA', 'OB'] * 5 + ['Q'] * 6, extra_at=10, extra=s.prod_x)
        E(f's_add_u32 s{sOH}, s{sOH}, {256*896}')
        s.stamp(10)
    qproj(True)
    keep = s.L
    s.L = []; s.nlab = 1100; rest(); t1 = s.L
    s.L = []; qproj(False); tq = s.L
    s.L = []; s.nlab = 1100; rest(); t2 = s.L
    assert t1 == t2, [f'{a} | {b}' for a, b in zip(t1, t2) if a != b][:10]
    s.L = keep
    s.E(f's_mov_b32 s{sU}, 0'); s.E('L_unit:'); s.L += t1
    s.E(f's_cmp_eq_u32 s{sU}, 1'); s.E('s_cbranch_scc1 L_bdone')
    s.E(f's_mov_b32 s{sU}, 1')
    if cfg.stamps:
        s.E('s_waitcnt lgkmcnt(0)')
        for d, k in ((3, 8), (4, 11), (5, 9), (6, 10)): s.E(f's_mov_b64 s[{sST+2*d}:{sST+2*d+1}], s[{sST+2*k}:{sST+2*k+1}]')
    s.L += tq
    s.E('s_branch L_unit'); s.E('L_bdone:')
    s.nlab = 1900
    s.finish(1)
    return s.L

def path_A():
    s = Gen(); E = s.E; s.nlab = 2000
    s.stamp(0)
    s.load_ptrs(0)
    s.setup_common()
    E(f's_lshl_b32 s{sPK}, s{sB}, 3'); E(f's_add_u32 s{sPK}, s{sPK}, s{sJ}')
    E(f's_mul_i32 s{sPART}, s{sPK}, {PART}')
    E(f's_lshl_b32 s{sPK}, s{sPK}, 18'); E(f's_mov_b32 s{sPV}, s{sPK}')
    E(f's_load_dwordx4 s[{sST+8}:{sST+11}], s[0:1], 64')
    E('s_waitcnt lgkmcnt(0)')
    if cfg.warm:
        E(f's_bitcmp1_b32 s{sW}, 1')
        E(f's_cselect_b32 s{SPF}, s{sST+8}, s{SWQ}'); E(f's_cselect_b32 s{SPF+1}, s{sST+9}, s{SWQ+1}')
        E(f's_cselect_b32 s{sT0}, s{sST+10}, s{SWO}'); E(f's_cselect_b32 s{sT1}, s{sST+11}, s{SWO+1}')
        E(f's_bitcmp1_b32 s{sW}, 0')
        E(f's_cselect_b32 s{SPF}, s{sT0}, s{SPF}'); E(f's_cselect_b32 s{SPF+1}, s{sT1}, s{SPF+1}')
        E(f's_mov_b32 s{SPF+2}, {448*8192}'); E(f's_mov_b32 s{SPF+3}, 0x20000')
        E(f's_mul_i32 s{sT0}, s{sB}, {28*8192}'); E(f's_add_u32 s{sT0}, s{sT0}, s{sQH}')
        E(f's_mul_i32 s{sT2}, s{sB}, {28*1024}'); E(f's_add_u32 s{sT2}, s{sT2}, s{sOH}')
        E(f's_bitcmp1_b32 s{sW}, 0')
        E(f's_cselect_b32 s{sT2}, s{sT2}, s{sT0}'); E(f's_movk_i32 s{sT1}, 0x2000'); E(f's_cselect_b32 s{sT1}, 0x400, s{sT1}')
        s.pf_loop(28, None)
    def pf_partner(argoff, kb, startkb):
        E(f's_load_dwordx2 s[{SPF}:{SPF+1}], s[0:1], {argoff}')
        E(f's_lshl_b32 s{sT2}, s{sB}, 3'); E(f's_add_u32 s{sT2}, s{sT2}, s{sJ}'); E(f's_lshl_b32 s{sT2}, s{sT2}, 19')
        E(f's_add_u32 s{sT2}, s{sT2}, {262144 + startkb*1024}'); E(f's_lshl_b32 s{sT1}, s{sW}, 10'); E(f's_add_u32 s{sT2}, s{sT2}, s{sT1}')
        E('s_waitcnt lgkmcnt(0)')
        E(f's_mov_b32 s{SPF+2}, {256*262144}'); E(f's_mov_b32 s{SPF+3}, 0x20000')
        s.pf_loop(kb // 4, 4096)
    if cfg.eV2: pf_partner(56, cfg.eV2, 256 - cfg.eV2)
    if cfg.eK2: pf_partner(48, cfg.eK2, 256 - cfg.eK2)
    if cfg.pfK:
        E(f's_mov_b32 s{SPF}, s{SK}'); E(f's_mov_b32 s{SPF+1}, s{SK+1}'); E(f's_mov_b32 s{SPF+2}, s{SK+2}'); E(f's_mov_b32 s{SPF+3}, 0x20000')
        E(f's_lshl_b32 s{sT2}, s{sW}, 10'); E(f's_add_u32 s{sT2}, s{sT2}, s{sPK}')
        s.pf_loop(cfg.pfK // 4, 4096)
    s.emit_groups([s.prod_x()])
    for _ in range(cfg.ramp): s.emit_groups(s.prod('Q'))
    s.setup_late()
    E(f's_add_u32 s{sY}, s{sRQY}, {XB}')
    E(s.need('x')); E('s_barrier')
    s.stamp(1)
    pre = ramp_pre('Q')
    s.tg_phase(14, 3, vS, [(14 - len(pre), 'Q')], ywrap=43008, pre=pre, mid=(4, [f's_add_u32 s{sQH}, s{sQH}, 512']))
    E('s_nop 7'); E('s_nop 1')
    s.q_pack(vS, vS + 48)
    s.tg_phase(14, 3, vS, [(8, 'Q'), (6, 'K')], ywrap=43008)
    s.stamp(2)
    E('s_nop 7'); E('s_nop 1')
    s.q_pack(vS, vS + 72)
    E('s_barrier')
    s.q_write(vS + 48, 0); s.q_write(vS + 72, 1)
    E('s_waitcnt lgkmcnt(0)'); E('s_barrier')
    s.frag_read(48)
    s.s_phase(6, ['K'] * 10 + ['V'] * 6)
    s.stamp(3)
    s.softmax(6)
    pw = lambda n, t, d: f'ds_write_b128 v{vF6}, {vr(d)} offset:{XB + (n&1)*24576 + t*1024}'
    for n in range(2): s.exp_pack(6, n, pw)
    for n in range(2, 4): s.exp_pack(6, n)
    E(f's_mov_b32 s{sY}, {XB}')
    E('s_waitcnt lgkmcnt(0)'); E('s_barrier')
    s.stamp(4)
    s.tg_phase(8, 6, vOUT, [(8, 'V')], lacc=vS, base=0)
    E('s_barrier')
    for n in range(2, 4):
        for t in range(6): E(pw(n, t, vS + (n * 6 + t) * 4))
    E(f's_mov_b32 s{sY}, {XB}')
    E('s_waitcnt lgkmcnt(0)'); E('s_barrier')
    s.tg_phase(8, 6, vOUT, [(2, 'V'), (6, ('OA', 'OB'))], lacc=vS, base=0, c0=False)
    s.stamp(5)
    if cfg.pfB2: pf_partner(48, cfg.pfB2, cfg.pfB2s)
    s.o_write(6, vOUT, vS)
    s.zero(vOUT, 96)
    E(f's_mov_b32 s{sY}, {XB}')
    def head():
        s.o_frag_read()
        def sw():
            return [f's_add_u32 s{sOH}, s{sOH}, {256*896}', f's_cmp_eq_u32 s{sU}, 1', f's_cselect_b32 s{SWO+2}, 0, s{SWO+2}']
        s.o_proj(['OA', 'OB'] * 8, extra_at=10, extra=sw)
        E(f's_add_u32 s{sY}, s{sY}, 24576')
    s.stamp(6)
    s.rolled(2, head, cnt=sU)
    if cfg.pfV2: pf_partner(56, cfg.pfV2, 256 - cfg.pfV2)
    for k in range(7, 11): s.stamp(k)
    s.finish(0)
    return s.L

def reduce_kernel():
    L = []; E = L.append
    E('.p2align 8'); E('.type red_kernel,@function'); E('.globl red_kernel'); E('red_kernel:')
    E('s_cmp_ge_u32 s2, 224'); E('s_cbranch_scc1 L_rend')
    E('s_load_dwordx2 s[4:5], s[0:1], 96'); E('s_load_dwordx2 s[8:9], s[0:1], 80')
    E(f's_mov_b32 s6, {256*PART}'); E('s_mov_b32 s7, 0x20000'); E(f's_mov_b32 s10, {16*48*896*2}'); E('s_mov_b32 s11, 0x20000')
    E('v_lshrrev_b32 v2, 6, v0'); E('v_and_b32 v1, 63, v0'); E('s_nop 0'); E('v_readfirstlane_b32 s12, v2')
    E('s_mov_b32 s13, 0x24924925'); E('s_mul_hi_u32 s14, s2, s13')
    E('s_mul_i32 s15, s14, 7'); E('s_sub_u32 s15, s2, s15')
    E(f's_mul_i32 s16, s14, {8*PART}'); E('s_mul_i32 s17, s15, 6144'); E('s_add_u32 s16, s16, s17')
    E('s_lshl_b32 s17, s12, 10'); E('s_add_u32 s16, s16, s17')
    E('v_lshlrev_b32 v3, 4, v1')
    E('s_waitcnt lgkmcnt(0)')
    for j in range(8):
        E(f'buffer_load_dwordx4 v[{16+4*j}:{19+4*j}], v3, s[4:7], s16 offen')
        if j < 7: E(f's_add_u32 s16, s16, {PART}')
    E('s_cmp_ge_u32 s12, 3'); E('s_cselect_b32 s18, 1, 0'); E('s_mul_i32 s19, s18, 3'); E('s_sub_u32 s19, s12, s19')
    E('s_and_b32 s20, s14, 15'); E('s_lshr_b32 s21, s14, 4')
    E('s_mul_i32 s20, s20, 48'); E('s_lshl_b32 s19, s19, 4'); E('s_add_u32 s20, s20, s19'); E('s_mul_i32 s20, s20, 1792')
    E('s_mul_i32 s21, s21, 896'); E('s_add_u32 s20, s20, s21'); E('s_lshl_b32 s21, s15, 7'); E('s_add_u32 s20, s20, s21')
    E('s_lshl_b32 s21, s18, 6'); E('s_add_u32 s20, s20, s21')
    E('v_and_b32 v4, 15, v1'); E('v_mul_u32_u24 v4, 1792, v4'); E('v_lshrrev_b32 v5, 4, v1'); E('v_lshl_add_u32 v4, v5, 3, v4')
    E('s_mov_b32 s22, 0xffff0000')
    for j in range(8):
        E(f's_waitcnt vmcnt({7-j})')
        for r in range(4):
            src = 16 + 4 * j + r
            if j == 0:
                E(f'v_lshlrev_b32 v{8+2*r}, 16, v{src}'); E(f'v_and_b32 v{9+2*r}, s22, v{src}')
            else:
                E(f'v_lshlrev_b32 v6, 16, v{src}'); E(f'v_and_b32 v7, s22, v{src}')
                E(f'v_add_f32 v{8+2*r}, v{8+2*r}, v6'); E(f'v_add_f32 v{9+2*r}, v{9+2*r}, v7')
    for r in range(4): E(f'v_cvt_pk_bf16_f32 v{16+r}, v{8+2*r}, v{9+2*r}')
    E('buffer_store_dwordx2 v[16:17], v4, s[8:11], s20 offen')
    E('buffer_store_dwordx2 v[18:19], v4, s[8:11], s20 offen offset:32')
    E('L_rend:'); E('s_endpgm')
    return L

def kd(name, nv, ao):
    return ['.p2align 6', f'.amdhsa_kernel {name}', f'  .amdhsa_next_free_vgpr {nv}', '  .amdhsa_next_free_sgpr 102', f'  .amdhsa_accum_offset {ao}',
            '  .amdhsa_group_segment_fixed_size 0', '  .amdhsa_kernarg_size 104', '  .amdhsa_user_sgpr_count 2',
            '  .amdhsa_user_sgpr_kernarg_segment_ptr 1', '  .amdhsa_system_sgpr_workgroup_id_x 1', '.end_amdhsa_kernel']

def build(fname):
    hdr = [l for l in open('cdna_kernels/' + NAME + '.s.ref').read().split('\n') if l.startswith(';') and '@launch' not in l and 'Override' not in l and 'grid=ceil' not in l]
    L = hdr[:]
    if cfg.fuse:
        cfg.stpol = 'sc1'
        L.append(f'; @launch grid=(256,1,1) block=(256,1,1) lds={LDS_TOTAL}')
    else:
        L.append(f'; @launch kernel={NAME}_kernel grid=(256,1,1) block=(256,1,1) lds={LDS_TOTAL}')
        L.append('; @launch kernel=red_kernel grid=(224,1,1) block=(384,1,1) lds=0')
    L += ['.amdgcn_target "amdgcn-amd-amdhsa--gfx950"', '.text', f'.globl {NAME}_kernel', '.p2align 8', f'.type {NAME}_kernel,@function', f'{NAME}_kernel:']
    L += ['s_cmp_ge_u32 s2, 256', 's_cbranch_scc1 L_exit', 's_bitcmp1_b32 s2, 3', 's_cbranch_scc0 ' + ('L_exit' if cfg.noA else 'L_pathA')]
    L += path_B()
    if cfg.fuse: L += reduce_tail()
    L += ['L_exit:', 's_endpgm', 'L_pathA:']
    L += path_A()
    if cfg.stamps and cfg.dbgspan:
        L += ['L_stamps:', 's_waitcnt lgkmcnt(0)', 'v_cmp_eq_u32 vcc, 0, v0', 's_and_saveexec_b64 s[58:59], vcc', 's_cbranch_execz L_exit2',
              'v_mov_b32 v40, 0', f's_not_b32 s57, s{sST}', 'v_mov_b32 v42, s57', f'buffer_atomic_umax v42, v40, {srd(SDBG)}, 0 offen offset:4 sc1',
              f'v_mov_b32 v43, s{sST+30}', f'buffer_atomic_umax v43, v40, {srd(SDBG)}, 0 offen offset:12 sc1',
              f's_cmp_eq_u32 s{sU}, 0', 's_cbranch_scc1 L_exit2']
        for n, k in enumerate((0, 1, 2, 5, 9, 10)):
            L += [f'v_mov_b32 v{44+n}, s{sST+2*k}', f'buffer_atomic_umax v{44+n}, v40, {srd(SDBG)}, 0 offen offset:{20+8*n} sc1']
        L += ['L_exit2:', 's_endpgm']
    elif cfg.stamps:
        L += ['L_stamps:', 's_waitcnt lgkmcnt(0)', f's_add_u32 s{SWS}, s{SWS}, 0xc800000', f's_addc_u32 s{SWS+1}, s{SWS+1}, 0',
              's_lshl_b32 s58, s2, 7', 'v_mov_b32 v40, s58', 'v_cmp_eq_u32 vcc, 0, v0', 's_and_saveexec_b64 s[58:59], vcc', 's_cbranch_execz L_exit2']
        for k in range(16):
            L += [f'v_mov_b32 v42, s{sST+2*k}', f'v_mov_b32 v43, s{sST+2*k+1}', f'buffer_store_dwordx2 v[42:43], v40, {srd(SWS)}, 0 offen offset:{8*k}', 's_nop 1']
        L += ['L_exit2:', 's_endpgm']
    if not cfg.fuse: L += reduce_kernel()
    L += ['.section .rodata,"a"'] + kd(NAME + '_kernel', 512, 256) + ([] if cfg.fuse else kd('red_kernel', 48, 48))
    txt = '\n'.join(l if (l.startswith(';') or l.startswith('.') or l.endswith(':') or l.startswith('  ')) else '    ' + l for l in L) + '\n'
    open(fname, 'w').write(txt)

if __name__ == '__main__':
    out = sys.argv[1] if len(sys.argv) > 1 else 'cdna_kernels/' + NAME + '.s'
    for a in sys.argv[2:]:
        k, v = a.split('=')
        val = {'True': True, 'False': False}.get(v, int(v) if v.isdigit() else v)
        setattr(cfg, k, val.replace('+', ' ') if isinstance(val, str) else val)
    build(out)
```

```python
import sys, struct
NAME = 'concat_heads__gqa_block_cached__mha_block_cached__near_ridge'

class Cfg:
    stamps = False
    kvpol = 'nt'
    wpol = ''
    rot = True
    warm = 0
    earlyK = True
    noA = False
    noB = False
    nomfma = False
    ramp = 2
    estore = True
    sleep = 1
    pk = True
    codepf = False
    allw = False
    pvn = '1111101011111111'
    sn = '22112222'
    pvnA = '1111101011111111'
    snA = '11011222'
    expW = 1
    xb = 4
    gA = 2
    trace = False
    tailp = '110101'
    wl = 2
cfg = Cfg()

NQ = 6; QP = 4224; LEAD = 4
XB = 0; STAT = 49152; RING = 51200; RSZ = NQ * QP
LDS_TOTAL = RING + 4 * RSZ
PART = 43008
FLAGS = 256 * PART
SX, SW, SK, SV, SWO, SWS = 4, 8, 12, 16, 20, 24
sJ, sB, sW, sRS, sLC, sY, sPK, sPV, sT0, sT1, sT2, sU = range(28, 40)
sC = 40
sXC = 42
sFL, sPART, sXM, sBR = 46, 47, 48, 49
sTab = 50
sST = 64
SPF = 96
sRQ, sRO = 22, 23
SOUT = SV; SDBG = SK
vV, vWA, vWB, vOA, vK = 2, 6, 10, 14, 18
vX = 19
vTB = 22
vKB, vLin, vQW, vStW, vStR, vPW, vF6 = 26, 27, 28, 29, 30, 31, 32
vOW = 33
vTmp = 35
vM = 36
vSR = 48
vPF = 56
vXR = 60
vOld = 62
vS = 64; vOUT = 160
aO = 96; aFR = 192; aONE = 248
M = lambda t: vM + 2 * t

def srd(n): return f's[{n}:{n+3}]'
def vr(b, n=4): return f'v[{b}:{b+n-1}]'
def ar(b, n=4): return f'a[{b}:{b+n-1}]'
MF = 'v_mfma_f32_16x16x32_bf16'

class Gen:
    def __init__(s, lab0):
        s.L = []; s.q = []; s.nlab = lab0
        s.stream = []
        s.pseq = 0; s.cseq = 0; s.freed = 0; s.owner = [-1] * NQ; s.tr = False
    def plan(s, kinds, start):
        for i, k in enumerate(kinds): s.stream.append((k, (start + i) % NQ, i))
    def E(s, t):
        s.L.append(t)
        if t == 's_waitcnt lgkmcnt(0)': s.freed = s.cseq
    def vm(s, t, tag):
        s.L.append(t); s.q.append(tag)
    def need(s, tag):
        idx = max(i for i, t in enumerate(s.q) if t == tag)
        n = len(s.q) - 1 - idx
        assert n <= 63, n
        return f's_waitcnt vmcnt({n})'
    def lab(s, p):
        s.nlab += 1; return f'L_{p}{s.nlab}'
    def tr_start(s):
        if cfg.trace and s.tr:
            s.L += ['s_mov_b32 m0, s100', 's_nop 0', 'v_writelane_b32 v42, s96, m0', 'v_writelane_b32 v43, s98, m0', 's_add_u32 s100, s100, 1', 's_memrealtime s[96:97]']
    def stamp(s, k):
        if cfg.stamps: s.E(f's_memrealtime s[{sST+2*k}:{sST+2*k+1}]')
    def capture(s, f, lab0=None):
        keep = s.L; s.L = []
        if lab0 is not None: s.nlab = lab0
        f(); t = s.L; s.L = keep
        return t
    def rolled(s, n, body, cnt=sLC):
        l0 = s.nlab
        texts = [s.capture(body, l0) for _ in range(n)]
        for t in texts[1:]:
            assert t == texts[0], 'loop iterations differ:\n' + '\n'.join(f'{a} | {b}' for a, b in zip(texts[0], t) if a != b)
        lb = s.lab('loop')
        s.L += [f's_mov_b32 s{cnt}, {n}', f'{lb}:'] + texts[0] + [f's_sub_u32 s{cnt}, s{cnt}, 1', f's_cmp_lg_u32 s{cnt}, 0', f's_cbranch_scc1 {lb}']
    def emit_item(s, it):
        if isinstance(it, str): s.E(it)
        elif it[0] == 'vm':
            if ' m0,' in s.L[-1]: s.L.append('s_nop 0')
            s.vm(it[1], it[2])
        elif it[0] == 'need':
            s.E(s.need(it[1]))
            if cfg.trace and s.tr: s.E('s_memrealtime s[98:99]')
    def emit_groups(s, G):
        for g in G:
            for it in g: s.emit_item(it)
    def interleave(s, mf, groups, fill=None, fstart=0):
        n = len(mf); g = len(groups)
        pos = {}
        for k in range(g):
            pos.setdefault(min(n - 1, (k * n) // max(g, 1)), []).append(k)
        fill = list(fill or []); nf = len(fill); done = 0
        for i, m in enumerate(mf):
            s.E(m)
            for k in pos.get(i, []):
                for it in groups[k]: s.emit_item(it)
            if i >= fstart:
                upto = (nf * (i - fstart + 1)) // (n - fstart)
                while done < upto or (done < nf and done > 0 and fill[done-1].startswith('s_cmp')):
                    s.L.append(fill[done]); done += 1
    @staticmethod
    def split(lst, n):
        return [lst[(len(lst) * i) // n:(len(lst) * (i + 1)) // n] for i in range(n)]
    def gap(s, f, n, lo=0.0, hi=1.0):
        G = []
        for _ in range(n): G += s.prod()
        t = s.capture(f)
        pts = [i for i, x in enumerate(t) if (x.startswith('v_') or x.startswith('ds_')) and i > 0 and not t[i-1].startswith('s_cmp')]
        pos = {}
        for k in range(len(G)):
            fr = lo + (hi - lo) * (k + 0.5) / len(G)
            pos.setdefault(pts[min(len(pts) - 1, int(fr * len(pts)))], []).append(k)
        for i, x in enumerate(t):
            for k in pos.get(i, []):
                for it in G[k]: s.emit_item(it)
            s.L.append(x)

    def prod(s):
        kind, slot, idx = s.stream[s.pseq]
        assert s.owner[slot] < s.freed, (s.pseq, slot, s.owner[slot], s.freed)
        s.owner[slot] = s.pseq
        tag = ('q', s.pseq); s.pseq += 1
        G = [[f's_add_u32 m0, s{sRS}, {slot*QP}']]
        if kind == 'K':
            for p in range(4):
                G.append([('vm', f'buffer_load_dwordx4 v{vK}, {srd(SK)}, s{sPK} offen offset:{p*1024} {cfg.kvpol} lds', tag)])
                if p < 3: G[-1].append(f's_add_u32 m0, s{sRS}, {slot*QP + (p+1)*32}')
            G[-1].append(f's_add_u32 s{sPK}, s{sPK}, 0x4000')
        else:
            vo, sr, so, pol = {'V': (vV, SV, sPV, cfg.kvpol), 'WA': (vWA, SW, sTab + idx, cfg.wpol), 'WB': (vWB, SW, sTab + idx - 8, cfg.wpol)}[kind]
            for p in range(4):
                G.append([('vm', f'buffer_load_dwordx4 v{vo+p}, {srd(sr)}, s{so} offen offset:{p*1024} {pol} lds', tag)])
            if kind == 'V': G[-1].append(f's_add_u32 s{sPV}, s{sPV}, 0x4000')
        return G
    def x_loads(s, ms=range(4)):
        g = []
        for m in ms:
            for t in range(3):
                g += [f's_add_u32 m0, s{sXM}, {XB + (12*m + 2*t)*1024}', 's_nop 0',
                      f'buffer_load_dwordx4 v{vX+t}, {srd(SX)}, s{sXC+m} offen {cfg.wpol} lds']
        return g
    def table(s, lo, hi, n, rot, step, base):
        o = []
        if lo == 0:
            o += base + [f's_add_u32 s{sT2}, s{sT1}, {n*step}', f's_mul_i32 s{sT0}, s{rot[0]}, {rot[1]*step}', f's_add_u32 s{sTab}, s{sT0}, s{sT1}']
            lo = 1
        for k in range(lo, hi):
            o += [f's_add_u32 s{sT0}, s{sTab+k-1}, {step}', f's_cmp_ge_u32 s{sT0}, s{sT2}', f's_cselect_b32 s{sTab+k}, s{sT1}, s{sT0}']
        return o
    def wq_table(s, lo, hi): return s.table(lo, hi, 14, (sRQ, 2), 0x40000, [f's_lshl_b32 s{sT1}, s{sJ}, 10'])
    def wq_head(s): return [f'v_add_u32 v{vWA+p}, 512, v{vWA+p}' for p in range(4)]
    def wo_head(s): return [f'v_add_u32 v{vWA+p}, {256*896}, v{vWA+p}' for p in range(8)]
    def w_to_wo(s):
        o = [f's_mov_b32 s{SW}, s{SWO}', f's_mov_b32 s{SW+1}, s{SWO+1}']
        o += s.table(0, 8, 8, (sRO, 1), 28672, [f's_mul_i32 s{sT1}, s{sJ}, {512*896}'])
        o += [f'v_mov_b32 v{vWA+p}, v{vOA+p}' for p in range(4)]
        return o

    def tg_bufs(s, T, par, ylds, base):
        a = base + par * (16 + (4 * T if ylds else 0))
        return a, a + 16
    def tg_fetch(s, T, st, ymode, base, bar=False):
        ylds = ymode is not None
        a, y = s.tg_bufs(T, st & 1, ylds, base)
        kind, slot, idx = s.stream[s.cseq]
        assert kind != 'K'
        tag = ('q', s.cseq); s.cseq += 1
        g0 = [('need', tag)] + (['s_barrier'] if bar else [])
        o = slot * QP
        rd = [[f'ds_read_b64_tr_b16 {ar(a+4*d,2)}, v{vTB+d} offset:{o}', f'ds_read_b64_tr_b16 {ar(a+4*d+2,2)}, v{vTB+d} offset:{o+2048}'] for d in range(4)]
        if ymode == 'x': yr = [f'ds_read_b128 {ar(y+4*t)}, v{vXR+(st&1)} offset:{XB + (st>>1)*6144 + t*2048}' for t in range(T)]
        elif ymode == 'p': yr = [f'ds_read_b128 {ar(y+4*t)}, v{vLin} offset:{XB + ((st*T*1024) % 49152) + t*1024}' for t in range(T)]
        G = [g0 + rd[0]]
        if ylds:
            h = (T + 1) // 2
            G += [yr[:h], rd[1], yr[h:], rd[2], rd[3]]
        else:
            G += [rd[1], rd[2], rd[3]]
        return G
    def tg_step(s, T, st, acc, pref, nprod, ymode, ystat=None, lacc=None, base=aFR, extra=None, c0=False, fill=None, head=None, bar=False):
        ylds = ymode is not None
        a, y = s.tg_bufs(T, st & 1, ylds, base)
        if not ylds: y = ystat
        s.E('s_waitcnt lgkmcnt(0)'); s.tr_start()
        for x in (head or []): s.E(x)
        mf = []
        for d in range(4):
            for t in range(T):
                c = vr(acc + (d * T + t) * 4)
                mf.append(f'{MF} {c}, {ar(a+4*d)}, {ar(y+4*t)}, {0 if c0 else c}')
        if lacc is not None:
            for t in range(T):
                c = vr(lacc + 4 * t)
                mf.append(f'{MF} {c}, {ar(aONE)}, {ar(y+4*t)}, {0 if c0 else c}')
        F = s.tg_fetch(T, st + 1, ymode, base, bar) if pref else []
        P = [extra] if extra else []
        for _ in range(nprod): P += s.prod()
        if lacc is not None: G = P + F
        elif F and P and not extra: G = F[:-1] + [F[-1] + P[0]] + P[1:]
        else: G = F + P
        s.interleave(mf, G, fill)
    def tg_phase(s, T, acc, nprods, ymode, lacc=None, base=aFR, c0=True, st0=0, first=True, last=True, bar=False, extra=None, heads=None, bars=()):
        if first: s.emit_groups(s.tg_fetch(T, st0, ymode, base, bar))
        n = len(nprods)
        for i, np_ in enumerate(nprods):
            s.tg_step(T, st0 + i, acc, not (last and i == n - 1), np_, ymode, None, lacc, base,
                      extra=(extra or {}).get(st0 + i), c0=(c0 and first and i == 0), head=(heads or {}).get(st0 + i), bar=(st0 + i + 1) in bars)
    def zero(s, base, n):
        for r in range(base, base + n): s.E(f'v_mov_b32 v{r}, 0')

    def k_fetch(s, dst):
        k0, slot, _ = s.stream[s.cseq]; k1, slot1, _ = s.stream[s.cseq + 1]
        assert k0 == 'K' and k1 == 'K' and slot1 == slot + 1
        s.cseq += 2
        tag = ('q', s.cseq - 1)
        rd = [f'ds_read_b128 {dst(k)}, v{vKB} offset:{slot*QP + k*64}' for k in range(8)]
        return [[('need', tag)] + rd[0:2], rd[2:4], rd[4:6], rd[6:8]]
    def s_phase(s, T, nprods, parked=0, hook=None, qb=0, fills=None, heads=None):
        buf = lambda tau: ((lambda k: vr(vOUT + tau * 32 + 4 * k)) if tau < parked else (lambda k: ar(aFR + (tau & 1) * 32 + 4 * k)))
        if not parked: s.emit_groups(s.k_fetch(buf(0)))
        for tau in range(8):
            if tau == 0 or tau >= parked: s.E('s_waitcnt lgkmcnt(0)'); s.tr_start()
            for x in (heads or {}).get(tau, []): s.E(x)
            mf = []
            for k in range(8):
                for t in range(T):
                    c = vr(vS + (tau * T + t) * 4)
                    qf = qb + ((t // 3) * 24 + k * 3 + (t % 3)) * 4
                    mf.append(f'{MF} {c}, {buf(tau)(k)}, {ar(qf)}, {c if k else 0}')
            F = s.k_fetch(buf(tau + 1)) if (tau < 7 and tau + 1 >= parked) else []
            P = []
            h = hook(tau) if hook else None
            if h: P += [h]
            for _ in range(nprods[tau]): P += s.prod()
            G = P + F
            while len(G) < 4: G = [[]] + G
            if tau > 0: G[-1] = G[-1] + s.tile_max(T, tau - 1)
            s.interleave(mf, G, (fills or {}).get(tau), 8 if tau == 0 else 0)
    def tile_max(s, T, tau):
        S = lambda t, r: vS + (tau * T + t) * 4 + r
        if tau == 0:
            return [f'v_max3_f32 v{M(t)}, v{S(t,0)}, v{S(t,1)}, v{S(t,2)}' for t in range(T)] + [f'v_max_f32 v{M(t)}, v{M(t)}, v{S(t,3)}' for t in range(T)]
        return [f'v_max3_f32 v{M(t)}, v{M(t)}, v{S(t,0)}, v{S(t,1)}' for t in range(T)] + [f'v_max3_f32 v{M(t)}, v{M(t)}, v{S(t,2)}, v{S(t,3)}' for t in range(T)]
    def sm_a(s, T):
        E = s.E
        for x in s.tile_max(T, 7): E(x)
        for op in ('v_permlane32_swap_b32', 'v_permlane16_swap_b32'):
            for t in range(T): E(f'v_mov_b32 v{M(t)+1}, v{M(t)}')
            E('s_nop 1')
            for t in range(T): E(f'{op} v{M(t)}, v{M(t)+1}')
            E('s_nop 1')
            for t in range(T): E(f'v_max_f32 v{M(t)}, v{M(t)}, v{M(t)+1}')
        for t in range(T): E(f'ds_write_b32 v{vStW}, v{M(t)} offset:{t*256}')
        E(f'v_mov_b32 v{vTmp}, 0x3f803f80')
        for r in range(4): E(f'v_accvgpr_write_b32 a{aONE+r}, v{vTmp}')
    def sm_rd(s, t0):
        for t in range(t0, t0 + 3): s.E(f'ds_read_b128 {vr(vSR+4*(t-t0))}, v{vStR} offset:{t*256}')
    def sm_b(s, t0):
        E = s.E
        for t in range(t0, t0 + 3):
            b = vSR + 4 * (t - t0); E(f'v_max3_f32 v{M(t)}, v{b}, v{b+1}, v{b+2}')
        for t in range(t0, t0 + 3):
            b = vSR + 4 * (t - t0); E(f'v_max_f32 v{M(t)}, v{M(t)}, v{b+3}')
        for t in range(t0, t0 + 3): E(f'v_mul_f32 v{M(t)}, s{sC}, v{M(t)}')
    def softmax(s, T):
        E = s.E
        E('s_nop 7'); E('s_nop 1')
        s.sm_a(T)
        E('s_waitcnt lgkmcnt(0)'); E('s_barrier')
        for t0 in range(0, T, 3):
            s.sm_rd(t0)
            E('s_waitcnt lgkmcnt(0)')
            s.sm_b(t0)
    def p_write(s, T, tau, t, reg):
        return f'ds_write_b64 v{vPW}, {vr(reg,2)} offset:{XB + 2*tau*T*1024 + t*1024}'
    def exp_pack(s, T, tau, dst=None, wtau=None):
        E = s.E
        for t0 in range(0, T, 3):
            regs = [(t, vS + (tau * T + t) * 4) for t in range(t0, t0 + 3)]
            for t, b in regs:
                if cfg.pk:
                    for r in (0, 2): E(f'v_pk_fma_f32 {vr(b+r,2)}, {vr(b+r,2)}, s[{sC}:{sC+1}], {vr(M(t),2)} op_sel_hi:[1,0,0] neg_lo:[0,0,1] neg_hi:[0,0,1]')
                else:
                    for r in range(4): E(f'v_fma_f32 v{b+r}, v{b+r}, s{sC}, -v{M(t)}')
            for t, b in regs:
                for r in range(4): E(f'v_exp_f32 v{b+r}, v{b+r}')
            E('s_nop 0')
            for t, b in regs:
                d = dst(t) if dst else b
                E(f'v_cvt_pk_bf16_f32 v{d}, v{b}, v{b+1}'); E(f'v_cvt_pk_bf16_f32 v{d+1}, v{b+2}, v{b+3}')
                if wtau is not None: E(s.p_write(T, wtau, t, d))
    def q_pack(s, acc, dst):
        s.E('s_nop 7'); s.E('s_nop 1')
        for d in range(4):
            for t in range(3):
                a = acc + (d * 3 + t) * 4; o = dst + (d * 3 + t) * 2
                s.E(f'v_cvt_pk_bf16_f32 v{o}, v{a}, v{a+1}'); s.E(f'v_cvt_pk_bf16_f32 v{o+1}, v{a+2}, v{a+3}')
    def q_write(s, src, hd):
        for d in range(4):
            for t in range(3):
                o = src + (d * 3 + t) * 2
                s.E(f'ds_write_b64 v{vQW}, {vr(o,2)} offset:{XB + hd*24576 + (d>>1)*3072 + t*1024 + (d&1)*512}')
    def frag_read(s, n, off=0, dst=0, addr=vLin):
        for f in range(n): s.E(f'ds_read_b128 {ar(dst+4*f)}, v{addr} offset:{XB + off + f*1024}')
    def o_pack(s, T, acc, lacc, write_now, M=M, nops=True):
        E = s.E
        if nops: E('s_nop 7'); E('s_nop 1')
        for t in range(T): E(f'v_rcp_f32 v{M(t)}, v{lacc+4*t}')
        E('s_nop 0')
        W = []
        for kk in range(2):
            for t in range(T):
                a0 = acc + ((2 * kk) * T + t) * 4; a1 = acc + ((2 * kk + 1) * T + t) * 4
                for a in (a0, a1):
                    if cfg.pk:
                        for r in (0, 2): E(f'v_pk_mul_f32 {vr(a+r,2)}, {vr(a+r,2)}, {vr(M(t),2)} op_sel_hi:[1,0]')
                    else:
                        for r in range(4): E(f'v_mul_f32 v{a+r}, v{a+r}, v{M(t)}')
                E(f'v_cvt_pk_bf16_f32 v{a0}, v{a0}, v{a0+1}'); E(f'v_cvt_pk_bf16_f32 v{a0+1}, v{a0+2}, v{a0+3}')
                E(f'v_cvt_pk_bf16_f32 v{a0+2}, v{a1}, v{a1+1}'); E(f'v_cvt_pk_bf16_f32 v{a0+3}, v{a1+2}, v{a1+3}')
                w = f'ds_write_b128 v{vOW+kk}, {vr(a0)} offset:{XB + (t//3)*24576 + (t%3)*1024}'
                if write_now: E(w)
                else: W.append(w)
        return W
    def store_slice(s, sg):
        o = []
        for u in range(2):
            o.append(f's_add_u32 s{sT0}, s{sPART}, {sg*24576 + u*3072}')
            for t in range(3):
                a0 = vOUT + ((sg * 4 + 2 * u) * 3 + t) * 4; a1 = a0 + 12
                o += [f'v_cvt_pk_bf16_f32 v{a0}, v{a0}, v{a0+1}', f'v_cvt_pk_bf16_f32 v{a0+1}, v{a0+2}, v{a0+3}',
                      f'v_cvt_pk_bf16_f32 v{a0+2}, v{a1}, v{a1+1}', f'v_cvt_pk_bf16_f32 v{a0+3}, v{a1+2}, v{a1+3}',
                      f'buffer_store_dwordx4 {vr(a0)}, v{vF6}, {srd(SWS)}, s{sT0} offen offset:{t*1024} sc1']
        return o
    def o_proj(s, nprods, yb, c0=False, extra=None, fills=None, heads=None, primed=False):
        if not primed: s.emit_groups(s.tg_fetch(3, 0, None, aFR))
        for st in range(16):
            s.tg_step(3, st, vOUT + (st >> 3) * 48, st < 15, nprods[st], None, yb + (st & 7) * 12, None, aFR, (extra or {}).get(st),
                      c0=(c0 and st in (0, 8)), fill=(fills or {}).get(st), head=(heads or {}).get(st))
    def finish(s):
        E = s.E
        E('s_nop 7'); E('s_nop 1')
        E(f's_cmp_eq_u32 s{sW}, 3'); E('s_cbranch_scc1 L_reduce')
        for x in s.store_slice(1): E(x)
        E('s_branch L_reduce')

    def setup_ids(s, br):
        E = s.E
        E('v_and_b32 v1, 63, v0'); E('v_lshrrev_b32 v40, 6, v0')
        E(f's_and_b32 s{sJ}, s2, 7'); E(f's_lshr_b32 s{sB}, s2, 4')
        E(f'v_readfirstlane_b32 s{sW}, v40')
        E('v_lshrrev_b32 v43, 3, v1')
        E('v_and_b32 v47, 7, v1')
        if cfg.rot:
            E(f's_mul_i32 s{sRQ}, s{sB}, 7'); E(f's_lshr_b32 s{sRQ}, s{sRQ}, 4'); E(f's_lshr_b32 s{sRO}, s{sB}, 1')
        else:
            E(f's_mov_b32 s{sRQ}, 0'); E(f's_mov_b32 s{sRO}, 0')
        E(f's_mul_i32 s{sRS}, s{sW}, {RSZ}'); E(f's_add_u32 s{sRS}, s{sRS}, {RING}')
    def setup_x(s):
        E = s.E
        E('v_and_b32 v45, 1, v40'); E('v_lshl_add_u32 v46, v45, 3, v43'); E(f'v_mul_u32_u24 v{vX}, 896, v46')
        E('v_lshrrev_b32 v46, 1, v46'); E('v_xor_b32 v46, v46, v47'); E(f'v_lshl_add_u32 v{vX}, v46, 4, v{vX}')
        E(f'v_add_u32 v{vX+1}, 14336, v{vX}'); E(f'v_add_u32 v{vX+2}, 28672, v{vX}')
        E(f's_lshr_b32 s{sT0}, s{sW}, 1'); E(f's_mul_i32 s{sXM}, s{sT0}, 6'); E(f's_and_b32 s{sT1}, s{sW}, 1'); E(f's_add_u32 s{sXM}, s{sXM}, s{sT1}'); E(f's_lshl_b32 s{sXM}, s{sXM}, 10')
        E(f's_add_u32 s{sT1}, s{sT0}, s{sRQ}'); E(f's_mul_i32 s{sT2}, s{sB}, 43008')
        for m in range(4):
            E(f's_add_u32 s{sXC+m}, s{sT1}, {2*m}'); E(f's_cmp_ge_u32 s{sXC+m}, 7'); E(f's_cselect_b32 s{sLC}, 7, 0'); E(f's_sub_u32 s{sXC+m}, s{sXC+m}, s{sLC}')
            E(f's_lshl_b32 s{sXC+m}, s{sXC+m}, 7'); E(f's_add_u32 s{sXC+m}, s{sXC+m}, s{sT2}')
        E(f's_cmp_eq_u32 s{sT0}, 1'); E(f's_cselect_b32 s{sXC+3}, 0x40000000, s{sXC+3}')
    def setup_w(s):
        E = s.E
        E('v_and_b32 v45, 6, v43'); E('v_xor_b32 v44, v47, v45'); E('v_lshlrev_b32 v44, 4, v44')
        E('v_lshl_add_u32 v44, v40, 7, v44')
        E('v_lshrrev_b32 v45, 2, v43'); E('v_lshlrev_b32 v45, 3, v45'); E('v_and_b32 v46, 3, v43'); E('v_add_u32 v45, v45, v46')
        E(f'v_lshl_add_u32 v{vWA}, v45, 13, v44')
        for p in range(1, 4): E(f'v_add_u32 v{vWA+p}, {(16*(p&1)+4*(p>>1))*8192 - p*1024}, v{vWA}')
    def setup_k(s, br):
        E = s.E
        E('v_lshrrev_b32 v45, 5, v1'); E('v_and_b32 v46, 31, v1'); E('v_xor_b32 v46, v46, v45'); E('v_lshlrev_b32 v46, 4, v46')
        E('v_lshl_add_u32 v46, v45, 9, v46'); E(f'v_lshl_add_u32 v{vK}, v40, 12, v46')
        E(f's_lshl_b32 s{sPK}, s{sB}, 3'); E(f's_add_u32 s{sPK}, s{sPK}, s{sJ}')
        E(f's_add_u32 s{sPART}, s{sPK}, {128*br}'); E(f's_mul_i32 s{sPART}, s{sPART}, {PART}')
        E(f's_lshl_b32 s{sPK}, s{sPK}, {19 if br else 18}'); E(f's_mov_b32 s{sPV}, s{sPK}')
        E(f'v_lshlrev_b32 v{vLin}, 4, v1')
    def setup_rd(s):
        E = s.E
        E('v_and_b32 v41, 15, v1')
        E('v_lshrrev_b32 v42, 4, v1')
        E('v_lshrrev_b32 v45, 2, v41')
        E('v_and_b32 v46, 1, v42'); E('v_lshl_add_u32 v45, v46, 2, v45')
        E('v_lshrrev_b32 v46, 1, v42'); E('v_lshlrev_b32 v46, 10, v46'); E('v_lshl_add_u32 v46, v45, 7, v46')
        E('v_and_b32 v47, 3, v41'); E('v_lshl_add_u32 v46, v47, 3, v46'); E(f'v_add_u32 v46, s{sRS}, v46')
        E('v_lshrrev_b32 v45, 1, v45')
        for d in range(4):
            E(f'v_xor_b32 v47, {d}, v45'); E(f'v_lshl_add_u32 v{vTB+d}, v47, 5, v46')
        E('v_lshrrev_b32 v45, 3, v41'); E('v_lshlrev_b32 v45, 10, v45'); E('v_and_b32 v46, 7, v41'); E('v_lshl_add_u32 v45, v46, 7, v45')
        E('v_lshrrev_b32 v46, 1, v41'); E('v_xor_b32 v46, v46, v42'); E(f'v_lshl_add_u32 v{vXR}, v46, 4, v45'); E(f'v_xor_b32 v{vXR+1}, 64, v{vXR}')
        E('v_lshrrev_b32 v45, 1, v41'); E(f'v_mul_u32_u24 v{vKB}, 1056, v45'); E('v_and_b32 v45, 1, v41')
        E(f'v_lshl_add_u32 v{vKB}, v45, 9, v{vKB}'); E('v_xor_b32 v45, v45, v42'); E(f'v_lshl_add_u32 v{vKB}, v45, 4, v{vKB}')
        E(f'v_add_u32 v{vKB}, s{sRS}, v{vKB}')
    def setup_late(s, T, br):
        E = s.E
        E(f'v_lshl_add_u32 v{vV}, v43, 9, v44')
        for p in range(1, 4): E(f'v_add_u32 v{vV+p}, {p*3072}, v{vV}')
        E(f'v_mul_u32_u24 v{vOA}, 896, v43'); E(f'v_add_u32 v{vOA}, v{vOA}, v44')
        for p in range(1, 4): E(f'v_add_u32 v{vOA+p}, {p*(8*896-1024)}, v{vOA}')
        E(f's_cmp_eq_u32 s{sW}, 3'); E(f's_cselect_b32 s{sLC}, 0x40000000, 512')
        for p in range(4): E(f'v_add_u32 v{vWB+p}, s{sLC}, v{vOA+p}')
        E(f'v_mul_u32_u24 v45, 6144, v40'); E(f'v_add_u32 v{vF6}, v45, v{vLin}')
        E('v_lshrrev_b32 v46, 1, v42'); E('v_lshl_add_u32 v45, v46, 8, v45')
        E('v_lshl_add_u32 v45, v41, 4, v45'); E('v_and_b32 v47, 1, v42'); E(f'v_lshl_add_u32 v{vQW}, v47, 3, v45')
        E(f'v_mul_u32_u24 v45, {T*1024}, v46'); E('v_and_b32 v46, 1, v40'); E('v_lshl_add_u32 v46, v46, 1, v47')
        E('v_lshl_add_u32 v45, v46, 8, v45'); E('v_lshl_add_u32 v45, v41, 4, v45'); E('v_lshrrev_b32 v46, 1, v40'); E(f'v_lshl_add_u32 v{vPW}, v46, 3, v45')
        E(f'v_lshlrev_b32 v45, 4, v41'); E(f'v_add_u32 v{vStR}, {STAT}, v45'); E(f'v_lshl_add_u32 v{vStW}, v40, 2, v{vStR}')
        for kk in range(2):
            E(f's_lshl_b32 s{sLC}, s{sW}, 1'); E(f's_add_u32 s{sLC}, s{sLC}, {8+kk}'); E(f's_sub_u32 s{sLC}, s{sLC}, s{sRO}'); E(f's_and_b32 s{sLC}, s{sLC}, 7')
            E(f's_mul_i32 s{sLC}, s{sLC}, 3072'); E(f'v_add_u32 v{vOW+kk}, s{sLC}, v{vLin}')
        c = struct.unpack('<I', struct.pack('<f', 1.4426950408889634 / 16.0))[0]
        E(f's_mov_b32 s{sC}, {c:#x}'); E(f's_mov_b32 s{sC+1}, s{sC}'); E(f's_mov_b32 s{sBR}, {br}')
        E(f's_lshl_b32 s{sFL}, s{sB}, 8'); E(f's_add_u32 s{sFL}, s{sFL}, {FLAGS + br*4096}')
        E(f'v_mov_b32 v{vOld+1}, 0')
        E(f'buffer_load_dword v{vOld}, v{vOld+1}, {srd(SWS)}, s{sFL} offen sc1')
    def load_ptrs(s, br):
        E = s.E
        o = 40 * br
        E(f's_load_dwordx2 s[{SX}:{SX+1}], s[0:1], {o}')
        E(f's_load_dwordx2 s[{SW}:{SW+1}], s[0:1], {o+24}')
        E(f's_load_dwordx2 s[{SK}:{SK+1}], s[0:1], {o+8}')
        E(f's_load_dwordx2 s[{SV}:{SV+1}], s[0:1], {o+16}')
        E(f's_load_dwordx2 s[{SWO}:{SWO+1}], s[0:1], {o+32}')
        E(f's_load_dwordx2 s[{SWS}:{SWS+1}], s[0:1], 96')
        kv = 16 * (16 if br else 8) * 262144
        for r, n in ((SX, 16 * 43008), (SW, 448 * 8192), (SK, kv), (SV, kv), (SWS, FLAGS + 8192)):
            E(f's_mov_b32 s{r+2}, {n}'); E(f's_mov_b32 s{r+3}, 0x20000')
    def pf_loop(s, n):
        def body():
            for k in range(4):
                s.E(f'buffer_load_dwordx4 {vr(vPF)}, v{vLin}, {srd(SPF)}, s{sT2} offen')
                s.E(f's_add_u32 s{sT2}, s{sT2}, s{sT1}')
            s.E('s_waitcnt vmcnt(24)')
        s.rolled(n // 4, body)

F = NQ - LEAD
WQ = ['WA'] * 14; WO = ['WA'] * 8 + ['WB'] * 8
def WN(n, entry=LEAD, stay=False, nat=False):
    up = LEAD + cfg.wl - entry
    if stay: return [2] * up + [1] * (n - up)
    if nat: return [2] * up + [1] * (n - up - 6) + [int(c) for c in str(cfg.tailp).zfill(6)]
    return [2] * up + [1] * (n - up - cfg.wl - LEAD) + [0] * cfg.wl + [1] * LEAD
def ramp_np(n): return WN(n, cfg.ramp, nat=True)
pat = lambda p: [int(c) for c in str(p).lstrip('x')]

def q_both(s, started):
    E = s.E
    ex = {14 - LEAD - cfg.wl: s.wq_head()}
    if cfg.xb < 4: ex[0] = s.x_loads(range(cfg.xb, 4))
    s.tg_phase(3, vS, WN(14, started, True), 'x', bar=True, extra=ex, bars=((4 * cfg.xb,) if cfg.xb < 4 else ()))
    s.q_pack(vS, vS + 48)
    s.tg_phase(3, vS, WN(14, LEAD + cfg.wl, nat=True), 'x')
def q_exch(s):
    E = s.E
    for x in s.w_to_wo(): E(x)
    s.q_pack(vS, vS + 72)
    E('s_barrier')
    s.q_write(vS + 48, 0); s.q_write(vS + 72, 1)
    E('s_waitcnt lgkmcnt(0)'); E('s_barrier')

def path_B_text():
    s = Gen(1000); E = s.E
    for kinds, st in ((WQ, 0), (WQ, 2), (['K'] * 16, 4), (['V'] * 16, 2), (['K'] * 16, 0), (WO, 4), (['V'] * 16, 2), (WO, 0)): s.plan(kinds, st)
    s.stamp(0)
    s.load_ptrs(1)
    s.setup_ids(1); s.setup_x(); s.setup_w()
    for x in s.wq_table(0, cfg.ramp): E(x)
    E('s_waitcnt lgkmcnt(0)')
    s.emit_groups([s.x_loads(range(cfg.xb))])
    for _ in range(cfg.ramp): s.emit_groups(s.prod())
    for x in s.wq_table(cfg.ramp, 14): E(x)
    s.setup_k(1); s.setup_rd(); s.setup_late(3, 1)
    if cfg.trace:
        s.tr = True; E('s_mov_b32 s100, 0'); E('s_memrealtime s[96:97]'); E('v_mov_b32 v42, 0'); E('v_mov_b32 v43, 0')
    q_both(s, cfg.ramp)
    s.stamp(1)
    def g0():
        q_exch(s); s.frag_read(24)
    s.gap(g0, F)
    q2 = s.capture(lambda: s.frag_read(24, 24576, aO))
    s.s_phase(3, pat(cfg.sn), fills=dict(enumerate(Gen.split(q2, 4), 2)))
    s.stamp(2)
    def g1():
        s.softmax(3)
        for tau in range(8): s.exp_pack(3, tau, wtau=tau)
        E('s_waitcnt lgkmcnt(0)'); E('s_barrier')
    s.gap(g1, F, 0.1, 0.9)
    s.stamp(3)
    s.tg_phase(3, vOUT, pat(cfg.pvn), 'p', lacc=vOUT + 48, heads={12: ['s_barrier']})
    s.stamp(4)
    if cfg.trace: E('v_mov_b32 v44, v42'); E('v_mov_b32 v45, v43'); E('s_mov_b32 s100, 0')
    op = s.capture(lambda: s.o_pack(3, vOUT, vOUT + 48, True, M=lambda t: vSR + 2 * t, nops=False))
    of = s.capture(lambda: s.frag_read(24, 0, 0))
    fl = dict(enumerate(Gen.split(op, 2))); fl.update(dict(enumerate(Gen.split(of, 4), 3)))
    s.s_phase(3, [2] * 8, qb=aO, fills=fl, heads={3: ['s_barrier']})
    s.stamp(5)
    if cfg.expW:
        a_ = s.capture(lambda: s.sm_a(3)); r_ = s.capture(lambda: s.sm_rd(0)); b_ = s.capture(lambda: s.sm_b(0))
        exf = lambda: [s.exp_pack(3, tau, wtau=tau) for tau in range(8)]
        if cfg.expW == 2:
            fl = {1: a_, 2: r_, 3: b_}; fl.update(dict(enumerate(Gen.split(s.capture(exf), 12), 4))); hb = 2
        else:
            fl = {3: a_[:len(a_)//2], 4: a_[len(a_)//2:], 8: r_, 9: b_}; hb = 8
        s.o_proj(WN(16, nat=True), 0, c0=True, fills=fl, heads={hb: ['s_barrier']})
        s.stamp(6)
        for x in s.wo_head(): E(x)
        if cfg.expW == 2:
            for _ in range(F): s.emit_groups(s.prod())
        else:
            s.gap(exf, F, 0.1, 0.9)
        E('s_waitcnt lgkmcnt(0)'); E('s_barrier')
    else:
        s.o_proj(WN(16, nat=True), 0, c0=True)
        s.stamp(6)
        for x in s.wo_head(): E(x)
        s.gap(g1, F, 0.1, 0.9)
    s.stamp(7)
    s.tg_phase(3, vS, pat(cfg.pvn), 'p', lacc=vS + 48, heads={12: ['s_barrier']})
    s.stamp(8)
    def g2():
        s.o_pack(3, vS, vS + 48, True)
    s.gap(g2, F, 0.0, 0.6)
    s.emit_groups(s.tg_fetch(3, 0, None, aFR))
    E('s_waitcnt lgkmcnt(0)'); E('s_barrier')
    of = s.capture(lambda: s.frag_read(24, 0, 0))
    for x in of[:6]: E(x)
    s.stamp(9)
    fl = dict(enumerate(Gen.split(of[6:], 3))); fl.update(dict(enumerate(Gen.split(s.store_slice(0), 6), 9)))
    s.o_proj([1] * 10 + [0] * 6, 0, fills=fl, primed=True)
    for k in (10, 11): s.stamp(k)
    if cfg.trace:
        E('s_waitcnt lgkmcnt(0)'); s.tr_start()
        for i in range(4): E(f'v_mov_b32 v{2+i}, v{(44,45,42,43)[i]}')
    s.finish()
    return s.L

def path_A():
    s = Gen(2000); E = s.E
    park = 3 if cfg.earlyK else 0
    if park: pl = ((['K'] * 6, 0), (WQ, 0), (WQ, 2), (['K'] * 10, 4), (['V'] * 16, 2), (WO, 0), (WO, 4))
    else: pl = ((WQ, 0), (WQ, 2), (['K'] * 16, 4), (['V'] * 16, 2), (WO, 0), (WO, 4))
    for kinds, st in pl: s.plan(kinds, st)
    s.stamp(0)
    s.load_ptrs(0)
    if cfg.warm: E(f's_load_dwordx4 s[{sST+8}:{sST+11}], s[0:1], 64')
    s.setup_ids(0); s.setup_k(0)
    E('s_waitcnt lgkmcnt(0)')
    def warm():
        E(f's_bitcmp1_b32 s{sW}, 1')
        E(f's_cselect_b32 s{SPF}, s{sST+8}, s{SW}'); E(f's_cselect_b32 s{SPF+1}, s{sST+9}, s{SW+1}')
        E(f's_cselect_b32 s{sT0}, s{sST+10}, s{SWO}'); E(f's_cselect_b32 s{sT1}, s{sST+11}, s{SWO+1}')
        E(f's_bitcmp1_b32 s{sW}, 0')
        E(f's_cselect_b32 s{SPF}, s{sT0}, s{SPF}'); E(f's_cselect_b32 s{SPF+1}, s{sT1}, s{SPF+1}')
        E(f's_mov_b32 s{SPF+2}, {448*8192}'); E(f's_mov_b32 s{SPF+3}, 0x20000')
        E(f's_mul_i32 s{sT0}, s{sB}, {28*8192}'); E(f's_lshl_b32 s{sT1}, s{sJ}, 10'); E(f's_add_u32 s{sT0}, s{sT0}, s{sT1}')
        E(f's_mul_i32 s{sT2}, s{sB}, {28*1024}'); E(f's_mul_i32 s{sT1}, s{sJ}, {512*896}'); E(f's_add_u32 s{sT2}, s{sT2}, s{sT1}')
        E(f's_bitcmp1_b32 s{sW}, 0')
        E(f's_cselect_b32 s{sT2}, s{sT2}, s{sT0}'); E(f's_movk_i32 s{sT1}, 0x2000'); E(f's_cselect_b32 s{sT1}, 0x400, s{sT1}')
        s.pf_loop(28)
    if cfg.warm == 1: warm()
    if park:
        for _ in range(2): s.emit_groups(s.prod())
    s.setup_x(); s.setup_w(); s.setup_rd(); s.setup_late(6, 0)
    for x in s.wq_table(0, 14): E(x)
    if park:
        for _ in range(4): s.emit_groups(s.prod())
    if cfg.warm == 2: warm()
    s.emit_groups([s.x_loads(range(cfg.xb))])
    if park:
        for tau in range(3):
            s.emit_groups(s.k_fetch(lambda k: vr(vOUT + tau * 32 + 4 * k)))
            if tau == 0:
                E('s_waitcnt lgkmcnt(0)')
                for _ in range(cfg.ramp): s.emit_groups(s.prod())
        E('s_waitcnt lgkmcnt(0)')
    else:
        for _ in range(cfg.ramp): s.emit_groups(s.prod())
    s.stamp(1)
    q_both(s, cfg.ramp)
    s.stamp(2)
    def g0():
        q_exch(s); s.frag_read(48)
    if park:
        g0()
        s.s_phase(6, pat(cfg.snA), parked=park)
    else:
        s.gap(g0, F)
        s.s_phase(6, pat(cfg.sn))
    s.stamp(3)
    hold = lambda tau: (lambda t: vS + 48 + ((tau - 4) * 6 + t) * 2)
    def g1():
        s.softmax(6)
        for tau in range(4): s.exp_pack(6, tau, wtau=tau)
        for tau in range(4, 8): s.exp_pack(6, tau, dst=hold(tau))
        E('s_waitcnt lgkmcnt(0)'); E('s_barrier')
    s.gap(g1, cfg.gA, 0.1, 0.8)
    s.stamp(4)
    pv = pat(cfg.pvnA)
    s.tg_phase(6, vOUT, pv[:8], 'p', lacc=vS, base=0)
    E('s_barrier')
    for tau in range(4, 8):
        for t in range(6): E(s.p_write(6, tau - 4, t, hold(tau)(t)))
    E('s_waitcnt lgkmcnt(0)'); E('s_barrier')
    s.tg_phase(6, vOUT, pv[8:], 'p', lacc=vS, base=0, c0=False, st0=8)
    s.stamp(5)
    Wl = []
    def g2():
        Wl.extend(s.o_pack(6, vOUT, vS, False))
    s.gap(g2, F, 0.0, 0.6)
    E('s_barrier')
    for w in Wl: E(w)
    s.emit_groups(s.tg_fetch(3, 0, None, aFR))
    E('s_waitcnt lgkmcnt(0)'); E('s_barrier')
    of = s.capture(lambda: s.frag_read(48))
    for x in of[:6]: E(x)
    s.stamp(6)
    fl = dict(enumerate(Gen.split(of[6:24], 3))); fl.update(dict(enumerate(Gen.split(of[24:], 8), 3)))
    s.o_proj([1] * 16, 0, c0=True, fills=fl, primed=True, extra={10: s.wo_head()})
    s.o_proj([1] * 10 + [0] * 6, aO, fills=dict(enumerate(Gen.split(s.store_slice(0), 6), 9)))
    for k in range(7, 12): s.stamp(k)
    s.finish()
    return s.L

def reduce_tail():
    L = []; E = L.append
    sOld, sF2 = sPK, sPV
    def st(k):
        if cfg.stamps: E(f's_memrealtime s[{sST+2*k}:{sST+2*k+1}]')
    E('L_reduce:')
    E(f's_load_dwordx2 s[{SDBG}:{SDBG+1}], s[0:1], 88'); E(f's_load_dwordx2 s[{SOUT}:{SOUT+1}], s[0:1], 80')
    E(f's_lshl_b32 s{sT0}, s{sBR}, 4'); E(f's_add_u32 s{sT0}, s{sT0}, s{sB}')
    E(f's_mul_i32 s{sPART}, s{sT0}, {8*PART}')
    E(f's_lshl_b32 s{sT0}, s{sB}, 4'); E(f's_lshl_b32 s{sT1}, s{sBR}, 3'); E(f's_add_u32 s{sT1}, s{sT1}, s{sT0}')
    E(f'v_mov_b32 v40, s{sT1}'); E('v_mov_b32 v41, 1'); E(f'v_add_u32 v44, 1, v{vOld}')
    E(f's_lshl_b32 s{sT2}, s{sJ}, 2'); E(f's_add_u32 s{sT2}, s{sT2}, s{sW}')
    E('v_and_b32 v42, 15, v1'); E('v_mul_u32_u24 v42, 1792, v42'); E('v_lshrrev_b32 v43, 4, v1'); E('v_lshl_add_u32 v42, v43, 3, v42')
    E(f's_mul_i32 s{sY}, s{sB}, {48*1792}'); E(f's_mul_i32 s{sT1}, s{sBR}, 896'); E(f's_add_u32 s{sY}, s{sY}, s{sT1}')
    E(f'v_readfirstlane_b32 s{sOld}, v{vOld}')
    E('s_waitcnt lgkmcnt(0)')
    E(f's_mov_b32 s{SDBG+2}, 256'); E(f's_mov_b32 s{SDBG+3}, 0x20000'); E(f's_mov_b32 s{SOUT+2}, {16*48*896*2}'); E(f's_mov_b32 s{SOUT+3}, 0x20000')
    E('s_waitcnt vmcnt(0)')
    E('s_barrier')
    st(12)
    E(f's_cmp_lg_u32 s{sW}, 0'); E('s_cbranch_scc1 L_rwait')
    E('s_mov_b64 exec, 1')
    E(f'buffer_atomic_add v41, v40, {srd(SDBG)}, 0 offen sc0 sc1')
    E('s_waitcnt vmcnt(0)')
    st(13)
    E(f'v_readfirstlane_b32 s{sT1}, v41')
    E(f's_cmp_lt_u32 s{sT1}, 7'); E('s_cbranch_scc1 L_pollpre')
    E(f'buffer_store_dword v44, v{vOld+1}, {srd(SWS)}, s{sFL} offen sc1')
    E('s_branch L_rgo')
    E('L_pollpre:')
    E(f's_mov_b32 s{sLC}, 0x400000')
    E('L_poll:')
    E(f's_sub_u32 s{sLC}, s{sLC}, 1'); E('s_cbranch_scc1 L_rgo')
    if cfg.sleep: E(f's_sleep {cfg.sleep}')
    E(f'buffer_load_dword v41, v{vOld+1}, {srd(SWS)}, s{sFL} offen sc1')
    E('s_waitcnt vmcnt(0)')
    E(f'v_readfirstlane_b32 s{sT1}, v41')
    E(f's_cmp_eq_u32 s{sT1}, s{sOld}'); E('s_cbranch_scc1 L_poll')
    E('L_rgo:')
    E('s_mov_b64 exec, -1')
    E('L_rwait:')
    E('s_barrier')
    st(14)
    def loads(base, freg):
        E(f's_lshl_b32 s{sT0}, s{freg}, 10'); E(f's_add_u32 s{sT0}, s{sT0}, s{sPART}')
        for j in range(8):
            E(f'buffer_load_dwordx4 {vr(base+4*j)}, v{vLin}, {srd(SWS)}, s{sT0} offen sc1')
            if j < 7: E(f's_add_u32 s{sT0}, s{sT0}, {PART}')
    def task(base, freg):
        E(f's_mul_i32 s{sT0}, s{freg}, 43'); E(f's_lshr_b32 s{sT0}, s{sT0}, 8')
        E(f's_mul_i32 s{sT1}, s{sT0}, 6'); E(f's_sub_u32 s{sT1}, s{freg}, s{sT1}')
        E(f's_lshl_b32 s{sT0}, s{sT0}, 7'); E(f's_add_u32 s{sT0}, s{sT0}, s{sY}')
        E(f's_cmp_ge_u32 s{sT1}, 3'); E(f's_cselect_b32 s{sLC}, {64 - 3*16*1792}, 0'); E(f's_add_u32 s{sT0}, s{sT0}, s{sLC}')
        E(f's_mul_i32 s{sT1}, s{sT1}, {16*1792}'); E(f's_add_u32 s{sT0}, s{sT0}, s{sT1}')
        E(f's_mov_b32 s{sLC}, 0xffff0000')
        for j in range(8):
            E(f's_waitcnt vmcnt({7-j})')
            for r in range(4):
                src = base + 4 * j + r
                if j == 0:
                    E(f'v_lshlrev_b32 v{48+2*r}, 16, v{src}'); E(f'v_and_b32 v{49+2*r}, s{sLC}, v{src}')
                else:
                    E(f'v_lshlrev_b32 v46, 16, v{src}'); E(f'v_and_b32 v47, s{sLC}, v{src}')
                    E(f'v_pk_add_f32 {vr(48+2*r,2)}, {vr(48+2*r,2)}, v[46:47]')
        for r in range(4): E(f'v_cvt_pk_bf16_f32 v{base+r}, v{48+2*r}, v{49+2*r}')
        E(f'buffer_store_dwordx2 {vr(base,2)}, v42, {srd(SOUT)}, s{sT0} offen')
        E(f'buffer_store_dwordx2 {vr(base+2,2)}, v42, {srd(SOUT)}, s{sT0} offen offset:32')
    loads(64, sT2)
    E(f's_cmp_ge_u32 s{sT2}, 10'); E('s_cbranch_scc1 L_r1')
    E(f's_add_u32 s{sF2}, s{sT2}, 32')
    loads(96, sF2)
    task(96, sF2)
    E('L_r1:')
    task(64, sT2)
    if cfg.stamps:
        E('s_waitcnt vmcnt(0)')
        st(15)
        E('s_branch L_stamps')
    else:
        E('s_endpgm')
    return L

def kd(name, nv, ao):
    return ['.p2align 6', f'.amdhsa_kernel {name}', f'  .amdhsa_next_free_vgpr {nv}', '  .amdhsa_next_free_sgpr 102', f'  .amdhsa_accum_offset {ao}',
            '  .amdhsa_group_segment_fixed_size 0', '  .amdhsa_kernarg_size 104', '  .amdhsa_user_sgpr_count 2',
            '  .amdhsa_user_sgpr_kernarg_segment_ptr 1', '  .amdhsa_system_sgpr_workgroup_id_x 1', '.end_amdhsa_kernel']

def build(fname):
    hdr = [l for l in open('cdna_kernels/' + NAME + '.s.ref').read().split('\n') if l.startswith(';') and '@launch' not in l and 'Override' not in l and 'grid=ceil' not in l]
    L = hdr[:]
    L.append(f'; @launch grid=(256,1,1) block=(256,1,1) lds={LDS_TOTAL}')
    L += ['.amdgcn_target "amdgcn-amd-amdhsa--gfx950"', '.text', f'.globl {NAME}_kernel', '.p2align 8', f'.type {NAME}_kernel,@function', f'{NAME}_kernel:']
    L += ['s_cmp_ge_u32 s2, 256', 's_cbranch_scc1 L_exit', 's_bitcmp1_b32 s2, 3', 's_cbranch_scc0 ' + ('L_exit' if cfg.noA else 'L_pathA')] + (['s_branch L_exit'] if cfg.noB else [])
    L += path_B_text()
    L += reduce_tail()
    L += ['L_exit:', 's_endpgm', 'L_pathA:']
    L += path_A()
    if cfg.stamps:
        L += ['L_stamps:', 's_waitcnt lgkmcnt(0)', f's_add_u32 s{SWS}, s{SWS}, 0xc800000', f's_addc_u32 s{SWS+1}, s{SWS+1}, 0']
        if cfg.trace: L += ['s_lshl_b32 s58, s2, 12', 's_add_u32 s58, s58, 0x40000', 'v_lshlrev_b32 v40, 4, v0', f'buffer_store_dwordx4 v[2:5], v40, {srd(SWS)}, s58 offen']
        L += [
              's_lshl_b32 s58, s2, 7'] + ([f's_lshl_b32 s59, s{sW}, 15', 's_add_u32 s58, s58, s59'] if cfg.allw else []) + ['v_mov_b32 v40, s58', 'v_cmp_eq_u32 vcc, 0, ' + ('v1' if cfg.allw else 'v0'), 's_and_saveexec_b64 s[58:59], vcc', 's_cbranch_execz L_exit2']
        for k in range(16):
            L += [f'v_mov_b32 v42, s{sST+2*k}', f'v_mov_b32 v43, s{sST+2*k+1}', f'buffer_store_dwordx2 v[42:43], v40, {srd(SWS)}, 0 offen offset:{8*k}', 's_nop 1']
        L += ['L_exit2:', 's_endpgm']
    L += ['L_code_end:']
    L += ['.section .rodata,"a"'] + kd(NAME + '_kernel', 512, 256)
    if cfg.nomfma: L = [l for l in L if not l.startswith('v_mfma')]
    txt = '\n'.join(l if (l.startswith(';') or l.startswith('.') or l.endswith(':') or l.startswith('  ')) else '    ' + l for l in L) + '\n'
    open(fname, 'w').write(txt)

if __name__ == '__main__':
    out = sys.argv[1] if len(sys.argv) > 1 else 'cdna_kernels/' + NAME + '.s'
    for a in sys.argv[2:]:
        k, v = a.split('=')
        assert hasattr(cfg, k), k
        val = {'True': True, 'False': False}.get(v, int(v) if v.isdigit() else v)
        setattr(cfg, k, val.replace('+', ' ') if isinstance(val, str) else val)
    build(out)
```

```python
import sys, struct
NAME = 'concat_heads__gqa_block_cached__mha_block_cached__near_ridge'

class Cfg:
    stamps = False
    kvpol = 'nt'
    wpol = ''
    rot = True
    warm = 1
    earlyK = True
    noA = False
    noB = False
    nomfma = False
    ramp = 2
    estore = True
    sleep = 1
    pk = True
    codepf = False
    allw = False
    pvn = '1111101011111111'
    sn = '22112222'
    pvnA = 'x0111112221111111'
    snA = 'x00002221'
    expW = 1
    outpol = ''
    sync = 2
    parkO = 0
    pfK = 0
    pfpol = ''
    stA = False
    rampB = 4
    tailB = '111011'
    snB = '22122222'
    stB = False
    pro = 1
    tlb = False
    defer = False
    w3 = True
    word = '0123'
    fastq = True
    parkB = 0
    swap = True
    xb = 4
    gA = 1
    trace = False
    tailp = '110101'
    wl = 2
cfg = Cfg()

NQ = 6; QP = 4224; LEAD = 4
XB = 0; STAT = 49152; RING = 51200; RSZ = NQ * QP
LDS_TOTAL = RING + 4 * RSZ
PART = 43008
FLAGS = 256 * PART
SX, SW, SK, SV, SWO, SWS = 4, 8, 12, 16, 20, 24
sJ, sB, sW, sRS, sLC, sY, sPK, sPV, sT0, sT1, sT2, sU = range(28, 40)
sC = 40
sXC = 42
sFL, sPART, sXM, sBR = 46, 47, 48, 49
sTab = 50
sST = 64
SPF = 96
sRQ, sRO = 22, 23
sP1 = sY
SOUT = SV; SDBG = SX; sDO = sXM
vV, vWA, vWB, vOA, vK = 2, 6, 10, 14, 18
vX = 19
vTB = 22
vKB, vLin, vQW, vStW, vStR, vPW, vF6 = 26, 27, 28, 29, 30, 31, 32
vOW = 33
vTmp = 35
vM = 36
vSR = 48
vPF = 56
vXR = 60
vOld = 62; vZ = 63; vC1 = 19; vRdy = 20
vS = 64; vOUT = 160
aO = 96; aFR = 192; aONE = 248
M = lambda t: vM + 2 * t

def srd(n): return f's[{n}:{n+3}]'
def vr(b, n=4): return f'v[{b}:{b+n-1}]'
def ar(b, n=4): return f'a[{b}:{b+n-1}]'
MF = 'v_mfma_f32_16x16x32_bf16'

class Gen:
    def __init__(s, lab0):
        s.L = []; s.q = []; s.nlab = lab0
        s.stream = []
        s.pseq = 0; s.cseq = 0; s.freed = 0; s.owner = [-1] * NQ; s.tr = False; s.skipB = False; s.cold = []
    def plan(s, kinds, start, i0=0):
        for i, k in enumerate(kinds): s.stream.append((k, (start + i) % NQ, i0 + i))
    def E(s, t):
        s.L.append(t)
        if t == 's_waitcnt lgkmcnt(0)': s.freed = s.cseq
    def vm(s, t, tag):
        s.L.append(t); s.q.append(tag)
    def need(s, tag):
        idx = max(i for i, t in enumerate(s.q) if t == tag)
        n = len(s.q) - 1 - idx
        assert n <= 63, n
        return f's_waitcnt vmcnt({n})'
    def lab(s, p):
        s.nlab += 1; return f'L_{p}{s.nlab}'
    def tr_start(s):
        if cfg.trace and s.tr:
            s.L += ['s_mov_b32 m0, s100', 's_nop 0', 'v_writelane_b32 v42, s96, m0', 'v_writelane_b32 v43, s98, m0', 's_add_u32 s100, s100, 1', 's_memrealtime s[96:97]']
    def stamp(s, k):
        if cfg.stamps: s.E(f's_memrealtime s[{sST+2*k}:{sST+2*k+1}]')
    def capture(s, f, lab0=None):
        keep = s.L; s.L = []
        if lab0 is not None: s.nlab = lab0
        f(); t = s.L; s.L = keep
        return t
    def rolled(s, n, body, cnt=sLC):
        l0 = s.nlab
        texts = [s.capture(body, l0) for _ in range(n)]
        for t in texts[1:]:
            assert t == texts[0], 'loop iterations differ:\n' + '\n'.join(f'{a} | {b}' for a, b in zip(texts[0], t) if a != b)
        lb = s.lab('loop')
        s.L += [f's_mov_b32 s{cnt}, {n}', f'{lb}:'] + texts[0] + [f's_sub_u32 s{cnt}, s{cnt}, 1', f's_cmp_lg_u32 s{cnt}, 0', f's_cbranch_scc1 {lb}']
    def emit_item(s, it):
        if isinstance(it, str): s.E(it)
        elif it[0] == 'vm':
            if ' m0,' in s.L[-1]: s.L.append('s_nop 0')
            s.vm(it[1], it[2])
        elif it[0] == 'need':
            s.E(s.need(it[1]))
            if cfg.trace and s.tr: s.E('s_memrealtime s[98:99]')
    def emit_groups(s, G):
        for g in G:
            for it in g: s.emit_item(it)
    def interleave(s, mf, groups, fill=None, fstart=0):
        n = len(mf); g = len(groups)
        pos = {}
        for k in range(g):
            pos.setdefault(min(n - 1, (k * n) // max(g, 1)), []).append(k)
        fill = list(fill or []); nf = len(fill); done = 0
        for i, m in enumerate(mf):
            s.E(m)
            for k in pos.get(i, []):
                for it in groups[k]: s.emit_item(it)
            if i >= fstart:
                upto = (nf * (i - fstart + 1)) // (n - fstart)
                while done < upto or (done < nf and fill[done].startswith('s_cselect')):
                    s.L.append(fill[done])
                    if fill[done].startswith('buffer_'): s.q.append('misc')
                    done += 1
    @staticmethod
    def split(lst, n):
        cuts = [(len(lst) * i) // n for i in range(n + 1)]
        for k in range(1, n):
            while cuts[k] < len(lst) and lst[cuts[k]].startswith('s_cselect'): cuts[k] += 1
        return [lst[cuts[i]:max(cuts[i], cuts[i+1])] for i in range(n)]
    def gap(s, f, n, lo=0.0, hi=1.0):
        G = []
        for _ in range(n): G += s.prod()
        t = s.capture(f)
        pts = [i for i, x in enumerate(t) if (x.startswith('v_') or x.startswith('ds_')) and i > 0 and not t[i-1].startswith('s_cmp')]
        pos = {}
        for k in range(len(G)):
            fr = lo + (hi - lo) * (k + 0.5) / len(G)
            pos.setdefault(pts[min(len(pts) - 1, int(fr * len(pts)))], []).append(k)
        for i, x in enumerate(t):
            for k in pos.get(i, []):
                for it in G[k]: s.emit_item(it)
            s.L.append(x)

    def prod(s):
        kind, slot, idx = s.stream[s.pseq]
        assert s.owner[slot] < s.freed, (s.pseq, slot, s.owner[slot], s.freed)
        s.owner[slot] = s.pseq
        tag = ('q', s.pseq); s.pseq += 1
        if kind == 'WB' and s.skipB: return []
        G = [[f's_add_u32 m0, s{sRS}, {slot*QP}']]
        if kind == 'K':
            for p in range(4):
                G.append([('vm', f'buffer_load_dwordx4 v{vK}, {srd(SK)}, s{sPK} offen offset:{p*1024} {cfg.kvpol} lds', tag)])
                if p < 3: G[-1].append(f's_add_u32 m0, s{sRS}, {slot*QP + (p+1)*32}')
            G[-1].append(f's_add_u32 s{sPK}, s{sPK}, 0x4000')
        else:
            vo, sr, so, pol = {'V': (vV, SV, sPV, cfg.kvpol), 'WA': (vWA, SW, sTab + idx, cfg.wpol), 'WB': (vWB, SW, sTab + idx - 8, cfg.wpol)}[kind]
            for p in range(4):
                G.append([('vm', f'buffer_load_dwordx4 v{vo+p}, {srd(sr)}, s{so} offen offset:{p*1024} {pol} lds', tag)])
            if kind == 'V': G[-1].append(f's_add_u32 s{sPV}, s{sPV}, 0x4000')
        return G
    def x_loads(s, ms=range(4)):
        g = []
        for m in ms:
            for t in range(3):
                g += [f's_add_u32 m0, s{sXM}, {XB + (12*m + 2*t)*1024}', 's_nop 0',
                      f'buffer_load_dwordx4 v{vX+t}, {srd(SX)}, s{sXC+m} offen {cfg.wpol} lds']
        return g
    def table(s, lo, hi, n, rot, step, base):
        o = []
        if lo == 0:
            o += base + [f's_add_u32 s{sT2}, s{sT1}, {n*step}', f's_mul_i32 s{sT0}, s{rot[0]}, {rot[1]*step}', f's_add_u32 s{sTab}, s{sT0}, s{sT1}']
            lo = 1
        for k in range(lo, hi):
            o += [f's_add_u32 s{sT0}, s{sTab+k-1}, {step}', f's_cmp_ge_u32 s{sT0}, s{sT2}', f's_cselect_b32 s{sTab+k}, s{sT1}, s{sT0}']
        return o
    def wq_table(s, lo, hi): return s.table(lo, hi, 14, (sRQ, 2), 0x40000, [f's_lshl_b32 s{sT1}, s{sJ}, 10'])
    def wq_head(s): return [f'v_add_u32 v{vWA+p}, 512, v{vWA+p}' for p in range(4)]
    def wo_head(s): return [f'v_add_u32 v{vWA+p}, {256*896}, v{vWA+p}' for p in range(8)]
    def w_to_wo(s):
        o = [f's_mov_b32 s{SW}, s{SWO}', f's_mov_b32 s{SW+1}, s{SWO+1}']
        o += s.table(0, 8, 8, (sRO, 1), 28672, [f's_mul_i32 s{sT1}, s{sJ}, {512*896}'])
        o += [f'v_mov_b32 v{vWA+p}, v{vOA+p}' for p in range(4)]
        return o

    def tg_bufs(s, T, par, ylds, base):
        a = base + par * (16 + (4 * T if ylds else 0))
        return a, a + 16
    def tg_fetch(s, T, st, ymode, base, bar=False, dst=None):
        ylds = ymode is not None
        a, y = s.tg_bufs(T, st & 1, ylds, base)
        if dst is not None: a = dst
        kind, slot, idx = s.stream[s.cseq]
        assert kind != 'K'
        tag = ('q', s.cseq); s.cseq += 1
        if kind == 'WB' and s.skipB: return []
        g0 = [('need', tag)] + (['s_barrier'] if bar else [])
        o = slot * QP
        rd = [[f'ds_read_b64_tr_b16 {ar(a+4*d,2)}, v{vTB+d} offset:{o}', f'ds_read_b64_tr_b16 {ar(a+4*d+2,2)}, v{vTB+d} offset:{o+2048}'] for d in range(4)]
        if ymode == 'x': yr = [f'ds_read_b128 {ar(y+4*t)}, v{vXR+(st&1)} offset:{XB + ((st%14)>>1)*6144 + t*2048}' for t in range(T)]
        elif ymode == 'p': yr = [f'ds_read_b128 {ar(y+4*t)}, v{vLin} offset:{XB + ((st*T*1024) % 49152) + t*1024}' for t in range(T)]
        G = [g0 + rd[0]]
        if ylds:
            h = (T + 1) // 2
            G += [yr[:h], rd[1], yr[h:], rd[2], rd[3]]
        else:
            G += [rd[1], rd[2], rd[3]]
        return G
    def tg_step(s, T, st, acc, pref, nprod, ymode, ystat=None, lacc=None, base=aFR, extra=None, c0=False, fill=None, head=None, bar=False, src=None, nomf=False):
        ylds = ymode is not None
        a, y = s.tg_bufs(T, st & 1, ylds, base)
        if src is not None: a = src
        if not ylds: y = ystat
        s.E('s_waitcnt lgkmcnt(0)'); s.tr_start()
        for x in (head or []): s.E(x)
        mf = []
        for d in range(4):
            for t in range(T):
                c = vr(acc + (d * T + t) * 4)
                mf.append(f'{MF} {c}, {ar(a+4*d)}, {ar(y+4*t)}, {0 if c0 else c}')
        if lacc is not None:
            for t in range(T):
                c = vr(lacc + 4 * t)
                mf.append(f'{MF} {c}, {ar(aONE)}, {ar(y+4*t)}, {0 if c0 else c}')
        if nomf: mf = ['s_nop 7' if nomf == 1 else 's_nop 0']
        F = s.tg_fetch(T, st + 1, ymode, base, bar) if pref else []
        P = [extra] if extra else []
        for _ in range(nprod): P += s.prod()
        if lacc is not None: G = P + F
        elif F and P and not extra: G = F[:-1] + [F[-1] + P[0]] + P[1:]
        else: G = F + P
        s.interleave(mf, G, fill)
    def tg_phase(s, T, acc, nprods, ymode, lacc=None, base=aFR, c0=True, st0=0, first=True, last=True, bar=False, extra=None, heads=None, bars=(), fills=None, z=False):
        if first: s.emit_groups(s.tg_fetch(T, st0, ymode, base, bar))
        n = len(nprods)
        for i, np_ in enumerate(nprods):
            s.tg_step(T, st0 + i, acc, not (last and i == n - 1), np_, ymode, None, lacc, base,
                      extra=(extra or {}).get(st0 + i), c0=((c0 and first or z) and i == 0), head=(heads or {}).get(st0 + i), bar=(st0 + i + 1) in bars, fill=(fills or {}).get(st0 + i))
    def zero(s, base, n):
        for r in range(base, base + n): s.E(f'v_mov_b32 v{r}, 0')

    def k_fetch(s, dst):
        k0, slot, _ = s.stream[s.cseq]; k1, slot1, _ = s.stream[s.cseq + 1]
        assert k0 == 'K' and k1 == 'K' and slot1 == slot + 1
        s.cseq += 2
        tag = ('q', s.cseq - 1)
        rd = [f'ds_read_b128 {dst(k)}, v{vKB} offset:{slot*QP + k*64}' for k in range(8)]
        return [[('need', tag)] + rd[0:2], rd[2:4], rd[4:6], rd[6:8]]
    def s_phase(s, T, nprods, parked=0, hook=None, qb=0, fills=None, heads=None):
        buf = lambda tau: ((lambda k: vr(vOUT + tau * 32 + 4 * k)) if tau < parked else (lambda k: ar(aFR + (tau & 1) * 32 + 4 * k)))
        if not parked: s.emit_groups(s.k_fetch(buf(0)))
        for tau in range(8):
            if tau == 0 or tau >= parked: s.E('s_waitcnt lgkmcnt(0)'); s.tr_start()
            for x in (heads or {}).get(tau, []): s.E(x)
            mf = []
            for k in range(8):
                for t in range(T):
                    c = vr(vS + (tau * T + t) * 4)
                    qf = qb + ((t // 3) * 24 + k * 3 + (t % 3)) * 4
                    mf.append(f'{MF} {c}, {buf(tau)(k)}, {ar(qf)}, {c if k else 0}')
            F = s.k_fetch(buf(tau + 1)) if (tau < 7 and tau + 1 >= parked) else []
            P = []
            h = hook(tau) if hook else None
            if h: P += [h]
            for _ in range(nprods[tau]): P += s.prod()
            G = P + F
            while len(G) < 4: G = [[]] + G
            if tau > 0: G[-1] = G[-1] + s.tile_max(T, tau - 1)
            s.interleave(mf, G, (fills or {}).get(tau), 8 if tau == 0 else 0)
    def tile_max(s, T, tau):
        S = lambda t, r: vS + (tau * T + t) * 4 + r
        if tau == 0:
            return [f'v_max3_f32 v{M(t)}, v{S(t,0)}, v{S(t,1)}, v{S(t,2)}' for t in range(T)] + [f'v_max_f32 v{M(t)}, v{M(t)}, v{S(t,3)}' for t in range(T)]
        return [f'v_max3_f32 v{M(t)}, v{M(t)}, v{S(t,0)}, v{S(t,1)}' for t in range(T)] + [f'v_max3_f32 v{M(t)}, v{M(t)}, v{S(t,2)}, v{S(t,3)}' for t in range(T)]
    def sm_a(s, T):
        E = s.E
        for x in s.tile_max(T, 7): E(x)
        for op in ('v_permlane32_swap_b32', 'v_permlane16_swap_b32'):
            for t in range(T): E(f'v_mov_b32 v{M(t)+1}, v{M(t)}')
            E('s_nop 1')
            for t in range(T): E(f'{op} v{M(t)}, v{M(t)+1}')
            E('s_nop 1')
            for t in range(T): E(f'v_max_f32 v{M(t)}, v{M(t)}, v{M(t)+1}')
        for t in range(T): E(f'ds_write_b32 v{vStW}, v{M(t)} offset:{t*256}')
        E(f'v_mov_b32 v{vTmp}, 0x3f803f80')
        for r in range(4): E(f'v_accvgpr_write_b32 a{aONE+r}, v{vTmp}')
    def sm_rd(s, t0):
        for t in range(t0, t0 + 3): s.E(f'ds_read_b128 {vr(vSR+4*(t-t0))}, v{vStR} offset:{t*256}')
    def sm_b(s, t0):
        E = s.E
        for t in range(t0, t0 + 3):
            b = vSR + 4 * (t - t0); E(f'v_max3_f32 v{M(t)}, v{b}, v{b+1}, v{b+2}')
        for t in range(t0, t0 + 3):
            b = vSR + 4 * (t - t0); E(f'v_max_f32 v{M(t)}, v{M(t)}, v{b+3}')
        for t in range(t0, t0 + 3): E(f'v_mul_f32 v{M(t)}, s{sC}, v{M(t)}')
    def softmax(s, T):
        E = s.E
        E('s_nop 7'); E('s_nop 1')
        s.sm_a(T)
        E('s_waitcnt lgkmcnt(0)'); E('s_barrier')
        for t0 in range(0, T, 3):
            s.sm_rd(t0)
            E('s_waitcnt lgkmcnt(0)')
            s.sm_b(t0)
    def p_write(s, T, tau, t, reg):
        return f'ds_write_b64 v{vPW}, {vr(reg,2)} offset:{XB + 2*tau*T*1024 + t*1024}'
    def exp_pack(s, T, tau, dst=None, wtau=None):
        E = s.E
        for t0 in range(0, T, 3):
            regs = [(t, vS + (tau * T + t) * 4) for t in range(t0, t0 + 3)]
            for t, b in regs:
                if cfg.pk:
                    for r in (0, 2): E(f'v_pk_fma_f32 {vr(b+r,2)}, {vr(b+r,2)}, s[{sC}:{sC+1}], {vr(M(t),2)} op_sel_hi:[1,0,0] neg_lo:[0,0,1] neg_hi:[0,0,1]')
                else:
                    for r in range(4): E(f'v_fma_f32 v{b+r}, v{b+r}, s{sC}, -v{M(t)}')
            for t, b in regs:
                for r in range(4): E(f'v_exp_f32 v{b+r}, v{b+r}')
            E('s_nop 0')
            for t, b in regs:
                d = dst(t) if dst else b
                E(f'v_cvt_pk_bf16_f32 v{d}, v{b}, v{b+1}'); E(f'v_cvt_pk_bf16_f32 v{d+1}, v{b+2}, v{b+3}')
                if wtau is not None: E(s.p_write(T, wtau, t, d))
    def q_pack(s, acc, dst, nops=True):
        if nops: s.E('s_nop 7'); s.E('s_nop 1')
        for d in range(4):
            for t in range(3):
                a = acc + (d * 3 + t) * 4; o = dst + (d * 3 + t) * 2
                s.E(f'v_cvt_pk_bf16_f32 v{o}, v{a}, v{a+1}'); s.E(f'v_cvt_pk_bf16_f32 v{o+1}, v{a+2}, v{a+3}')
    def q_write(s, src, hd):
        for d in range(4):
            for t in range(3):
                o = src + (d * 3 + t) * 2
                s.E(f'ds_write_b64 v{vQW}, {vr(o,2)} offset:{XB + hd*24576 + (d>>1)*3072 + t*1024 + (d&1)*512}')
    def frag_read(s, n, off=0, dst=0, addr=vLin):
        for f in range(n): s.E(f'ds_read_b128 {ar(dst+4*f)}, v{addr} offset:{XB + off + f*1024}')
    def o_pack(s, T, acc, lacc, write_now, M=M, nops=True):
        E = s.E
        if nops: E('s_nop 7'); E('s_nop 1')
        for t in range(T): E(f'v_rcp_f32 v{M(t)}, v{lacc+4*t}')
        E('s_nop 0')
        W = []
        for kk in range(2):
            for t in range(T):
                a0 = acc + ((2 * kk) * T + t) * 4; a1 = acc + ((2 * kk + 1) * T + t) * 4
                for a in (a0, a1):
                    if cfg.pk:
                        for r in (0, 2): E(f'v_pk_mul_f32 {vr(a+r,2)}, {vr(a+r,2)}, {vr(M(t),2)} op_sel_hi:[1,0]')
                    else:
                        for r in range(4): E(f'v_mul_f32 v{a+r}, v{a+r}, v{M(t)}')
                E(f'v_cvt_pk_bf16_f32 v{a0}, v{a0}, v{a0+1}'); E(f'v_cvt_pk_bf16_f32 v{a0+1}, v{a0+2}, v{a0+3}')
                E(f'v_cvt_pk_bf16_f32 v{a0+2}, v{a1}, v{a1+1}'); E(f'v_cvt_pk_bf16_f32 v{a0+3}, v{a1+2}, v{a1+3}')
                w = f'ds_write_b128 v{vOW+kk}, {vr(a0)} offset:{XB + (t//3)*24576 + (t%3)*1024}'
                if write_now: E(w)
                else: W.append(w)
        return W
    def store_slice(s, sg):
        o = []
        for u in range(2):
            o.append(f's_add_u32 s{sT0}, s{sP1 if sg else sPART}, {u*3072}')
            for t in range(3):
                a0 = vOUT + ((sg * 4 + 2 * u) * 3 + t) * 4; a1 = a0 + 12
                o += [f'v_cvt_pk_bf16_f32 v{a0}, v{a0}, v{a0+1}', f'v_cvt_pk_bf16_f32 v{a0+1}, v{a0+2}, v{a0+3}',
                      f'v_cvt_pk_bf16_f32 v{a0+2}, v{a1}, v{a1+1}', f'v_cvt_pk_bf16_f32 v{a0+3}, v{a1+2}, v{a1+3}',
                      f'buffer_store_dwordx4 {vr(a0)}, v{vF6}, {srd(SWS)}, s{sT0} offen offset:{t*1024} sc1']
        return o
    def o_proj(s, *a, **k):
        if not cfg.w3: return s.o_proj1(*a, **k)
        st0 = (list(s.q), s.pseq, s.cseq, s.freed, list(s.owner))
        s.skipB = True
        t3 = s.capture(lambda: s.o_proj1(*a, **k))
        q3 = list(s.q)
        s.skipB = False
        s.q, s.pseq, s.cseq, s.freed, s.owner = st0
        tm = s.capture(lambda: s.o_proj1(*a, **k))
        for tag in set(t for t in s.q if t != 'misc' and t[1] >= s.cseq):
            d = lambda q: len(q) - 1 - max(i for i, t in enumerate(q) if t == tag)
            assert d(q3) >= d(s.q), (tag, d(q3), d(s.q))
        l3, lj = s.lab('w3_'), s.lab('wj_')
        s.L += [f's_cmp_eq_u32 s{sW}, 3', f's_cbranch_scc1 {l3}'] + tm + [f'{lj}:']
        s.cold += [f'{l3}:'] + t3 + [f's_branch {lj}']
    def o_proj1(s, nprods, yb, c0=False, extra=None, fills=None, heads=None, primed=False, parked=0):
        if not primed and not parked: s.emit_groups(s.tg_fetch(3, 0, None, aFR))
        for st in range(16):
            s.tg_step(3, st, vOUT + (st >> 3) * 48, st < 15 and st + 1 >= parked, nprods[st], None, yb + (st & 7) * 12, None, aFR, (extra or {}).get(st),
                      c0=(c0 and st in (0, 8)), fill=(fills or {}).get(st), head=(heads or {}).get(st), src=(aO + 16 * st if st < parked else None),
                      nomf=((1 if st == 8 else 2) if (s.skipB and st >= 8) else 0))
    def ready_add(s):
        return [] if cfg.sync == 1 else [f'buffer_atomic_add v{vC1}, v{vZ}, {srd(SDBG)}, s{sDO} offen sc1']
    def ready_load(s):
        return [] if cfg.sync == 1 else [f'buffer_load_dword v{vRdy}, v{vZ}, {srd(SDBG)}, s{sDO} offen sc1']
    def finish(s):
        E = s.E
        E('s_nop 7'); E('s_nop 1')
        if cfg.w3: E(f's_cmp_eq_u32 s{sW}, 3'); E('s_cbranch_scc1 L_reduce')
        for x in s.store_slice(1): E(x)
        E('s_branch L_reduce')
        s.L += s.cold

    def setup_ids(s, br):
        E = s.E
        E('v_and_b32 v1, 63, v0'); E('v_lshrrev_b32 v40, 6, v0')
        E(f's_and_b32 s{sJ}, s2, 7'); E(f's_lshr_b32 s{sB}, s2, 4')
        E(f'v_readfirstlane_b32 s{sW}, v40')
        E('v_lshrrev_b32 v43, 3, v1')
        E('v_and_b32 v47, 7, v1')
        if cfg.rot:
            E(f's_mul_i32 s{sRQ}, s{sB}, 7'); E(f's_lshr_b32 s{sRQ}, s{sRQ}, 4'); E(f's_lshr_b32 s{sRO}, s{sB}, 1')
        else:
            E(f's_mov_b32 s{sRQ}, 0'); E(f's_mov_b32 s{sRO}, 0')
        E(f's_mul_i32 s{sRS}, s{sW}, {RSZ}'); E(f's_add_u32 s{sRS}, s{sRS}, {RING}')
    def setup_x(s):
        E = s.E
        E('v_and_b32 v45, 1, v40'); E('v_lshl_add_u32 v46, v45, 3, v43'); E(f'v_mul_u32_u24 v{vX}, 896, v46')
        E('v_lshrrev_b32 v46, 1, v46'); E('v_xor_b32 v46, v46, v47'); E(f'v_lshl_add_u32 v{vX}, v46, 4, v{vX}')
        E(f'v_add_u32 v{vX+1}, 14336, v{vX}'); E(f'v_add_u32 v{vX+2}, 28672, v{vX}')
        E(f's_lshr_b32 s{sT0}, s{sW}, 1'); E(f's_mul_i32 s{sXM}, s{sT0}, 6'); E(f's_and_b32 s{sT1}, s{sW}, 1'); E(f's_add_u32 s{sXM}, s{sXM}, s{sT1}'); E(f's_lshl_b32 s{sXM}, s{sXM}, 10')
        E(f's_add_u32 s{sT1}, s{sT0}, s{sRQ}'); E(f's_mul_i32 s{sT2}, s{sB}, 43008')
        for m in range(4):
            E(f's_add_u32 s{sXC+m}, s{sT1}, {2*m}'); E(f's_cmp_ge_u32 s{sXC+m}, 7'); E(f's_cselect_b32 s{sLC}, 7, 0'); E(f's_sub_u32 s{sXC+m}, s{sXC+m}, s{sLC}')
            E(f's_lshl_b32 s{sXC+m}, s{sXC+m}, 7'); E(f's_add_u32 s{sXC+m}, s{sXC+m}, s{sT2}')
        E(f's_cmp_eq_u32 s{sT0}, 1'); E(f's_cselect_b32 s{sXC+3}, 0x40000000, s{sXC+3}')
    def setup_w(s):
        E = s.E
        E('v_and_b32 v45, 6, v43'); E('v_xor_b32 v44, v47, v45'); E('v_lshlrev_b32 v44, 4, v44')
        E('v_lshl_add_u32 v44, v40, 7, v44')
        E('v_lshrrev_b32 v45, 2, v43'); E('v_lshlrev_b32 v45, 3, v45'); E('v_and_b32 v46, 3, v43'); E('v_add_u32 v45, v45, v46')
        E(f'v_lshl_add_u32 v{vWA}, v45, 13, v44')
        for p in range(1, 4): E(f'v_add_u32 v{vWA+p}, {(16*(p&1)+4*(p>>1))*8192 - p*1024}, v{vWA}')
    def setup_k(s, br):
        E = s.E
        E('v_lshrrev_b32 v45, 5, v1'); E('v_and_b32 v46, 31, v1'); E('v_xor_b32 v46, v46, v45'); E('v_lshlrev_b32 v46, 4, v46')
        E('v_lshl_add_u32 v46, v45, 9, v46'); E(f'v_lshl_add_u32 v{vK}, v40, 12, v46')
        E(f's_lshl_b32 s{sPK}, s{sB}, 3'); E(f's_add_u32 s{sPK}, s{sPK}, s{sJ}')
        E(f's_add_u32 s{sPART}, s{sPK}, {128*br}'); E(f's_mul_i32 s{sPART}, s{sPART}, {PART}')
        E(f's_lshl_b32 s{sPK}, s{sPK}, {19 if br else 18}'); E(f's_mov_b32 s{sPV}, s{sPK}')
        E(f'v_lshlrev_b32 v{vLin}, 4, v1')
    def setup_rd(s, k=True):
        E = s.E
        E('v_and_b32 v41, 15, v1')
        E('v_lshrrev_b32 v42, 4, v1')
        E('v_lshrrev_b32 v45, 2, v41')
        E('v_and_b32 v46, 1, v42'); E('v_lshl_add_u32 v45, v46, 2, v45')
        E('v_lshrrev_b32 v46, 1, v42'); E('v_lshlrev_b32 v46, 10, v46'); E('v_lshl_add_u32 v46, v45, 7, v46')
        E('v_and_b32 v47, 3, v41'); E('v_lshl_add_u32 v46, v47, 3, v46'); E(f'v_add_u32 v46, s{sRS}, v46')
        E('v_lshrrev_b32 v45, 1, v45')
        for d in range(4):
            E(f'v_xor_b32 v47, {d}, v45'); E(f'v_lshl_add_u32 v{vTB+d}, v47, 5, v46')
        E('v_lshrrev_b32 v45, 3, v41'); E('v_lshlrev_b32 v45, 10, v45'); E('v_and_b32 v46, 7, v41'); E('v_lshl_add_u32 v45, v46, 7, v45')
        E('v_lshrrev_b32 v46, 1, v41'); E('v_xor_b32 v46, v46, v42'); E(f'v_lshl_add_u32 v{vXR}, v46, 4, v45'); E(f'v_xor_b32 v{vXR+1}, 64, v{vXR}')
        if k: s.setup_kb()
    def setup_kb(s):
        E = s.E
        E('v_lshrrev_b32 v45, 1, v41'); E(f'v_mul_u32_u24 v{vKB}, 1056, v45'); E('v_and_b32 v45, 1, v41')
        E(f'v_lshl_add_u32 v{vKB}, v45, 9, v{vKB}'); E('v_xor_b32 v45, v45, v42'); E(f'v_lshl_add_u32 v{vKB}, v45, 4, v{vKB}')
        E(f'v_add_u32 v{vKB}, s{sRS}, v{vKB}')
    def setup_late(s, T, br):
        E = s.E
        E(f'v_lshl_add_u32 v{vV}, v43, 9, v44')
        for p in range(1, 4): E(f'v_add_u32 v{vV+p}, {p*3072}, v{vV}')
        E(f'v_mul_u32_u24 v{vOA}, 896, v43'); E(f'v_add_u32 v{vOA}, v{vOA}, v44')
        for p in range(1, 4): E(f'v_add_u32 v{vOA+p}, {p*(8*896-1024)}, v{vOA}')
        E(f's_add_u32 s{sP1}, s{sPART}, 24576')
        E(f's_cmp_eq_u32 s{sW}, 3'); E(f's_cselect_b32 s{sLC}, 0x40000000, 512'); E(f's_cselect_b32 s{sP1}, 0x40000000, s{sP1}')
        E(f's_mov_b32 s{sU}, 0')
        if cfg.swap:
            if cfg.w3:
                E(f's_cselect_b32 s{sC}, 0, s{sB}'); E(f's_bitcmp1_b32 s{sC}, 0')
            else:
                E(f's_bitcmp1_b32 s{sB}, 0')
            E(f's_cselect_b32 s{sU}, s{sLC}, 0'); E(f's_cselect_b32 s{sLC}, 0, s{sLC}')
            E(f's_cselect_b32 s{sC}, s{sP1}, s{sPART}'); E(f's_cselect_b32 s{sP1}, s{sPART}, s{sP1}'); E(f's_mov_b32 s{sPART}, s{sC}')
        for p in range(4): E(f'v_add_u32 v{vWB+p}, s{sLC}, v{vOA+p}')
        for p in range(4): E(f'v_add_u32 v{vOA+p}, s{sU}, v{vOA+p}')
        E(f'v_mul_u32_u24 v45, 6144, v40'); E(f'v_add_u32 v{vF6}, v45, v{vLin}')
        E('v_lshrrev_b32 v46, 1, v42'); E('v_lshl_add_u32 v45, v46, 8, v45')
        E('v_lshl_add_u32 v45, v41, 4, v45'); E('v_and_b32 v47, 1, v42'); E(f'v_lshl_add_u32 v{vQW}, v47, 3, v45')
        E(f'v_mul_u32_u24 v45, {T*1024}, v46'); E('v_and_b32 v46, 1, v40'); E('v_lshl_add_u32 v46, v46, 1, v47')
        E('v_lshl_add_u32 v45, v46, 8, v45'); E('v_lshl_add_u32 v45, v41, 4, v45'); E('v_lshrrev_b32 v46, 1, v40'); E(f'v_lshl_add_u32 v{vPW}, v46, 3, v45')
        E(f'v_lshlrev_b32 v45, 4, v41'); E(f'v_add_u32 v{vStR}, {STAT}, v45'); E(f'v_lshl_add_u32 v{vStW}, v40, 2, v{vStR}')
        for kk in range(2):
            E(f's_lshl_b32 s{sLC}, s{sW}, 1'); E(f's_add_u32 s{sLC}, s{sLC}, {8+kk}'); E(f's_sub_u32 s{sLC}, s{sLC}, s{sRO}'); E(f's_and_b32 s{sLC}, s{sLC}, 7')
            E(f's_mul_i32 s{sLC}, s{sLC}, 3072'); E(f'v_add_u32 v{vOW+kk}, s{sLC}, v{vLin}')
        c = struct.unpack('<I', struct.pack('<f', 1.4426950408889634 / 16.0))[0]
        E(f's_mov_b32 s{sC}, {c:#x}'); E(f's_mov_b32 s{sC+1}, s{sC}'); E(f's_mov_b32 s{sBR}, {br}')
    def touch(s, br):
        E = s.E
        E(f's_lshl_b32 s{sFL}, s{sB}, 8'); E(f's_add_u32 s{sFL}, s{sFL}, {FLAGS + br*4096}')
        E(f'v_min_u32 v{vZ}, 1, v0'); E(f'v_lshlrev_b32 v{vZ}, 30, v{vZ}')
        E(f'buffer_load_dword v{vOld}, v{vZ}, {srd(SWS)}, s{sFL} offen sc1')
        if cfg.tlb:
            if br: E(f'buffer_load_dword v{vPF}, v{vZ}, {srd(SK)}, s{sPK} offen {cfg.kvpol}')
            E(f'buffer_load_dword v{vPF}, v{vZ}, {srd(SV)}, s{sPV} offen {cfg.kvpol}')
            E(f'buffer_load_dword v{vPF}, v{vZ}, {srd(SWS)}, s{sPART} offen sc1')
    def load_ptrs(s, br):
        E = s.E
        o = 40 * br
        E(f's_load_dwordx2 s[{SX}:{SX+1}], s[0:1], {o}')
        E(f's_load_dwordx2 s[{SW}:{SW+1}], s[0:1], {o+24}')
        E(f's_load_dwordx2 s[{SK}:{SK+1}], s[0:1], {o+8}')
        E(f's_load_dwordx2 s[{SV}:{SV+1}], s[0:1], {o+16}')
        E(f's_load_dwordx2 s[{SWO}:{SWO+1}], s[0:1], {o+32}')
        E(f's_load_dwordx2 s[{SWS}:{SWS+1}], s[0:1], 96')
        kv = 16 * (16 if br else 8) * 262144
        for r, n in ((SX, 16 * 43008), (SW, 448 * 8192), (SK, kv), (SV, kv), (SWS, FLAGS + 8192)):
            E(f's_mov_b32 s{r+2}, {n}'); E(f's_mov_b32 s{r+3}, 0x20000')
    def pf_loop(s, n):
        def body():
            for k in range(4):
                s.E(f'buffer_load_dwordx4 {vr(vPF)}, v{vLin}, {srd(SPF)}, s{sT2} offen')
                s.E(f's_add_u32 s{sT2}, s{sT2}, s{sT1}')
            s.E('s_waitcnt vmcnt(24)')
        s.rolled(n // 4, body)

F = NQ - LEAD
WQ = ['WA'] * 14; WO = ['WA'] * 8 + ['WB'] * 8
def WN(n, entry=LEAD, stay=False, nat=False):
    up = LEAD + cfg.wl - entry
    if stay: return [2] * up + [1] * (n - up)
    if nat: return [2] * up + [1] * (n - up - 6) + [int(c) for c in str(cfg.tailp).zfill(6)]
    return [2] * up + [1] * (n - up - cfg.wl - LEAD) + [0] * cfg.wl + [1] * LEAD
def ramp_np(n): return WN(n, cfg.ramp, nat=True)
pat = lambda p: [int(c) for c in str(p).lstrip('x')]

def q_both(s, started):
    E = s.E
    ex = {14 - LEAD - cfg.wl: s.wq_head()}
    if cfg.xb < 4: ex[0] = s.x_loads(range(cfg.xb, 4))
    s.tg_phase(3, vS, WN(14, started, True), 'x', bar=True, extra=ex, bars=((4 * cfg.xb,) if cfg.xb < 4 else ()))
    s.q_pack(vS, vS + 48)
    s.tg_phase(3, vS, WN(14, LEAD + cfg.wl, nat=True), 'x')
def q_misc(s):
    E = s.E
    E(f's_load_dwordx2 s[{SDBG}:{SDBG+1}], s[0:1], 88')
    for x in s.w_to_wo(): E(x)
    E(f's_lshl_b32 s{sT0}, s{sB}, 4'); E(f's_lshl_b32 s{sDO}, s{sBR}, 3'); E(f's_add_u32 s{sDO}, s{sDO}, s{sT0}'); E(f'v_mov_b32 v{vC1}, 1')
def q_exch(s):
    E = s.E
    q_misc(s)
    s.q_pack(vS, vS + 72)
    E('s_barrier')
    s.q_write(vS + 48, 0); s.q_write(vS + 72, 1)
    E('s_waitcnt lgkmcnt(0)'); E('s_barrier')
    E(f's_mov_b32 s{SDBG+2}, 256')

def path_B_text():
    s = Gen(1000); E = s.E
    pb = cfg.parkB; dfl = None
    for kinds, st in ((['K'] * (2 * pb), 0), (WQ, 2 * pb), (WQ, 2 * pb + 2), (['K'] * (16 - 2 * pb), 2 * pb + 4), (['V'] * 16, 2), (['K'] * 16, 0), (WO, 4)): s.plan(kinds, st)
    pk_ = cfg.parkO
    assert pk_ in (0, 6)
    if pk_: s.plan(WO[:6], 2); s.plan(['V'] * 16, 2); s.plan(WO[6:], 0, 6)
    else: s.plan(['V'] * 16, 2); s.plan(WO, 0)
    s.stamp(0)
    s.load_ptrs(1)
    if pb:
        s.setup_ids(1); s.setup_k(1)
        E('s_waitcnt lgkmcnt(0)')
        for _ in range(2): s.emit_groups(s.prod())
        s.touch(1); s.setup_x(); s.setup_w(); s.setup_rd(); s.setup_late(3, 1)
        for x in s.wq_table(0, 14): E(x)
        for _ in range(2 * pb - 2): s.emit_groups(s.prod())
        s.emit_groups([s.x_loads(range(cfg.xb))])
        if pb < 3:
            for _ in range(cfg.rampB): s.emit_groups(s.prod())
        for tau in range(pb):
            s.emit_groups(s.k_fetch(lambda k: vr(vOUT + tau * 32 + 4 * k)))
            if tau == 0 and pb == 3:
                E('s_waitcnt lgkmcnt(0)')
                for _ in range(cfg.rampB): s.emit_groups(s.prod())
        E('s_waitcnt lgkmcnt(0)')
    else:
        sb = (lambda k: s.stamp(k)) if cfg.stB else (lambda k: None)
        if cfg.pro == 0:
            s.setup_ids(1); s.setup_x(); s.setup_w()
            for x in s.wq_table(0, cfg.rampB): E(x)
            E('s_waitcnt lgkmcnt(0)')
            s.emit_groups([s.x_loads(range(cfg.xb))])
            for _ in range(cfg.rampB): s.emit_groups(s.prod())
            for x in s.wq_table(cfg.rampB, 14): E(x)
            s.setup_k(1); s.touch(1); s.setup_rd(); s.setup_late(3, 1)
        else:
            s.setup_ids(1); s.setup_x()
            sb(2)
            E('s_waitcnt lgkmcnt(0)')
            sb(3)
            s.emit_groups([s.x_loads(range(cfg.xb))])
            sb(4)
            s.setup_w()
            if cfg.defer:
                for x in s.wq_table(0, 8): E(x)
                for _ in range(2): s.emit_groups(s.prod())
                s.setup_rd(False)
                sb(5)
                for _ in range(cfg.rampB - 2): s.emit_groups(s.prod())
                def rest():
                    s.setup_k(1); s.touch(1); s.setup_kb(); s.setup_late(3, 1)
                dfl = {0: s.wq_table(8, 11), 1: s.wq_table(11, 14)}
                dfl.update(dict(enumerate(Gen.split(s.capture(rest), 11), 2)))
            else:
                for x in s.wq_table(0, 14): E(x)
                s.setup_k(1); s.touch(1); s.setup_rd(); s.setup_late(3, 1)
                sb(5)
                for _ in range(cfg.rampB): s.emit_groups(s.prod())
        sb(6)
        if cfg.stB:
            st0_ = s.stamp
            s.stamp = lambda k: (None if 2 <= k <= 6 else st0_(k))
    if cfg.trace:
        s.tr = True; E('s_mov_b32 s100, 0'); E('s_memrealtime s[96:97]'); E('v_mov_b32 v42, 0'); E('v_mov_b32 v43, 0')
    if cfg.fastq:
        assert not pb and cfg.xb == 4
        cap = s.capture
        s.tg_phase(3, vS, WN(14, cfg.rampB, True), 'x', bar=True, extra={14 - LEAD - cfg.wl: s.wq_head()}, last=False, fills=dfl)
        p1 = cap(lambda: s.q_pack(vS, vS + 48, False)); w1 = cap(lambda: s.q_write(vS + 48, 0)); r1 = cap(lambda: s.frag_read(24))
        fl = dict(enumerate(Gen.split(p1, 3), 15)); fl[22] = w1; fl.update(dict(enumerate(Gen.split(r1, 4), 24)))
        s.tg_phase(3, vOUT, [1] * 8 + pat(cfg.tailB), 'x', st0=14, first=False, z=True, fills=fl, heads={22: ['s_barrier'], 24: ['s_barrier']})
        s.stamp(1)
        p2 = cap(lambda: s.q_pack(vOUT, vOUT + 48, False)); w2 = cap(lambda: s.q_write(vOUT + 48, 1)); r2 = cap(lambda: s.frag_read(24, 24576, aO))
        fl = {0: p2, 1: w2, 2: cap(lambda: q_misc(s))}; fl.update(dict(enumerate(Gen.split(r2, 4), 3)))
        s.s_phase(3, pat(cfg.snB), fills=fl, heads={1: ['s_barrier'], 3: ['s_barrier', f's_mov_b32 s{SDBG+2}, 256']})
    else:
        q_both(s, cfg.rampB)
        s.stamp(1)
        def g0():
            q_exch(s); s.frag_read(24)
        q2 = s.capture(lambda: s.frag_read(24, 24576, aO))
        if pb:
            s.gap(g0, 1, 0.5, 1.0)
            sn = [1] + [0] * (pb - 1) + pat(cfg.sn)[:8 - pb]
        else:
            s.gap(g0, F); sn = pat(cfg.sn)
        s.s_phase(3, sn, parked=pb, fills=dict(enumerate(Gen.split(q2, 4), 2)))
    s.stamp(2)
    def g1():
        s.softmax(3)
        for tau in range(8): s.exp_pack(3, tau, wtau=tau)
        E('s_waitcnt lgkmcnt(0)'); E('s_barrier')
    s.gap(g1, F, 0.1, 0.9)
    s.stamp(3)
    s.tg_phase(3, vOUT, pat(cfg.pvn), 'p', lacc=vOUT + 48, heads={8: s.ready_add(), 12: ['s_barrier']})
    s.stamp(4)
    if cfg.trace: E('v_mov_b32 v44, v42'); E('v_mov_b32 v45, v43'); E('s_mov_b32 s100, 0')
    op = s.capture(lambda: s.o_pack(3, vOUT, vOUT + 48, True, M=lambda t: vSR + 2 * t, nops=False))
    of = s.capture(lambda: s.frag_read(24, 0, 0))
    fl = dict(enumerate(Gen.split(op, 2))); fl.update(dict(enumerate(Gen.split(of, 4), 3)))
    s.s_phase(3, [2] * 8, qb=aO, fills=fl, heads={3: ['s_barrier']})
    s.stamp(5)
    if cfg.expW:
        a_ = s.capture(lambda: s.sm_a(3)); r_ = s.capture(lambda: s.sm_rd(0)); b_ = s.capture(lambda: s.sm_b(0))
        exf = lambda: [s.exp_pack(3, tau, wtau=tau) for tau in range(8)]
        if cfg.expW == 2:
            fl = {1: a_, 2: r_, 3: b_}; fl.update(dict(enumerate(Gen.split(s.capture(exf), 12), 4))); hb = 2
        else:
            fl = {3: a_[:len(a_)//2], 4: a_[len(a_)//2:], 8: r_, 9: b_}; hb = 8
        if pk_:
            s.o_proj(WN(16, stay=True), 0, c0=True, fills=fl, heads={hb: ['s_barrier']}, extra={10: s.wo_head()})
            s.stamp(6)
            for k in range(6):
                s.emit_groups(s.tg_fetch(3, 0, None, aFR, dst=aO + 16 * k))
                if k in (1, 3):
                    E('s_waitcnt lgkmcnt(0)'); s.emit_groups(s.prod())
            E('s_waitcnt lgkmcnt(0)')
            s.gap(exf, 4, 0.0, 1.0)
        else:
            s.o_proj(WN(16, nat=True), 0, c0=True, fills=fl, heads={hb: ['s_barrier']})
            s.stamp(6)
            for x in s.wo_head(): E(x)
            if cfg.expW == 2:
                for _ in range(F): s.emit_groups(s.prod())
            else:
                s.gap(exf, F, 0.1, 0.9)
        E('s_waitcnt lgkmcnt(0)'); E('s_barrier')
    else:
        s.o_proj(WN(16, nat=True), 0, c0=True)
        s.stamp(6)
        for x in s.wo_head(): E(x)
        s.gap(g1, F, 0.1, 0.9)
    s.stamp(7)
    s.tg_phase(3, vS, pat(cfg.pvn), 'p', lacc=vS + 48, heads={4: s.ready_load(), 12: ['s_barrier']})
    s.stamp(8)
    def g2():
        s.o_pack(3, vS, vS + 48, True)
    s.gap(g2, F, 0.0, 0.6)
    if not pk_: s.emit_groups(s.tg_fetch(3, 0, None, aFR))
    E('s_waitcnt lgkmcnt(0)'); E('s_barrier')
    of = s.capture(lambda: s.frag_read(24, 0, 0))
    for x in of[:6]: E(x)
    s.stamp(9)
    fl = dict(enumerate(Gen.split(of[6:], 3))); fl.update(dict(enumerate(Gen.split(s.store_slice(0), 6), 9)))
    if pk_: s.o_proj([0] * 6 + [1] * 4 + [0] * 6, 0, fills=fl, parked=6)
    else: s.o_proj([1] * 10 + [0] * 6, 0, fills=fl, primed=True)
    for k in (10, 11): s.stamp(k)
    if cfg.trace:
        E('s_waitcnt lgkmcnt(0)'); s.tr_start()
        for i in range(4): E(f'v_mov_b32 v{2+i}, v{(44,45,42,43)[i]}')
    s.finish()
    return s.L

def path_A():
    s = Gen(2000); E = s.E
    park = 3 if cfg.earlyK else 0
    if park: pl = ((['K'] * 6, 0), (WQ, 0), (WQ, 2), (['K'] * 10, 4), (['V'] * 16, 2), (WO, 0), (WO, 4))
    else: pl = ((WQ, 0), (WQ, 2), (['K'] * 16, 4), (['V'] * 16, 2), (WO, 0), (WO, 4))
    for kinds, st in pl: s.plan(kinds, st)
    s.stamp(0)
    s.load_ptrs(0)
    if cfg.warm: E(f's_load_dwordx4 s[{sST+8}:{sST+11}], s[0:1], 64')
    s.setup_ids(0); s.setup_k(0)
    E('s_waitcnt lgkmcnt(0)')
    def warm():
        E(f's_mul_i32 s{sT0}, s{sB}, 28'); E(f's_mul_i32 s{sT1}, s{sW}, 7'); E(f's_add_u32 s{sT0}, s{sT0}, s{sT1}')
        E(f's_mov_b32 s{SPF+2}, {448*8192}'); E(f's_mov_b32 s{SPF+3}, 0x20000')
        for c in str(cfg.word).lstrip('x'):
            ptr, isq = ((sST + 8, True), (SW, True), (sST + 10, False), (SWO, False))[int(c)]
            E(f's_mov_b32 s{SPF}, s{ptr}'); E(f's_mov_b32 s{SPF+1}, s{ptr+1}')
            if isq:
                E(f's_lshl_b32 s{sT2}, s{sT0}, 13'); E(f's_lshl_b32 s{sT1}, s{sJ}, 10')
            else:
                E(f's_lshl_b32 s{sT2}, s{sT0}, 10'); E(f's_mul_i32 s{sT1}, s{sJ}, {512*896}')
            E(f's_add_u32 s{sT2}, s{sT2}, s{sT1}')
            for k in range(7):
                E(f'buffer_load_dwordx4 {vr(vPF)}, v{vLin}, {srd(SPF)}, s{sT2} offen')
                if k < 6: E(f's_add_u32 s{sT2}, s{sT2}, {8192 if isq else 1024}')
    sa = (lambda k: s.stamp(k)) if cfg.stA else (lambda k: None)
    sa(7)
    if cfg.warm == 1: warm()
    sa(8)
    if park:
        for _ in range(2): s.emit_groups(s.prod())
    s.touch(0); s.setup_x(); s.setup_w(); s.setup_rd(); s.setup_late(6, 0)
    for x in s.wq_table(0, 14): E(x)
    if park:
        for _ in range(4): s.emit_groups(s.prod())
    sa(9)
    if cfg.pfK:
        E(f's_mov_b32 s{sT2}, s{sPK}')
        for k in range(cfg.pfK):
            for p in range(4): E(f'buffer_load_dwordx4 {vr(vPF)}, v{vK}, {srd(SK)}, s{sT2} offen offset:{p*1024} {cfg.pfpol}')
            E(f's_add_u32 s{sT2}, s{sT2}, 0x4000')
    if cfg.warm == 2: warm()
    s.emit_groups([s.x_loads(range(cfg.xb))])
    sa(10)
    if park:
        for tau in range(3):
            s.emit_groups(s.k_fetch(lambda k: vr(vOUT + tau * 32 + 4 * k)))
            if tau == 0:
                E('s_waitcnt lgkmcnt(0)')
                for _ in range(cfg.ramp): s.emit_groups(s.prod())
        E('s_waitcnt lgkmcnt(0)')
    else:
        for _ in range(cfg.ramp): s.emit_groups(s.prod())
    s.stamp(1)
    q_both(s, cfg.ramp)
    s.stamp(2)
    def g0():
        q_exch(s); s.frag_read(48)
    if park:
        g0()
        s.s_phase(6, pat(cfg.snA), parked=park, heads={1: s.ready_add()})
    else:
        s.gap(g0, F)
        s.s_phase(6, pat(cfg.sn), heads={1: s.ready_add()})
    s.stamp(3)
    hold = lambda tau: (lambda t: vS + 48 + ((tau - 4) * 6 + t) * 2)
    def g1():
        s.softmax(6)
        for tau in range(4): s.exp_pack(6, tau, wtau=tau)
        for tau in range(4, 8): s.exp_pack(6, tau, dst=hold(tau))
        E('s_waitcnt lgkmcnt(0)'); E('s_barrier')
    s.gap(g1, cfg.gA, 0.1, 0.8)
    s.stamp(4)
    pv = pat(cfg.pvnA)
    s.tg_phase(6, vOUT, pv[:8], 'p', lacc=vS, base=0)
    E('s_barrier')
    for tau in range(4, 8):
        for t in range(6): E(s.p_write(6, tau - 4, t, hold(tau)(t)))
    E('s_waitcnt lgkmcnt(0)'); E('s_barrier')
    s.tg_phase(6, vOUT, pv[8:], 'p', lacc=vS, base=0, c0=False, st0=8, heads={9: s.ready_load()})
    s.stamp(5)
    Wl = []
    def g2():
        Wl.extend(s.o_pack(6, vOUT, vS, False))
    s.gap(g2, F, 0.0, 0.6)
    E('s_barrier')
    for w in Wl: E(w)
    s.emit_groups(s.tg_fetch(3, 0, None, aFR))
    E('s_waitcnt lgkmcnt(0)'); E('s_barrier')
    of = s.capture(lambda: s.frag_read(48))
    for x in of[:6]: E(x)
    s.stamp(6)
    fl = dict(enumerate(Gen.split(of[6:24], 3))); fl.update(dict(enumerate(Gen.split(of[24:], 8), 3)))
    s.o_proj([1] * 16, 0, c0=True, fills=fl, primed=True, extra={10: s.wo_head()})
    s.o_proj([1] * 10 + [0] * 6, aO, fills=dict(enumerate(Gen.split(s.store_slice(0), 6), 9)))
    for k in range(11 if cfg.stA else 7, 12): s.stamp(k)
    s.finish()
    return s.L

def reduce_tail():
    L = []; E = L.append
    sOld, sF2 = sPK, sPV
    def st(k):
        if cfg.stamps: E(f's_memrealtime s[{sST+2*k}:{sST+2*k+1}]')
    E('L_reduce:')
    E(f's_load_dwordx2 s[{SOUT}:{SOUT+1}], s[0:1], 80')
    E(f'v_readfirstlane_b32 s{sOld}, v{vOld}'); E(f'v_readfirstlane_b32 s{sT1}, v{vRdy}')
    E(f's_lshl_b32 s{sT0}, s{sBR}, 4'); E(f's_add_u32 s{sT0}, s{sT0}, s{sB}')
    E(f's_mul_i32 s{sPART}, s{sT0}, {8*PART}')
    E(f's_lshl_b32 s{sT2}, s{sJ}, 2'); E(f's_add_u32 s{sT2}, s{sT2}, s{sW}')
    E('v_and_b32 v42, 15, v1'); E('v_mul_u32_u24 v42, 1792, v42'); E('v_lshrrev_b32 v43, 4, v1'); E('v_lshl_add_u32 v42, v43, 3, v42')
    E(f's_mul_i32 s{sY}, s{sB}, {48*1792}'); E(f's_mul_i32 s{sT0}, s{sBR}, 896'); E(f's_add_u32 s{sY}, s{sY}, s{sT0}')
    E(f's_mov_b32 s{sLC}, 0x400000'); E(f'v_add_u32 v44, 1, v{vOld}')
    E('s_waitcnt vmcnt(0) lgkmcnt(0)')
    E('s_barrier')
    st(12)
    E(f's_mov_b32 s{SOUT+2}, {16*48*896*2}'); E(f's_mov_b32 s{SOUT+3}, 0x20000')
    E(f's_cmp_lg_u32 s{sW}, 0'); E('s_cbranch_scc1 L_rwait')
    if cfg.sync == 2:
        E('L_rdy:')
        E(f's_cmp_ge_u32 s{sT1}, 8'); E('s_cbranch_scc1 L_rdyok')
        E(f's_sub_u32 s{sLC}, s{sLC}, 1'); E('s_cbranch_scc1 L_rdyok')
        E('s_sleep 8')
        E(f'buffer_load_dword v{vRdy}, v{vZ}, {srd(SDBG)}, s{sDO} offen sc1')
        E('s_waitcnt vmcnt(0)')
        E(f'v_readfirstlane_b32 s{sT1}, v{vRdy}')
        E('s_branch L_rdy')
        E('L_rdyok:')
        E(f'buffer_atomic_add v{vC1}, v{vZ}, {srd(SWS)}, s{sFL} offen sc0 sc1')
        E(f's_add_u32 s{sOld}, s{sOld}, 7')
        E('s_waitcnt vmcnt(0)')
        E(f'v_readfirstlane_b32 s{sT1}, v{vC1}')
        E(f's_cmp_eq_u32 s{sT1}, s{sOld}'); E('s_cbranch_scc1 L_rwait')
        E(f's_add_u32 s{sOld}, s{sOld}, 1')
        E('L_poll:')
        E(f'buffer_load_dword v41, v{vZ}, {srd(SWS)}, s{sFL} offen sc1')
        E(f's_sub_u32 s{sLC}, s{sLC}, 1'); E('s_cbranch_scc1 L_rwait')
        E('s_waitcnt vmcnt(0)')
        E(f'v_readfirstlane_b32 s{sT1}, v41')
        if cfg.sleep: E(f's_sleep {cfg.sleep}')
        E(f's_cmp_lg_u32 s{sT1}, s{sOld}'); E('s_cbranch_scc1 L_poll')
    else:
        E(f'buffer_atomic_add v{vC1}, v{vZ}, {srd(SDBG)}, s{sDO} offen sc0 sc1')
        E('s_waitcnt vmcnt(0)')
        E(f'v_readfirstlane_b32 s{sT1}, v{vC1}')
        E(f's_cmp_lt_u32 s{sT1}, 7'); E('s_cbranch_scc1 L_poll')
        E(f'buffer_store_dword v44, v{vZ}, {srd(SWS)}, s{sFL} offen sc1')
        E('s_branch L_rwait')
        E('L_poll:')
        E(f'buffer_load_dword v41, v{vZ}, {srd(SWS)}, s{sFL} offen sc1')
        E(f's_sub_u32 s{sLC}, s{sLC}, 1'); E('s_cbranch_scc1 L_rwait')
        E('s_waitcnt vmcnt(0)')
        E(f'v_readfirstlane_b32 s{sT1}, v41')
        if cfg.sleep: E(f's_sleep {cfg.sleep}')
        E(f's_cmp_eq_u32 s{sT1}, s{sOld}'); E('s_cbranch_scc1 L_poll')
    E('L_rwait:')
    E('s_barrier')
    st(13); st(14)
    def loads(base, freg):
        E(f's_lshl_b32 s{sT0}, s{freg}, 10'); E(f's_add_u32 s{sT0}, s{sT0}, s{sPART}')
        for j in range(8):
            E(f'buffer_load_dwordx4 {vr(base+4*j)}, v{vLin}, {srd(SWS)}, s{sT0} offen sc1')
            if j < 7: E(f's_add_u32 s{sT0}, s{sT0}, {PART}')
    def task(base, freg, younger):
        E(f's_mul_i32 s{sT0}, s{freg}, 43'); E(f's_lshr_b32 s{sT0}, s{sT0}, 8')
        E(f's_mul_i32 s{sT1}, s{sT0}, 6'); E(f's_sub_u32 s{sT1}, s{freg}, s{sT1}')
        E(f's_lshl_b32 s{sT0}, s{sT0}, 7'); E(f's_add_u32 s{sT0}, s{sT0}, s{sY}')
        E(f's_cmp_ge_u32 s{sT1}, 3'); E(f's_cselect_b32 s{sLC}, {64 - 3*16*1792}, 0'); E(f's_add_u32 s{sT0}, s{sT0}, s{sLC}')
        E(f's_mul_i32 s{sT1}, s{sT1}, {16*1792}'); E(f's_add_u32 s{sT0}, s{sT0}, s{sT1}')
        E(f's_mov_b32 s{sLC}, 0xffff0000')
        for j in range(8):
            E(f's_waitcnt vmcnt({7-j+younger})')
            for r in range(4):
                src = base + 4 * j + r
                if j == 0:
                    E(f'v_lshlrev_b32 v{48+2*r}, 16, v{src}'); E(f'v_and_b32 v{49+2*r}, s{sLC}, v{src}')
                else:
                    t = 44 + 2 * (r & 1)
                    E(f'v_lshlrev_b32 v{t}, 16, v{src}'); E(f'v_and_b32 v{t+1}, s{sLC}, v{src}')
                    E(f'v_pk_add_f32 {vr(48+2*r,2)}, {vr(48+2*r,2)}, {vr(t,2)}')
        for r in range(4): E(f'v_cvt_pk_bf16_f32 v{base+r}, v{48+2*r}, v{49+2*r}')
        E(f'buffer_store_dwordx2 {vr(base,2)}, v42, {srd(SOUT)}, s{sT0} offen {cfg.outpol}')
        E(f'buffer_store_dwordx2 {vr(base+2,2)}, v42, {srd(SOUT)}, s{sT0} offen offset:32 {cfg.outpol}')
    E(f's_cmp_ge_u32 s{sT2}, 10'); E('s_cbranch_scc1 L_r1')
    E(f's_add_u32 s{sF2}, s{sT2}, 32')
    loads(96, sF2)
    loads(64, sT2)
    task(96, sF2, 8)
    task(64, sT2, 2)
    E('s_branch L_rend')
    E('L_r1:')
    loads(64, sT2)
    task(64, sT2, 0)
    E('L_rend:')
    if cfg.stamps:
        E('s_waitcnt vmcnt(0)')
        st(15)
        E('s_branch L_stamps')
    else:
        E('s_endpgm')
    return L

def kd(name, nv, ao):
    return ['.p2align 6', f'.amdhsa_kernel {name}', f'  .amdhsa_next_free_vgpr {nv}', '  .amdhsa_next_free_sgpr 102', f'  .amdhsa_accum_offset {ao}',
            '  .amdhsa_group_segment_fixed_size 0', '  .amdhsa_kernarg_size 104', '  .amdhsa_user_sgpr_count 2',
            '  .amdhsa_user_sgpr_kernarg_segment_ptr 1', '  .amdhsa_system_sgpr_workgroup_id_x 1', '.end_amdhsa_kernel']

def build(fname):
    hdr = [l for l in open('cdna_kernels/' + NAME + '.s.ref').read().split('\n') if l.startswith(';') and '@launch' not in l and 'Override' not in l and 'grid=ceil' not in l]
    L = hdr[:]
    L.append(f'; @launch grid=(256,1,1) block=(256,1,1) lds={LDS_TOTAL}')
    L += ['.amdgcn_target "amdgcn-amd-amdhsa--gfx950"', '.text', f'.globl {NAME}_kernel', '.p2align 8', f'.type {NAME}_kernel,@function', f'{NAME}_kernel:']
    L += ['s_cmp_ge_u32 s2, 256', 's_cbranch_scc1 L_exit', 's_bitcmp1_b32 s2, 3', 's_cbranch_scc0 ' + ('L_exit' if cfg.noA else 'L_pathA')] + (['s_branch L_exit'] if cfg.noB else [])
    L += path_B_text()
    L += reduce_tail()
    L += ['L_exit:', 's_endpgm', 'L_pathA:']
    L += path_A()
    if cfg.stamps:
        L += ['L_stamps:', 's_waitcnt lgkmcnt(0)', f's_add_u32 s{SWS}, s{SWS}, 0xc800000', f's_addc_u32 s{SWS+1}, s{SWS+1}, 0']
        if cfg.trace: L += ['s_lshl_b32 s58, s2, 12', 's_add_u32 s58, s58, 0x40000', 'v_lshlrev_b32 v40, 4, v0', f'buffer_store_dwordx4 v[2:5], v40, {srd(SWS)}, s58 offen']
        L += [
              's_lshl_b32 s58, s2, 7'] + ([f's_lshl_b32 s59, s{sW}, 15', 's_add_u32 s58, s58, s59'] if cfg.allw else []) + ['v_mov_b32 v40, s58', 'v_cmp_eq_u32 vcc, 0, ' + ('v1' if cfg.allw else 'v0'), 's_and_saveexec_b64 s[58:59], vcc', 's_cbranch_execz L_exit2']
        for k in range(16):
            L += [f'v_mov_b32 v42, s{sST+2*k}', f'v_mov_b32 v43, s{sST+2*k+1}', f'buffer_store_dwordx2 v[42:43], v40, {srd(SWS)}, 0 offen offset:{8*k}', 's_nop 1']
        L += ['L_exit2:', 's_endpgm']
    L += ['L_code_end:']
    L += ['.section .rodata,"a"'] + kd(NAME + '_kernel', 512, 256)
    if cfg.nomfma: L = [l for l in L if not l.startswith('v_mfma')]
    txt = '\n'.join(l if (l.startswith(';') or l.startswith('.') or l.endswith(':') or l.startswith('  ')) else '    ' + l for l in L) + '\n'
    open(fname, 'w').write(txt)

if __name__ == '__main__':
    out = sys.argv[1] if len(sys.argv) > 1 else 'cdna_kernels/' + NAME + '.s'
    for a in sys.argv[2:]:
        k, v = a.split('=')
        assert hasattr(cfg, k), k
        val = {'True': True, 'False': False}.get(v, int(v) if v.isdigit() else v)
        setattr(cfg, k, val.replace('+', ' ') if isinstance(val, str) else val)
    build(out)
```

```python
import sys, struct
NAME = 'concat_heads__gqa_block_cached__mha_block_cached__near_ridge'

class Cfg:
    stamps = False
    kvpol = 'nt'
    wpol = ''
    rot = True
    warm = 1
    earlyK = True
    noA = False
    noB = False
    nomfma = False
    ramp = 2
    estore = True
    sleep = 1
    pk = True
    codepf = 0
    allw = False
    pvn = '1111101011111111'
    sn = '22112222'
    pvnA = 'x0111112221111111'
    snA = 'x00002221'
    expW = 1
    outpol = ''
    sync = 2
    parkO = 0
    pfK = 0
    pfpol = ''
    stA = False
    rampB = 4
    tailB = '111011'
    snB = '22122222'
    stB = False
    pro = 1
    tlb = False
    defer = False
    parkA = 0
    endp = '3110'
    fsp = 6
    endA = True
    pollpol = 'sc1'
    rdpol = 'sc1'
    stpol = 'sc1'
    jit = 0
    w3 = True
    word = '0123'
    fastq = True
    parkB = 0
    swap = True
    xb = 4
    gA = 1
    trace = False
    tailp = '110101'
    wl = 2
cfg = Cfg()

NQ = 6; QP = 4224; LEAD = 4
XB = 0; STAT = 49152; RING = 51200; RSZ = NQ * QP
LDS_TOTAL = RING + 4 * RSZ
PART = 43008
FLAGS = 256 * PART
SX, SW, SK, SV, SWO, SWS = 4, 8, 12, 16, 20, 24
sJ, sB, sW, sRS, sLC, sY, sPK, sPV, sT0, sT1, sT2, sU = range(28, 40)
sC = 40
sXC = 42
sFL, sPART, sXM, sBR = 46, 47, 48, 49
sTab = 50
sST = 64
SPF = 96
sRQ, sRO = 22, 23
sP1 = sY
SOUT = SV; SDBG = SX; sDO = sXM
vV, vWA, vWB, vOA, vK = 2, 6, 10, 14, 18
vX = 19
vTB = 22
vKB, vLin, vQW, vStW, vStR, vPW, vF6 = 26, 27, 28, 29, 30, 31, 32
vOW = 33
vTmp = 35
vM = 36
vSR = 48
vPF = 56
vXR = 60
vOld = 62; vZ = 63; vC1 = 19; vRdy = 20
vS = 64; vOUT = 160
aO = 96; aFR = 192; aONE = 248
M = lambda t: vM + 2 * t

def srd(n): return f's[{n}:{n+3}]'
def vr(b, n=4): return f'v[{b}:{b+n-1}]'
def ar(b, n=4): return f'a[{b}:{b+n-1}]'
MF = 'v_mfma_f32_16x16x32_bf16'

class Gen:
    def __init__(s, lab0):
        s.L = []; s.q = []; s.nlab = lab0
        s.stream = []
        s.pseq = 0; s.cseq = 0; s.freed = 0; s.owner = [-1] * NQ; s.tr = False; s.skipB = False; s.cold = []
    def plan(s, kinds, start, i0=0):
        for i, k in enumerate(kinds): s.stream.append((k, (start + i) % NQ, i0 + i))
    def E(s, t):
        s.L.append(t)
        if t == 's_waitcnt lgkmcnt(0)': s.freed = s.cseq
    def vm(s, t, tag):
        s.L.append(t); s.q.append(tag)
    def need(s, tag):
        idx = max(i for i, t in enumerate(s.q) if t == tag)
        n = len(s.q) - 1 - idx
        assert n <= 63, n
        return f's_waitcnt vmcnt({n})'
    def lab(s, p):
        s.nlab += 1; return f'L_{p}{s.nlab}'
    def tr_start(s):
        if cfg.trace and s.tr:
            s.L += ['s_mov_b32 m0, s100', 's_nop 0', 'v_writelane_b32 v42, s96, m0', 'v_writelane_b32 v43, s98, m0', 's_add_u32 s100, s100, 1', 's_memrealtime s[96:97]']
    def stamp(s, k):
        if cfg.stamps: s.E(f's_memrealtime s[{sST+2*k}:{sST+2*k+1}]')
    def capture(s, f, lab0=None):
        keep = s.L; s.L = []
        if lab0 is not None: s.nlab = lab0
        f(); t = s.L; s.L = keep
        return t
    def rolled(s, n, body, cnt=sLC):
        l0 = s.nlab
        texts = [s.capture(body, l0) for _ in range(n)]
        for t in texts[1:]:
            assert t == texts[0], 'loop iterations differ:\n' + '\n'.join(f'{a} | {b}' for a, b in zip(texts[0], t) if a != b)
        lb = s.lab('loop')
        s.L += [f's_mov_b32 s{cnt}, {n}', f'{lb}:'] + texts[0] + [f's_sub_u32 s{cnt}, s{cnt}, 1', f's_cmp_lg_u32 s{cnt}, 0', f's_cbranch_scc1 {lb}']
    def emit_item(s, it):
        if isinstance(it, str): s.E(it)
        elif it[0] == 'vm':
            if ' m0,' in s.L[-1]: s.L.append('s_nop 0')
            s.vm(it[1], it[2])
        elif it[0] == 'need':
            s.E(s.need(it[1]))
            if cfg.trace and s.tr: s.E('s_memrealtime s[98:99]')
    def emit_groups(s, G):
        for g in G:
            for it in g: s.emit_item(it)
    def interleave(s, mf, groups, fill=None, fstart=0):
        n = len(mf); g = len(groups)
        pos = {}
        for k in range(g):
            pos.setdefault(min(n - 1, (k * n) // max(g, 1)), []).append(k)
        fill = list(fill or []); nf = len(fill); done = 0
        for i, m in enumerate(mf):
            s.E(m)
            for k in pos.get(i, []):
                for it in groups[k]: s.emit_item(it)
            if i >= fstart:
                upto = (nf * (i - fstart + 1)) // (n - fstart)
                while done < upto or (done < nf and fill[done].startswith('s_cselect')):
                    s.L.append(fill[done])
                    if fill[done].startswith('buffer_'): s.q.append('misc')
                    done += 1
    @staticmethod
    def split(lst, n):
        cuts = [(len(lst) * i) // n for i in range(n + 1)]
        for k in range(1, n):
            while cuts[k] < len(lst) and lst[cuts[k]].startswith('s_cselect'): cuts[k] += 1
        return [lst[cuts[i]:max(cuts[i], cuts[i+1])] for i in range(n)]
    def gap(s, f, n, lo=0.0, hi=1.0):
        G = []
        for _ in range(n): G += s.prod()
        t = s.capture(f)
        pts = [i for i, x in enumerate(t) if (x.startswith('v_') or x.startswith('ds_')) and i > 0 and not t[i-1].startswith('s_cmp')]
        pos = {}
        for k in range(len(G)):
            fr = lo + (hi - lo) * (k + 0.5) / len(G)
            pos.setdefault(pts[min(len(pts) - 1, int(fr * len(pts)))], []).append(k)
        for i, x in enumerate(t):
            for k in pos.get(i, []):
                for it in G[k]: s.emit_item(it)
            s.L.append(x)

    def prod(s):
        kind, slot, idx = s.stream[s.pseq]
        assert s.owner[slot] < s.freed, (s.pseq, slot, s.owner[slot], s.freed)
        s.owner[slot] = s.pseq
        tag = ('q', s.pseq); s.pseq += 1
        if kind == 'WB' and s.skipB: return []
        G = [[f's_add_u32 m0, s{sRS}, {slot*QP}']]
        if kind == 'K':
            for p in range(4):
                G.append([('vm', f'buffer_load_dwordx4 v{vK}, {srd(SK)}, s{sPK} offen offset:{p*1024} {cfg.kvpol} lds', tag)])
                if p < 3: G[-1].append(f's_add_u32 m0, s{sRS}, {slot*QP + (p+1)*32}')
            G[-1].append(f's_add_u32 s{sPK}, s{sPK}, 0x4000')
        else:
            vo, sr, so, pol = {'V': (vV, SV, sPV, cfg.kvpol), 'WA': (vWA, SW, sTab + idx, cfg.wpol), 'WB': (vWB, SW, sTab + idx - 8, cfg.wpol)}[kind]
            for p in range(4):
                G.append([('vm', f'buffer_load_dwordx4 v{vo+p}, {srd(sr)}, s{so} offen offset:{p*1024} {pol} lds', tag)])
            if kind == 'V': G[-1].append(f's_add_u32 s{sPV}, s{sPV}, 0x4000')
        return G
    def x_loads(s, ms=range(4)):
        g = []
        for m in ms:
            for t in range(3):
                g += [f's_add_u32 m0, s{sXM}, {XB + (12*m + 2*t)*1024}', 's_nop 0',
                      f'buffer_load_dwordx4 v{vX+t}, {srd(SX)}, s{sXC+m} offen {cfg.wpol} lds']
        return g
    def table(s, lo, hi, n, rot, step, base):
        o = []
        if lo == 0:
            o += base + [f's_add_u32 s{sT2}, s{sT1}, {n*step}', f's_mul_i32 s{sT0}, s{rot[0]}, {rot[1]*step}', f's_add_u32 s{sTab}, s{sT0}, s{sT1}']
            lo = 1
        for k in range(lo, hi):
            o += [f's_add_u32 s{sT0}, s{sTab+k-1}, {step}', f's_cmp_ge_u32 s{sT0}, s{sT2}', f's_cselect_b32 s{sTab+k}, s{sT1}, s{sT0}']
        return o
    def wq_table(s, lo, hi): return s.table(lo, hi, 14, (sRQ, 2), 0x40000, [f's_lshl_b32 s{sT1}, s{sJ}, 10'])
    def wq_head(s): return [f'v_add_u32 v{vWA+p}, 512, v{vWA+p}' for p in range(4)]
    def wo_head(s): return [f'v_add_u32 v{vWA+p}, {256*896}, v{vWA+p}' for p in range(8)]
    def w_to_wo(s):
        o = [f's_mov_b32 s{SW}, s{SWO}', f's_mov_b32 s{SW+1}, s{SWO+1}']
        o += s.table(0, 8, 8, (sRO, 1), 28672, [f's_mul_i32 s{sT1}, s{sJ}, {512*896}'])
        o += [f'v_mov_b32 v{vWA+p}, v{vOA+p}' for p in range(4)]
        return o

    def tg_bufs(s, T, par, ylds, base):
        a = base + par * (16 + (4 * T if ylds else 0))
        return a, a + 16
    def tg_fetch(s, T, st, ymode, base, bar=False, dst=None):
        ylds = ymode is not None
        a, y = s.tg_bufs(T, st & 1, ylds, base)
        if dst is not None: a = dst
        kind, slot, idx = s.stream[s.cseq]
        assert kind != 'K'
        tag = ('q', s.cseq); s.cseq += 1
        if kind == 'WB' and s.skipB: return []
        g0 = [('need', tag)] + (['s_barrier'] if bar else [])
        o = slot * QP
        rd = [[f'ds_read_b64_tr_b16 {ar(a+4*d,2)}, v{vTB+d} offset:{o}', f'ds_read_b64_tr_b16 {ar(a+4*d+2,2)}, v{vTB+d} offset:{o+2048}'] for d in range(4)]
        if ymode == 'x': yr = [f'ds_read_b128 {ar(y+4*t)}, v{vXR+(st&1)} offset:{XB + ((st%14)>>1)*6144 + t*2048}' for t in range(T)]
        elif ymode == 'p': yr = [f'ds_read_b128 {ar(y+4*t)}, v{vLin} offset:{XB + ((st*T*1024) % 49152) + t*1024}' for t in range(T)]
        G = [g0 + rd[0]]
        if ylds:
            h = (T + 1) // 2
            G += [yr[:h], rd[1], yr[h:], rd[2], rd[3]]
        else:
            G += [rd[1], rd[2], rd[3]]
        return G
    def tg_step(s, T, st, acc, pref, nprod, ymode, ystat=None, lacc=None, base=aFR, extra=None, c0=False, fill=None, head=None, bar=False, src=None, nomf=False):
        ylds = ymode is not None
        a, y = s.tg_bufs(T, st & 1, ylds, base)
        if src is not None: a = src
        if not ylds: y = ystat
        s.E('s_waitcnt lgkmcnt(0)'); s.tr_start()
        for x in (head or []): s.E(x)
        mf = []
        for d in range(4):
            for t in range(T):
                c = vr(acc + (d * T + t) * 4)
                mf.append(f'{MF} {c}, {ar(a+4*d)}, {ar(y+4*t)}, {0 if c0 else c}')
        if lacc is not None:
            for t in range(T):
                c = vr(lacc + 4 * t)
                mf.append(f'{MF} {c}, {ar(aONE)}, {ar(y+4*t)}, {0 if c0 else c}')
        if nomf: mf = ['s_nop 7' if nomf == 1 else 's_nop 0']
        F = s.tg_fetch(T, st + 1, ymode, base, bar) if pref else []
        P = [extra] if extra else []
        for _ in range(nprod): P += s.prod()
        if lacc is not None: G = P + F
        elif F and P and not extra: G = F[:-1] + [F[-1] + P[0]] + P[1:]
        else: G = F + P
        s.interleave(mf, G, fill)
    def tg_phase(s, T, acc, nprods, ymode, lacc=None, base=aFR, c0=True, st0=0, first=True, last=True, bar=False, extra=None, heads=None, bars=(), fills=None, z=False):
        if first: s.emit_groups(s.tg_fetch(T, st0, ymode, base, bar))
        n = len(nprods)
        for i, np_ in enumerate(nprods):
            s.tg_step(T, st0 + i, acc, not (last and i == n - 1), np_, ymode, None, lacc, base,
                      extra=(extra or {}).get(st0 + i), c0=((c0 and first or z) and i == 0), head=(heads or {}).get(st0 + i), bar=(st0 + i + 1) in bars, fill=(fills or {}).get(st0 + i))
    def zero(s, base, n):
        for r in range(base, base + n): s.E(f'v_mov_b32 v{r}, 0')

    def k_fetch(s, dst):
        k0, slot, _ = s.stream[s.cseq]; k1, slot1, _ = s.stream[s.cseq + 1]
        assert k0 == 'K' and k1 == 'K' and slot1 == slot + 1
        s.cseq += 2
        tag = ('q', s.cseq - 1)
        rd = [f'ds_read_b128 {dst(k)}, v{vKB} offset:{slot*QP + k*64}' for k in range(8)]
        return [[('need', tag)] + rd[0:2], rd[2:4], rd[4:6], rd[6:8]]
    def s_phase(s, T, nprods, parked=0, hook=None, qb=0, fills=None, heads=None):
        buf = lambda tau: ((lambda k: vr(vOUT + tau * 32 + 4 * k)) if tau < parked else (lambda k: ar(aFR + (tau & 1) * 32 + 4 * k)))
        if not parked: s.emit_groups(s.k_fetch(buf(0)))
        for tau in range(8):
            if tau == 0 or tau >= parked: s.E('s_waitcnt lgkmcnt(0)'); s.tr_start()
            for x in (heads or {}).get(tau, []): s.E(x)
            mf = []
            for k in range(8):
                for t in range(T):
                    c = vr(vS + (tau * T + t) * 4)
                    qf = qb + ((t // 3) * 24 + k * 3 + (t % 3)) * 4
                    mf.append(f'{MF} {c}, {buf(tau)(k)}, {ar(qf)}, {c if k else 0}')
            F = s.k_fetch(buf(tau + 1)) if (tau < 7 and tau + 1 >= parked) else []
            P = []
            h = hook(tau) if hook else None
            if h: P += [h]
            for _ in range(nprods[tau]): P += s.prod()
            G = P + F
            while len(G) < 4: G = [[]] + G
            if tau > 0: G[-1] = G[-1] + s.tile_max(T, tau - 1)
            s.interleave(mf, G, (fills or {}).get(tau), 8 if tau == 0 else 0)
    def tile_max(s, T, tau):
        S = lambda t, r: vS + (tau * T + t) * 4 + r
        if tau == 0:
            return [f'v_max3_f32 v{M(t)}, v{S(t,0)}, v{S(t,1)}, v{S(t,2)}' for t in range(T)] + [f'v_max_f32 v{M(t)}, v{M(t)}, v{S(t,3)}' for t in range(T)]
        return [f'v_max3_f32 v{M(t)}, v{M(t)}, v{S(t,0)}, v{S(t,1)}' for t in range(T)] + [f'v_max3_f32 v{M(t)}, v{M(t)}, v{S(t,2)}, v{S(t,3)}' for t in range(T)]
    def sm_a(s, T):
        E = s.E
        for x in s.tile_max(T, 7): E(x)
        for op in ('v_permlane32_swap_b32', 'v_permlane16_swap_b32'):
            for t in range(T): E(f'v_mov_b32 v{M(t)+1}, v{M(t)}')
            E('s_nop 1')
            for t in range(T): E(f'{op} v{M(t)}, v{M(t)+1}')
            E('s_nop 1')
            for t in range(T): E(f'v_max_f32 v{M(t)}, v{M(t)}, v{M(t)+1}')
        for t in range(T): E(f'ds_write_b32 v{vStW}, v{M(t)} offset:{t*256}')
        E(f'v_mov_b32 v{vTmp}, 0x3f803f80')
        for r in range(4): E(f'v_accvgpr_write_b32 a{aONE+r}, v{vTmp}')
    def sm_rd(s, t0):
        for t in range(t0, t0 + 3): s.E(f'ds_read_b128 {vr(vSR+4*(t-t0))}, v{vStR} offset:{t*256}')
    def sm_b(s, t0):
        E = s.E
        for t in range(t0, t0 + 3):
            b = vSR + 4 * (t - t0); E(f'v_max3_f32 v{M(t)}, v{b}, v{b+1}, v{b+2}')
        for t in range(t0, t0 + 3):
            b = vSR + 4 * (t - t0); E(f'v_max_f32 v{M(t)}, v{M(t)}, v{b+3}')
        for t in range(t0, t0 + 3): E(f'v_mul_f32 v{M(t)}, s{sC}, v{M(t)}')
    def softmax(s, T):
        E = s.E
        E('s_nop 7'); E('s_nop 1')
        s.sm_a(T)
        E('s_waitcnt lgkmcnt(0)'); E('s_barrier')
        for t0 in range(0, T, 3):
            s.sm_rd(t0)
            E('s_waitcnt lgkmcnt(0)')
            s.sm_b(t0)
    def p_write(s, T, tau, t, reg):
        return f'ds_write_b64 v{vPW}, {vr(reg,2)} offset:{XB + 2*tau*T*1024 + t*1024}'
    def exp_pack(s, T, tau, dst=None, wtau=None):
        E = s.E
        for t0 in range(0, T, 3):
            regs = [(t, vS + (tau * T + t) * 4) for t in range(t0, t0 + 3)]
            for t, b in regs:
                if cfg.pk:
                    for r in (0, 2): E(f'v_pk_fma_f32 {vr(b+r,2)}, {vr(b+r,2)}, s[{sC}:{sC+1}], {vr(M(t),2)} op_sel_hi:[1,0,0] neg_lo:[0,0,1] neg_hi:[0,0,1]')
                else:
                    for r in range(4): E(f'v_fma_f32 v{b+r}, v{b+r}, s{sC}, -v{M(t)}')
            for t, b in regs:
                for r in range(4): E(f'v_exp_f32 v{b+r}, v{b+r}')
            E('s_nop 0')
            for t, b in regs:
                d = dst(t) if dst else b
                E(f'v_cvt_pk_bf16_f32 v{d}, v{b}, v{b+1}'); E(f'v_cvt_pk_bf16_f32 v{d+1}, v{b+2}, v{b+3}')
                if wtau is not None: E(s.p_write(T, wtau, t, d))
    def q_pack(s, acc, dst, nops=True):
        if nops: s.E('s_nop 7'); s.E('s_nop 1')
        for d in range(4):
            for t in range(3):
                a = acc + (d * 3 + t) * 4; o = dst + (d * 3 + t) * 2
                s.E(f'v_cvt_pk_bf16_f32 v{o}, v{a}, v{a+1}'); s.E(f'v_cvt_pk_bf16_f32 v{o+1}, v{a+2}, v{a+3}')
    def q_write(s, src, hd):
        for d in range(4):
            for t in range(3):
                o = src + (d * 3 + t) * 2
                s.E(f'ds_write_b64 v{vQW}, {vr(o,2)} offset:{XB + hd*24576 + (d>>1)*3072 + t*1024 + (d&1)*512}')
    def frag_read(s, n, off=0, dst=0, addr=vLin):
        for f in range(n): s.E(f'ds_read_b128 {ar(dst+4*f)}, v{addr} offset:{XB + off + f*1024}')
    def o_pack(s, T, acc, lacc, write_now, M=M, nops=True):
        E = s.E
        if nops: E('s_nop 7'); E('s_nop 1')
        for t in range(T): E(f'v_rcp_f32 v{M(t)}, v{lacc+4*t}')
        E('s_nop 0')
        W = []
        for kk in range(2):
            for t in range(T):
                a0 = acc + ((2 * kk) * T + t) * 4; a1 = acc + ((2 * kk + 1) * T + t) * 4
                for a in (a0, a1):
                    if cfg.pk:
                        for r in (0, 2): E(f'v_pk_mul_f32 {vr(a+r,2)}, {vr(a+r,2)}, {vr(M(t),2)} op_sel_hi:[1,0]')
                    else:
                        for r in range(4): E(f'v_mul_f32 v{a+r}, v{a+r}, v{M(t)}')
                E(f'v_cvt_pk_bf16_f32 v{a0}, v{a0}, v{a0+1}'); E(f'v_cvt_pk_bf16_f32 v{a0+1}, v{a0+2}, v{a0+3}')
                E(f'v_cvt_pk_bf16_f32 v{a0+2}, v{a1}, v{a1+1}'); E(f'v_cvt_pk_bf16_f32 v{a0+3}, v{a1+2}, v{a1+3}')
                w = f'ds_write_b128 v{vOW+kk}, {vr(a0)} offset:{XB + (t//3)*24576 + (t%3)*1024}'
                if write_now: E(w)
                else: W.append(w)
        return W
    def store_slice(s, sg):
        o = []
        for u in range(2):
            o.append(f's_add_u32 s{sT0}, s{sP1 if sg else sPART}, {u*3072}')
            for t in range(3):
                a0 = vOUT + ((sg * 4 + 2 * u) * 3 + t) * 4; a1 = a0 + 12
                o += [f'v_cvt_pk_bf16_f32 v{a0}, v{a0}, v{a0+1}', f'v_cvt_pk_bf16_f32 v{a0+1}, v{a0+2}, v{a0+3}',
                      f'v_cvt_pk_bf16_f32 v{a0+2}, v{a1}, v{a1+1}', f'v_cvt_pk_bf16_f32 v{a0+3}, v{a1+2}, v{a1+3}',
                      f'buffer_store_dwordx4 {vr(a0)}, v{vF6}, {srd(SWS)}, s{sT0} offen offset:{t*1024} {cfg.stpol}']
        return o
    def o_proj(s, *a, **k):
        if not cfg.w3: return s.o_proj1(*a, **k)
        st0 = (list(s.q), s.pseq, s.cseq, s.freed, list(s.owner))
        s.skipB = True
        t3 = s.capture(lambda: s.o_proj1(*a, **k))
        q3 = list(s.q)
        s.skipB = False
        s.q, s.pseq, s.cseq, s.freed, s.owner = st0
        tm = s.capture(lambda: s.o_proj1(*a, **k))
        for tag in set(t for t in s.q if t != 'misc' and t[1] >= s.cseq):
            d = lambda q: len(q) - 1 - max(i for i, t in enumerate(q) if t == tag)
            assert d(q3) >= d(s.q), (tag, d(q3), d(s.q))
        l3, lj = s.lab('w3_'), s.lab('wj_')
        s.L += [f's_cmp_eq_u32 s{sW}, 3', f's_cbranch_scc1 {l3}'] + tm + [f'{lj}:']
        s.cold += [f'{l3}:'] + t3 + [f's_branch {lj}']
    def o_proj1(s, nprods, yb, c0=False, extra=None, fills=None, heads=None, primed=False, parked=0):
        if not primed and not parked: s.emit_groups(s.tg_fetch(3, 0, None, aFR))
        for st in range(16):
            s.tg_step(3, st, vOUT + (st >> 3) * 48, st < 15 and st + 1 >= parked, nprods[st], None, yb + (st & 7) * 12, None, aFR, (extra or {}).get(st),
                      c0=(c0 and st in (0, 8)), fill=(fills or {}).get(st), head=(heads or {}).get(st), src=(aO + 16 * st if st < parked else None),
                      nomf=((1 if st == 8 else 2) if (s.skipB and st >= 8) else 0))
    def ready_add(s):
        return [] if cfg.sync == 1 else [f'buffer_atomic_add v{vC1}, v{vZ}, {srd(SDBG)}, s{sDO} offen sc1']
    def ready_load(s):
        return [] if cfg.sync == 1 else [f'buffer_load_dword v{vRdy}, v{vZ}, {srd(SDBG)}, s{sDO} offen sc1']
    def finish(s):
        E = s.E
        E('s_nop 7'); E('s_nop 1')
        if cfg.w3: E(f's_cmp_eq_u32 s{sW}, 3'); E('s_cbranch_scc1 L_reduce')
        for x in s.store_slice(1): E(x)
        E('s_branch L_reduce')
        s.L += s.cold

    def setup_ids(s, br):
        E = s.E
        E('v_and_b32 v1, 63, v0'); E('v_lshrrev_b32 v40, 6, v0')
        E(f's_and_b32 s{sJ}, s2, 7'); E(f's_lshr_b32 s{sB}, s2, 4')
        E(f'v_readfirstlane_b32 s{sW}, v40')
        E('v_lshrrev_b32 v43, 3, v1')
        E('v_and_b32 v47, 7, v1')
        if cfg.rot:
            E(f's_mul_i32 s{sRQ}, s{sB}, 7'); E(f's_lshr_b32 s{sRQ}, s{sRQ}, 4'); E(f's_lshr_b32 s{sRO}, s{sB}, 1')
        else:
            E(f's_mov_b32 s{sRQ}, 0'); E(f's_mov_b32 s{sRO}, 0')
        E(f's_mul_i32 s{sRS}, s{sW}, {RSZ}'); E(f's_add_u32 s{sRS}, s{sRS}, {RING}')
    def setup_x(s):
        E = s.E
        E('v_and_b32 v45, 1, v40'); E('v_lshl_add_u32 v46, v45, 3, v43'); E(f'v_mul_u32_u24 v{vX}, 896, v46')
        E('v_lshrrev_b32 v46, 1, v46'); E('v_xor_b32 v46, v46, v47'); E(f'v_lshl_add_u32 v{vX}, v46, 4, v{vX}')
        E(f'v_add_u32 v{vX+1}, 14336, v{vX}'); E(f'v_add_u32 v{vX+2}, 28672, v{vX}')
        E(f's_lshr_b32 s{sT0}, s{sW}, 1'); E(f's_mul_i32 s{sXM}, s{sT0}, 6'); E(f's_and_b32 s{sT1}, s{sW}, 1'); E(f's_add_u32 s{sXM}, s{sXM}, s{sT1}'); E(f's_lshl_b32 s{sXM}, s{sXM}, 10')
        E(f's_add_u32 s{sT1}, s{sT0}, s{sRQ}'); E(f's_mul_i32 s{sT2}, s{sB}, 43008')
        for m in range(4):
            E(f's_add_u32 s{sXC+m}, s{sT1}, {2*m}'); E(f's_cmp_ge_u32 s{sXC+m}, 7'); E(f's_cselect_b32 s{sLC}, 7, 0'); E(f's_sub_u32 s{sXC+m}, s{sXC+m}, s{sLC}')
            E(f's_lshl_b32 s{sXC+m}, s{sXC+m}, 7'); E(f's_add_u32 s{sXC+m}, s{sXC+m}, s{sT2}')
        E(f's_cmp_eq_u32 s{sT0}, 1'); E(f's_cselect_b32 s{sXC+3}, 0x40000000, s{sXC+3}')
    def setup_w(s):
        E = s.E
        E('v_and_b32 v45, 6, v43'); E('v_xor_b32 v44, v47, v45'); E('v_lshlrev_b32 v44, 4, v44')
        E('v_lshl_add_u32 v44, v40, 7, v44')
        E('v_lshrrev_b32 v45, 2, v43'); E('v_lshlrev_b32 v45, 3, v45'); E('v_and_b32 v46, 3, v43'); E('v_add_u32 v45, v45, v46')
        E(f'v_lshl_add_u32 v{vWA}, v45, 13, v44')
        for p in range(1, 4): E(f'v_add_u32 v{vWA+p}, {(16*(p&1)+4*(p>>1))*8192 - p*1024}, v{vWA}')
    def setup_k(s, br):
        E = s.E
        E('v_lshrrev_b32 v45, 5, v1'); E('v_and_b32 v46, 31, v1'); E('v_xor_b32 v46, v46, v45'); E('v_lshlrev_b32 v46, 4, v46')
        E('v_lshl_add_u32 v46, v45, 9, v46'); E(f'v_lshl_add_u32 v{vK}, v40, 12, v46')
        E(f's_lshl_b32 s{sPK}, s{sB}, 3'); E(f's_add_u32 s{sPK}, s{sPK}, s{sJ}')
        E(f's_add_u32 s{sPART}, s{sPK}, {128*br}'); E(f's_mul_i32 s{sPART}, s{sPART}, {PART}')
        E(f's_lshl_b32 s{sPK}, s{sPK}, {19 if br else 18}'); E(f's_mov_b32 s{sPV}, s{sPK}')
        E(f'v_lshlrev_b32 v{vLin}, 4, v1')
    def setup_rd(s, k=True):
        E = s.E
        E('v_and_b32 v41, 15, v1')
        E('v_lshrrev_b32 v42, 4, v1')
        E('v_lshrrev_b32 v45, 2, v41')
        E('v_and_b32 v46, 1, v42'); E('v_lshl_add_u32 v45, v46, 2, v45')
        E('v_lshrrev_b32 v46, 1, v42'); E('v_lshlrev_b32 v46, 10, v46'); E('v_lshl_add_u32 v46, v45, 7, v46')
        E('v_and_b32 v47, 3, v41'); E('v_lshl_add_u32 v46, v47, 3, v46'); E(f'v_add_u32 v46, s{sRS}, v46')
        E('v_lshrrev_b32 v45, 1, v45')
        for d in range(4):
            E(f'v_xor_b32 v47, {d}, v45'); E(f'v_lshl_add_u32 v{vTB+d}, v47, 5, v46')
        E('v_lshrrev_b32 v45, 3, v41'); E('v_lshlrev_b32 v45, 10, v45'); E('v_and_b32 v46, 7, v41'); E('v_lshl_add_u32 v45, v46, 7, v45')
        E('v_lshrrev_b32 v46, 1, v41'); E('v_xor_b32 v46, v46, v42'); E(f'v_lshl_add_u32 v{vXR}, v46, 4, v45'); E(f'v_xor_b32 v{vXR+1}, 64, v{vXR}')
        if k: s.setup_kb()
    def setup_kb(s):
        E = s.E
        E('v_lshrrev_b32 v45, 1, v41'); E(f'v_mul_u32_u24 v{vKB}, 1056, v45'); E('v_and_b32 v45, 1, v41')
        E(f'v_lshl_add_u32 v{vKB}, v45, 9, v{vKB}'); E('v_xor_b32 v45, v45, v42'); E(f'v_lshl_add_u32 v{vKB}, v45, 4, v{vKB}')
        E(f'v_add_u32 v{vKB}, s{sRS}, v{vKB}')
    def setup_late(s, T, br):
        E = s.E
        E(f'v_lshl_add_u32 v{vV}, v43, 9, v44')
        for p in range(1, 4): E(f'v_add_u32 v{vV+p}, {p*3072}, v{vV}')
        E(f'v_mul_u32_u24 v{vOA}, 896, v43'); E(f'v_add_u32 v{vOA}, v{vOA}, v44')
        for p in range(1, 4): E(f'v_add_u32 v{vOA+p}, {p*(8*896-1024)}, v{vOA}')
        E(f's_add_u32 s{sP1}, s{sPART}, 24576')
        E(f's_cmp_eq_u32 s{sW}, 3'); E(f's_cselect_b32 s{sLC}, 0x40000000, 512'); E(f's_cselect_b32 s{sP1}, 0x40000000, s{sP1}')
        E(f's_mov_b32 s{sU}, 0')
        if cfg.swap:
            if cfg.w3:
                E(f's_cselect_b32 s{sC}, 0, s{sB}'); E(f's_bitcmp1_b32 s{sC}, 0')
            else:
                E(f's_bitcmp1_b32 s{sB}, 0')
            E(f's_cselect_b32 s{sU}, s{sLC}, 0'); E(f's_cselect_b32 s{sLC}, 0, s{sLC}')
            E(f's_cselect_b32 s{sC}, s{sP1}, s{sPART}'); E(f's_cselect_b32 s{sP1}, s{sPART}, s{sP1}'); E(f's_mov_b32 s{sPART}, s{sC}')
        for p in range(4): E(f'v_add_u32 v{vWB+p}, s{sLC}, v{vOA+p}')
        for p in range(4): E(f'v_add_u32 v{vOA+p}, s{sU}, v{vOA+p}')
        E(f'v_mul_u32_u24 v45, 6144, v40'); E(f'v_add_u32 v{vF6}, v45, v{vLin}')
        E('v_lshrrev_b32 v46, 1, v42'); E('v_lshl_add_u32 v45, v46, 8, v45')
        E('v_lshl_add_u32 v45, v41, 4, v45'); E('v_and_b32 v47, 1, v42'); E(f'v_lshl_add_u32 v{vQW}, v47, 3, v45')
        E(f'v_mul_u32_u24 v45, {T*1024}, v46'); E('v_and_b32 v46, 1, v40'); E('v_lshl_add_u32 v46, v46, 1, v47')
        E('v_lshl_add_u32 v45, v46, 8, v45'); E('v_lshl_add_u32 v45, v41, 4, v45'); E('v_lshrrev_b32 v46, 1, v40'); E(f'v_lshl_add_u32 v{vPW}, v46, 3, v45')
        E(f'v_lshlrev_b32 v45, 4, v41'); E(f'v_add_u32 v{vStR}, {STAT}, v45'); E(f'v_lshl_add_u32 v{vStW}, v40, 2, v{vStR}')
        for kk in range(2):
            E(f's_lshl_b32 s{sLC}, s{sW}, 1'); E(f's_add_u32 s{sLC}, s{sLC}, {8+kk}'); E(f's_sub_u32 s{sLC}, s{sLC}, s{sRO}'); E(f's_and_b32 s{sLC}, s{sLC}, 7')
            E(f's_mul_i32 s{sLC}, s{sLC}, 3072'); E(f'v_add_u32 v{vOW+kk}, s{sLC}, v{vLin}')
        c = struct.unpack('<I', struct.pack('<f', 1.4426950408889634 / 16.0))[0]
        E(f's_mov_b32 s{sC}, {c:#x}'); E(f's_mov_b32 s{sC+1}, s{sC}'); E(f's_mov_b32 s{sBR}, {br}')
    def touch(s, br):
        E = s.E
        E(f's_lshl_b32 s{sFL}, s{sB}, 8'); E(f's_add_u32 s{sFL}, s{sFL}, {FLAGS + br*4096}')
        E(f'v_min_u32 v{vZ}, 1, v0'); E(f'v_lshlrev_b32 v{vZ}, 30, v{vZ}')
        E(f'buffer_load_dword v{vOld}, v{vZ}, {srd(SWS)}, s{sFL} offen sc1')
        if cfg.tlb:
            if br: E(f'buffer_load_dword v{vPF}, v{vZ}, {srd(SK)}, s{sPK} offen {cfg.kvpol}')
            E(f'buffer_load_dword v{vPF}, v{vZ}, {srd(SV)}, s{sPV} offen {cfg.kvpol}')
            E(f'buffer_load_dword v{vPF}, v{vZ}, {srd(SWS)}, s{sPART} offen sc1')
    def load_ptrs(s, br):
        E = s.E
        o = 40 * br
        E(f's_load_dwordx2 s[{SX}:{SX+1}], s[0:1], {o}')
        E(f's_load_dwordx2 s[{SW}:{SW+1}], s[0:1], {o+24}')
        E(f's_load_dwordx2 s[{SK}:{SK+1}], s[0:1], {o+8}')
        E(f's_load_dwordx2 s[{SV}:{SV+1}], s[0:1], {o+16}')
        E(f's_load_dwordx2 s[{SWO}:{SWO+1}], s[0:1], {o+32}')
        E(f's_load_dwordx2 s[{SWS}:{SWS+1}], s[0:1], 96')
        kv = 16 * (16 if br else 8) * 262144
        for r, n in ((SX, 16 * 43008), (SW, 448 * 8192), (SK, kv), (SV, kv), (SWS, FLAGS + 8192)):
            E(f's_mov_b32 s{r+2}, {n}'); E(f's_mov_b32 s{r+3}, 0x20000')
    def pf_loop(s, n):
        def body():
            for k in range(4):
                s.E(f'buffer_load_dwordx4 {vr(vPF)}, v{vLin}, {srd(SPF)}, s{sT2} offen')
                s.E(f's_add_u32 s{sT2}, s{sT2}, s{sT1}')
            s.E('s_waitcnt vmcnt(24)')
        s.rolled(n // 4, body)

F = NQ - LEAD
WQ = ['WA'] * 14; WO = ['WA'] * 8 + ['WB'] * 8
def WN(n, entry=LEAD, stay=False, nat=False):
    up = LEAD + cfg.wl - entry
    if stay: return [2] * up + [1] * (n - up)
    if nat: return [2] * up + [1] * (n - up - 6) + [int(c) for c in str(cfg.tailp).zfill(6)]
    return [2] * up + [1] * (n - up - cfg.wl - LEAD) + [0] * cfg.wl + [1] * LEAD
def ramp_np(n): return WN(n, cfg.ramp, nat=True)
pat = lambda p: [int(c) for c in str(p).lstrip('x')]

def q_both(s, started):
    E = s.E
    ex = {14 - LEAD - cfg.wl: s.wq_head()}
    if cfg.xb < 4: ex[0] = s.x_loads(range(cfg.xb, 4))
    s.tg_phase(3, vS, WN(14, started, True), 'x', bar=True, extra=ex, bars=((4 * cfg.xb,) if cfg.xb < 4 else ()))
    s.q_pack(vS, vS + 48)
    s.tg_phase(3, vS, WN(14, LEAD + cfg.wl, nat=True), 'x')
def q_misc(s):
    E = s.E
    E(f's_load_dwordx2 s[{SDBG}:{SDBG+1}], s[0:1], 88')
    for x in s.w_to_wo(): E(x)
    E(f's_lshl_b32 s{sT0}, s{sB}, 4'); E(f's_lshl_b32 s{sDO}, s{sBR}, 3'); E(f's_add_u32 s{sDO}, s{sDO}, s{sT0}'); E(f'v_mov_b32 v{vC1}, 1')
def q_exch(s):
    E = s.E
    q_misc(s)
    s.q_pack(vS, vS + 72)
    E('s_barrier')
    s.q_write(vS + 48, 0); s.q_write(vS + 72, 1)
    E('s_waitcnt lgkmcnt(0)'); E('s_barrier')
    E(f's_mov_b32 s{SDBG+2}, 256')

def path_B_text():
    s = Gen(1000); E = s.E
    pb = cfg.parkB; dfl = None
    for kinds, st in ((['K'] * (2 * pb), 0), (WQ, 2 * pb), (WQ, 2 * pb + 2), (['K'] * (16 - 2 * pb), 2 * pb + 4), (['V'] * 16, 2), (['K'] * 16, 0), (WO, 4)): s.plan(kinds, st)
    pk_ = cfg.parkO
    assert pk_ in (0, 6)
    if pk_: s.plan(WO[:6], 2); s.plan(['V'] * 16, 2); s.plan(WO[6:], 0, 6)
    else: s.plan(['V'] * 16, 2); s.plan(WO, 0)
    s.stamp(0)
    s.load_ptrs(1)
    if pb:
        s.setup_ids(1); s.setup_k(1)
        E('s_waitcnt lgkmcnt(0)')
        for _ in range(2): s.emit_groups(s.prod())
        s.touch(1); s.setup_x(); s.setup_w(); s.setup_rd(); s.setup_late(3, 1)
        for x in s.wq_table(0, 14): E(x)
        for _ in range(2 * pb - 2): s.emit_groups(s.prod())
        s.emit_groups([s.x_loads(range(cfg.xb))])
        if pb < 3:
            for _ in range(cfg.rampB): s.emit_groups(s.prod())
        for tau in range(pb):
            s.emit_groups(s.k_fetch(lambda k: vr(vOUT + tau * 32 + 4 * k)))
            if tau == 0 and pb == 3:
                E('s_waitcnt lgkmcnt(0)')
                for _ in range(cfg.rampB): s.emit_groups(s.prod())
        E('s_waitcnt lgkmcnt(0)')
    else:
        sb = (lambda k: s.stamp(k)) if cfg.stB else (lambda k: None)
        if cfg.pro == 0:
            s.setup_ids(1); s.setup_x(); s.setup_w()
            for x in s.wq_table(0, cfg.rampB): E(x)
            E('s_waitcnt lgkmcnt(0)')
            s.emit_groups([s.x_loads(range(cfg.xb))])
            for _ in range(cfg.rampB): s.emit_groups(s.prod())
            for x in s.wq_table(cfg.rampB, 14): E(x)
            s.setup_k(1); s.touch(1); s.setup_rd(); s.setup_late(3, 1)
        else:
            s.setup_ids(1); s.setup_x()
            sb(2)
            E('s_waitcnt lgkmcnt(0)')
            sb(3)
            s.emit_groups([s.x_loads(range(cfg.xb))])
            sb(4)
            s.setup_w()
            if cfg.defer:
                for x in s.wq_table(0, 8): E(x)
                for _ in range(2): s.emit_groups(s.prod())
                s.setup_rd(False)
                sb(5)
                for _ in range(cfg.rampB - 2): s.emit_groups(s.prod())
                def rest():
                    s.setup_k(1); s.touch(1); s.setup_kb(); s.setup_late(3, 1)
                dfl = {0: s.wq_table(8, 11), 1: s.wq_table(11, 14)}
                dfl.update(dict(enumerate(Gen.split(s.capture(rest), 11), 2)))
            else:
                for x in s.wq_table(0, 14): E(x)
                s.setup_k(1); s.touch(1); s.setup_rd(); s.setup_late(3, 1)
                sb(5)
                for _ in range(cfg.rampB): s.emit_groups(s.prod())
        sb(6)
        if cfg.stB:
            st0_ = s.stamp
            s.stamp = lambda k: (None if 2 <= k <= 6 else st0_(k))
    if cfg.trace:
        s.tr = True; E('s_mov_b32 s100, 0'); E('s_memrealtime s[96:97]'); E('v_mov_b32 v42, 0'); E('v_mov_b32 v43, 0')
    if cfg.fastq:
        assert not pb and cfg.xb == 4
        cap = s.capture
        s.tg_phase(3, vS, WN(14, cfg.rampB, True), 'x', bar=True, extra={14 - LEAD - cfg.wl: s.wq_head()}, last=False, fills=dfl)
        p1 = cap(lambda: s.q_pack(vS, vS + 48, False)); w1 = cap(lambda: s.q_write(vS + 48, 0)); r1 = cap(lambda: s.frag_read(24))
        fl = dict(enumerate(Gen.split(p1, 3), 15)); fl[22] = w1; fl.update(dict(enumerate(Gen.split(r1, 4), 24)))
        s.tg_phase(3, vOUT, [1] * 8 + pat(cfg.tailB), 'x', st0=14, first=False, z=True, fills=fl, heads={22: ['s_barrier'], 24: ['s_barrier']})
        s.stamp(1)
        p2 = cap(lambda: s.q_pack(vOUT, vOUT + 48, False)); w2 = cap(lambda: s.q_write(vOUT + 48, 1)); r2 = cap(lambda: s.frag_read(24, 24576, aO))
        fl = {0: p2, 1: w2, 2: cap(lambda: q_misc(s))}; fl.update(dict(enumerate(Gen.split(r2, 4), 3)))
        s.s_phase(3, pat(cfg.snB), fills=fl, heads={1: ['s_barrier'], 3: ['s_barrier', f's_mov_b32 s{SDBG+2}, 256']})
    else:
        q_both(s, cfg.rampB)
        s.stamp(1)
        def g0():
            q_exch(s); s.frag_read(24)
        q2 = s.capture(lambda: s.frag_read(24, 24576, aO))
        if pb:
            s.gap(g0, 1, 0.5, 1.0)
            sn = [1] + [0] * (pb - 1) + pat(cfg.sn)[:8 - pb]
        else:
            s.gap(g0, F); sn = pat(cfg.sn)
        s.s_phase(3, sn, parked=pb, fills=dict(enumerate(Gen.split(q2, 4), 2)))
    s.stamp(2)
    def g1():
        s.softmax(3)
        for tau in range(8): s.exp_pack(3, tau, wtau=tau)
        E('s_waitcnt lgkmcnt(0)'); E('s_barrier')
    s.gap(g1, F, 0.1, 0.9)
    s.stamp(3)
    s.tg_phase(3, vOUT, pat(cfg.pvn), 'p', lacc=vOUT + 48, heads={8: s.ready_add(), 12: ['s_barrier']})
    s.stamp(4)
    if cfg.trace: E('v_mov_b32 v44, v42'); E('v_mov_b32 v45, v43'); E('s_mov_b32 s100, 0')
    op = s.capture(lambda: s.o_pack(3, vOUT, vOUT + 48, True, M=lambda t: vSR + 2 * t, nops=False))
    of = s.capture(lambda: s.frag_read(24, 0, 0))
    fl = dict(enumerate(Gen.split(op, 2))); fl.update(dict(enumerate(Gen.split(of, 4), 3)))
    s.s_phase(3, [2] * 8, qb=aO, fills=fl, heads={3: ['s_barrier']})
    s.stamp(5)
    if cfg.expW:
        a_ = s.capture(lambda: s.sm_a(3)); r_ = s.capture(lambda: s.sm_rd(0)); b_ = s.capture(lambda: s.sm_b(0))
        exf = lambda: [s.exp_pack(3, tau, wtau=tau) for tau in range(8)]
        if cfg.expW == 2:
            fl = {1: a_, 2: r_, 3: b_}; fl.update(dict(enumerate(Gen.split(s.capture(exf), 12), 4))); hb = 2
        else:
            fl = {3: a_[:len(a_)//2], 4: a_[len(a_)//2:], 8: r_, 9: b_}; hb = 8
        if pk_:
            s.o_proj(WN(16, stay=True), 0, c0=True, fills=fl, heads={hb: ['s_barrier']}, extra={10: s.wo_head()})
            s.stamp(6)
            for k in range(6):
                s.emit_groups(s.tg_fetch(3, 0, None, aFR, dst=aO + 16 * k))
                if k in (1, 3):
                    E('s_waitcnt lgkmcnt(0)'); s.emit_groups(s.prod())
            E('s_waitcnt lgkmcnt(0)')
            s.gap(exf, 4, 0.0, 1.0)
        else:
            s.o_proj(WN(16, nat=True), 0, c0=True, fills=fl, heads={hb: ['s_barrier']})
            s.stamp(6)
            for x in s.wo_head(): E(x)
            if cfg.expW == 2:
                for _ in range(F): s.emit_groups(s.prod())
            else:
                s.gap(exf, F, 0.1, 0.9)
        E('s_waitcnt lgkmcnt(0)'); E('s_barrier')
    else:
        s.o_proj(WN(16, nat=True), 0, c0=True)
        s.stamp(6)
        for x in s.wo_head(): E(x)
        s.gap(g1, F, 0.1, 0.9)
    s.stamp(7)
    ep = pat(cfg.endp)
    s.tg_phase(3, vS, pat(cfg.pvn)[:12] + ep, 'p', lacc=vS + 48, heads={4: s.ready_load(), 12: ['s_barrier']})
    s.stamp(8)
    if not pk_: s.emit_groups(s.tg_fetch(3, 0, None, aFR))
    def g2():
        s.o_pack(3, vS, vS + 48, True, nops=bool(pk_))
    if sum(ep) == 4: s.gap(g2, F, 0.0, 0.6)
    else: g2()
    E('s_waitcnt lgkmcnt(0)'); E('s_barrier')
    of = s.capture(lambda: s.frag_read(24, 0, 0))
    for x in of[:6]: E(x)
    s.stamp(9)
    fl = dict(enumerate(Gen.split(of[6:], cfg.fsp))); fl.update(dict(enumerate(Gen.split(s.store_slice(0), 6), 9)))
    x5 = 1 if sum(ep) == 5 else 0
    if pk_: s.o_proj([x5] + [0] * 5 + [1] * 4 + [0] * 6, 0, fills=fl, parked=6)
    else: s.o_proj([1, 1, 1, 1 + x5] + [1] * 6 + [0] * 6, 0, fills=fl, primed=True)
    for k in (10, 11): s.stamp(k)
    if cfg.trace:
        E('s_waitcnt lgkmcnt(0)'); s.tr_start()
        for i in range(4): E(f'v_mov_b32 v{2+i}, v{(44,45,42,43)[i]}')
    s.finish()
    return s.L

def path_A():
    s = Gen(2000); E = s.E
    park = 3 if cfg.earlyK else 0
    pa = cfg.parkA
    assert park and pa in (0, 6)
    for kinds, st in ((['K'] * 6, 0), (WQ, 0), (WQ, 2), (['K'] * 10, 4)): s.plan(kinds, st)
    if pa: s.plan(WO[:6], 2); s.plan(['V'] * 16, 2); s.plan(WO[6:], 0, 6); s.plan(WO, 4)
    else: s.plan(['V'] * 16, 2); s.plan(WO, 0); s.plan(WO, 4)
    s.stamp(0)
    s.load_ptrs(0)
    if cfg.warm: E(f's_load_dwordx4 s[{sST+8}:{sST+11}], s[0:1], 64')
    s.setup_ids(0); s.setup_k(0)
    E('s_waitcnt lgkmcnt(0)')
    def warm():
        E(f's_mul_i32 s{sT0}, s{sB}, 28'); E(f's_mul_i32 s{sT1}, s{sW}, 7'); E(f's_add_u32 s{sT0}, s{sT0}, s{sT1}')
        E(f's_mov_b32 s{SPF+2}, {448*8192}'); E(f's_mov_b32 s{SPF+3}, 0x20000')
        for c in str(cfg.word).lstrip('x'):
            ptr, isq = ((sST + 8, True), (SW, True), (sST + 10, False), (SWO, False))[int(c)]
            E(f's_mov_b32 s{SPF}, s{ptr}'); E(f's_mov_b32 s{SPF+1}, s{ptr+1}')
            if isq:
                E(f's_lshl_b32 s{sT2}, s{sT0}, 13'); E(f's_lshl_b32 s{sT1}, s{sJ}, 10')
            else:
                E(f's_lshl_b32 s{sT2}, s{sT0}, 10'); E(f's_mul_i32 s{sT1}, s{sJ}, {512*896}')
            E(f's_add_u32 s{sT2}, s{sT2}, s{sT1}')
            for k in range(7):
                E(f'buffer_load_dwordx4 {vr(vPF)}, v{vLin}, {srd(SPF)}, s{sT2} offen')
                if k < 6: E(f's_add_u32 s{sT2}, s{sT2}, {8192 if isq else 1024}')
    def wo_warm(own, head2):
        o = []
        n = 4 if head2 else 7
        o += [f's_mul_i32 s{sT2}, s{sB}, {14336 if head2 else 28672}', f's_mul_i32 s{sT1}, s{sW}, {3584 if head2 else 7168}', f's_add_u32 s{sT2}, s{sT2}, s{sT1}',
              f's_mul_i32 s{sT1}, s{sJ}, {512*896}', f's_add_u32 s{sT2}, s{sT2}, s{sT1}']
        if head2: o += [f's_add_u32 s{sT2}, s{sT2}, {256*896}']
        for k in range(n):
            o += [f'buffer_load_dwordx4 {vr(vOA)}, v{vLin}, {srd(SW if own else SPF)}, s{sT2} offen']
            if k < n - 1: o += [f's_add_u32 s{sT2}, s{sT2}, 1024']
        return o
    def code_pf(va, vd):
        lb = s.lab('pc')
        o = [f's_getpc_b64 s[{sT0}:{sT0+1}]', f'{lb}:', f's_sub_u32 s{sT0}, s{sT0}, {lb}-{NAME}_kernel', f's_subb_u32 s{sT0+1}, s{sT0+1}, 0',
             f's_lshl_b32 s{sT2}, s{sB}, 2', f's_add_u32 s{sT2}, s{sT2}, s{sW}', f's_mul_i32 s{sT2}, s{sT2}, 1408']
        for k in range(2):
            o += [f'v_add_u32 v{va}, s{sT2}, v{vLin}', f'v_min_u32 v{va}, L_code_end-{NAME}_kernel-16, v{va}',
                  f'v_mov_b32 v{va+1}, s{sT0+1}', f'v_add_co_u32 v{va}, vcc, s{sT0}, v{va}', 's_nop 1', f'v_addc_co_u32 v{va+1}, vcc, 0, v{va+1}, vcc',
                  f'global_load_dwordx4 {vr(vd)}, {vr(va,2)}, off']
            if k == 0: o += [f's_add_u32 s{sT2}, s{sT2}, 1024']
        return o
    sa = (lambda k: s.stamp(k)) if cfg.stA else (lambda k: None)
    sa(7)
    if cfg.codepf & 1:
        for x in code_pf(48, vPF): E(x)
    if cfg.warm == 1: warm()
    sa(8)
    if park:
        for _ in range(2): s.emit_groups(s.prod())
    s.touch(0); s.setup_x(); s.setup_w(); s.setup_rd(); s.setup_late(6, 0)
    for x in s.wq_table(0, 14): E(x)
    if park:
        for _ in range(4): s.emit_groups(s.prod())
    sa(9)
    if cfg.pfK:
        E(f's_mov_b32 s{sT2}, s{sPK}')
        for k in range(cfg.pfK):
            for p in range(4): E(f'buffer_load_dwordx4 {vr(vPF)}, v{vK}, {srd(SK)}, s{sT2} offen offset:{p*1024} {cfg.pfpol}')
            E(f's_add_u32 s{sT2}, s{sT2}, 0x4000')
    if cfg.warm == 2: warm()
    s.emit_groups([s.x_loads(range(cfg.xb))])
    sa(10)
    if park:
        for tau in range(3):
            s.emit_groups(s.k_fetch(lambda k: vr(vOUT + tau * 32 + 4 * k)))
            if tau == 0:
                E('s_waitcnt lgkmcnt(0)')
                for _ in range(cfg.ramp): s.emit_groups(s.prod())
        E('s_waitcnt lgkmcnt(0)')
    else:
        for _ in range(cfg.ramp): s.emit_groups(s.prod())
    s.stamp(1)
    q_both(s, cfg.ramp)
    s.stamp(2)
    def g0():
        q_exch(s); s.frag_read(48)
    if park:
        g0()
        s.s_phase(6, pat(cfg.snA), parked=park, heads={1: s.ready_add(), 4: [f's_load_dwordx2 s[{SPF}:{SPF+1}], s[0:1], 72', f's_mov_b32 s{SPF+2}, {448*8192}', f's_mov_b32 s{SPF+3}, 0x20000'] if cfg.jit else []})
    else:
        s.gap(g0, F)
        s.s_phase(6, pat(cfg.sn), heads={1: s.ready_add()})
    s.stamp(3)
    hold = lambda tau: (lambda t: vS + 48 + ((tau - 4) * 6 + t) * 2)
    def g1():
        s.softmax(6)
        for tau in range(4):
            s.exp_pack(6, tau, wtau=tau)
            if cfg.codepf & 2 and tau == 1:
                for x in code_pf(vXR, vOA): E(x)
            if cfg.jit & 1 and tau in (0, 2):
                for x in wo_warm(tau == 2, False): E(x)
        for tau in range(4, 8): s.exp_pack(6, tau, dst=hold(tau))
        E('s_waitcnt lgkmcnt(0)'); E('s_barrier')
    if pa:
        def g1a():
            s.softmax(6)
            for tau in range(2): s.exp_pack(6, tau, wtau=tau)
        def g1b():
            for tau in range(2, 4): s.exp_pack(6, tau, wtau=tau)
            for tau in range(4, 8): s.exp_pack(6, tau, dst=hold(tau))
            E('s_waitcnt lgkmcnt(0)'); E('s_barrier')
        s.gap(g1a, 6 - (s.pseq - s.cseq), 0.0, 0.7)
        for k in range(6): s.emit_groups(s.tg_fetch(3, 0, None, aFR, dst=aO + 16 * k))
        E('s_waitcnt lgkmcnt(0)')
        s.gap(g1b, cfg.gA + 1, 0.0, 0.8)
    else:
        s.gap(g1, cfg.gA, 0.1, 0.8)
    s.stamp(4)
    pv = pat(cfg.pvnA)
    s.tg_phase(6, vOUT, pv[:8], 'p', lacc=vS, base=0)
    E('s_barrier')
    for tau in range(4, 8):
        for t in range(6): E(s.p_write(6, tau - 4, t, hold(tau)(t)))
    E('s_waitcnt lgkmcnt(0)'); E('s_barrier')
    if cfg.endA: pv = pv[:12] + [3, 1, 1, 0]
    s.tg_phase(6, vOUT, pv[8:], 'p', lacc=vS, base=0, c0=False, st0=8, heads={9: s.ready_load()})
    s.stamp(5)
    Wl = []
    def g2():
        Wl.extend(s.o_pack(6, vOUT, vS, False))
    if cfg.endA: g2()
    else: s.gap(g2, F, 0.0, 0.6)
    if cfg.codepf & 4:
        for x in code_pf(vXR, vOA): E(x)
    if cfg.jit & 2:
        for x in wo_warm(False, True): E(x)
    E('s_barrier')
    for w in Wl: E(w)
    if not pa: s.emit_groups(s.tg_fetch(3, 0, None, aFR))
    E('s_waitcnt lgkmcnt(0)'); E('s_barrier')
    of = s.capture(lambda: s.frag_read(48))
    for x in of[:6]: E(x)
    s.stamp(6)
    fl = dict(enumerate(Gen.split(of[6:24], cfg.fsp))); fl.update(dict(enumerate(Gen.split(of[24:], 8), 7)))
    xa = 1 if cfg.endA else 0
    if pa: s.o_proj([xa] + [0] * 5 + [1] * 10, 0, c0=True, fills=fl, parked=6, extra={10: s.wo_head()})
    else: s.o_proj([1, 1, 1, 1 + xa] + [1] * 12, 0, c0=True, fills=fl, primed=True, extra={10: s.wo_head()})
    s.o_proj([1] * 10 + [0] * 6, aO, fills=dict(enumerate(Gen.split(s.store_slice(0), 6), 9)))
    for k in range(11 if cfg.stA else 7, 12): s.stamp(k)
    s.finish()
    return s.L

def reduce_tail():
    L = []; E = L.append
    sOld, sF2 = sPK, sPV
    def st(k):
        if cfg.stamps: E(f's_memrealtime s[{sST+2*k}:{sST+2*k+1}]')
    E('L_reduce:')
    E(f's_load_dwordx2 s[{SOUT}:{SOUT+1}], s[0:1], 80')
    E(f'v_readfirstlane_b32 s{sOld}, v{vOld}'); E(f'v_readfirstlane_b32 s{sT1}, v{vRdy}')
    E(f's_lshl_b32 s{sT0}, s{sBR}, 4'); E(f's_add_u32 s{sT0}, s{sT0}, s{sB}')
    E(f's_mul_i32 s{sPART}, s{sT0}, {8*PART}')
    E(f's_lshl_b32 s{sT2}, s{sJ}, 2'); E(f's_add_u32 s{sT2}, s{sT2}, s{sW}')
    E('v_and_b32 v42, 15, v1'); E('v_mul_u32_u24 v42, 1792, v42'); E('v_lshrrev_b32 v43, 4, v1'); E('v_lshl_add_u32 v42, v43, 3, v42')
    E(f's_mul_i32 s{sY}, s{sB}, {48*1792}'); E(f's_mul_i32 s{sT0}, s{sBR}, 896'); E(f's_add_u32 s{sY}, s{sY}, s{sT0}')
    E(f's_mov_b32 s{sLC}, 0x400000'); E(f'v_add_u32 v44, 1, v{vOld}')
    E('s_waitcnt vmcnt(0) lgkmcnt(0)')
    E('s_barrier')
    st(12)
    E(f's_mov_b32 s{SOUT+2}, {16*48*896*2}'); E(f's_mov_b32 s{SOUT+3}, 0x20000')
    E(f's_cmp_lg_u32 s{sW}, 0'); E('s_cbranch_scc1 L_rwait')
    if cfg.sync == 2:
        E('L_rdy:')
        E(f's_cmp_ge_u32 s{sT1}, 8'); E('s_cbranch_scc1 L_rdyok')
        E(f's_sub_u32 s{sLC}, s{sLC}, 1'); E('s_cbranch_scc1 L_rdyok')
        E('s_sleep 8')
        E(f'buffer_load_dword v{vRdy}, v{vZ}, {srd(SDBG)}, s{sDO} offen sc1')
        E('s_waitcnt vmcnt(0)')
        E(f'v_readfirstlane_b32 s{sT1}, v{vRdy}')
        E('s_branch L_rdy')
        E('L_rdyok:')
        E(f'buffer_atomic_add v{vC1}, v{vZ}, {srd(SWS)}, s{sFL} offen sc0 sc1')
        E(f's_add_u32 s{sOld}, s{sOld}, 7')
        E('s_waitcnt vmcnt(0)')
        E(f'v_readfirstlane_b32 s{sT1}, v{vC1}')
        E(f's_cmp_eq_u32 s{sT1}, s{sOld}'); E('s_cbranch_scc1 L_rwait')
        E(f's_add_u32 s{sOld}, s{sOld}, 1')
        E('L_poll:')
        E(f'buffer_load_dword v41, v{vZ}, {srd(SWS)}, s{sFL} offen {cfg.pollpol}')
        E(f's_sub_u32 s{sLC}, s{sLC}, 1'); E('s_cbranch_scc1 L_rwait')
        E('s_waitcnt vmcnt(0)')
        E(f'v_readfirstlane_b32 s{sT1}, v41')
        if cfg.sleep: E(f's_sleep {cfg.sleep}')
        E(f's_cmp_lg_u32 s{sT1}, s{sOld}'); E('s_cbranch_scc1 L_poll')
    else:
        E(f'buffer_atomic_add v{vC1}, v{vZ}, {srd(SDBG)}, s{sDO} offen sc0 sc1')
        E('s_waitcnt vmcnt(0)')
        E(f'v_readfirstlane_b32 s{sT1}, v{vC1}')
        E(f's_cmp_lt_u32 s{sT1}, 7'); E('s_cbranch_scc1 L_poll')
        E(f'buffer_store_dword v44, v{vZ}, {srd(SWS)}, s{sFL} offen sc1')
        E('s_branch L_rwait')
        E('L_poll:')
        E(f'buffer_load_dword v41, v{vZ}, {srd(SWS)}, s{sFL} offen {cfg.pollpol}')
        E(f's_sub_u32 s{sLC}, s{sLC}, 1'); E('s_cbranch_scc1 L_rwait')
        E('s_waitcnt vmcnt(0)')
        E(f'v_readfirstlane_b32 s{sT1}, v41')
        if cfg.sleep: E(f's_sleep {cfg.sleep}')
        E(f's_cmp_eq_u32 s{sT1}, s{sOld}'); E('s_cbranch_scc1 L_poll')
    E('L_rwait:')
    E('s_barrier')
    st(13); st(14)
    def loads(base, freg):
        E(f's_lshl_b32 s{sT0}, s{freg}, 10'); E(f's_add_u32 s{sT0}, s{sT0}, s{sPART}')
        for j in range(8):
            E(f'buffer_load_dwordx4 {vr(base+4*j)}, v{vLin}, {srd(SWS)}, s{sT0} offen {cfg.rdpol}')
            if j < 7: E(f's_add_u32 s{sT0}, s{sT0}, {PART}')
    def task(base, freg, younger):
        E(f's_mul_i32 s{sT0}, s{freg}, 43'); E(f's_lshr_b32 s{sT0}, s{sT0}, 8')
        E(f's_mul_i32 s{sT1}, s{sT0}, 6'); E(f's_sub_u32 s{sT1}, s{freg}, s{sT1}')
        E(f's_lshl_b32 s{sT0}, s{sT0}, 7'); E(f's_add_u32 s{sT0}, s{sT0}, s{sY}')
        E(f's_cmp_ge_u32 s{sT1}, 3'); E(f's_cselect_b32 s{sLC}, {64 - 3*16*1792}, 0'); E(f's_add_u32 s{sT0}, s{sT0}, s{sLC}')
        E(f's_mul_i32 s{sT1}, s{sT1}, {16*1792}'); E(f's_add_u32 s{sT0}, s{sT0}, s{sT1}')
        E(f's_mov_b32 s{sLC}, 0xffff0000')
        for j in range(8):
            E(f's_waitcnt vmcnt({7-j+younger})')
            for r in range(4):
                src = base + 4 * j + r
                if j == 0:
                    E(f'v_lshlrev_b32 v{48+2*r}, 16, v{src}'); E(f'v_and_b32 v{49+2*r}, s{sLC}, v{src}')
                else:
                    t = 44 + 2 * (r & 1)
                    E(f'v_lshlrev_b32 v{t}, 16, v{src}'); E(f'v_and_b32 v{t+1}, s{sLC}, v{src}')
                    E(f'v_pk_add_f32 {vr(48+2*r,2)}, {vr(48+2*r,2)}, {vr(t,2)}')
        for r in range(4): E(f'v_cvt_pk_bf16_f32 v{base+r}, v{48+2*r}, v{49+2*r}')
        E(f'buffer_store_dwordx2 {vr(base,2)}, v42, {srd(SOUT)}, s{sT0} offen {cfg.outpol}')
        E(f'buffer_store_dwordx2 {vr(base+2,2)}, v42, {srd(SOUT)}, s{sT0} offen offset:32 {cfg.outpol}')
    E(f's_cmp_ge_u32 s{sT2}, 10'); E('s_cbranch_scc1 L_r1')
    E(f's_add_u32 s{sF2}, s{sT2}, 32')
    loads(96, sF2)
    loads(64, sT2)
    task(96, sF2, 8)
    task(64, sT2, 2)
    E('s_branch L_rend')
    E('L_r1:')
    loads(64, sT2)
    task(64, sT2, 0)
    E('L_rend:')
    if cfg.stamps:
        E('s_waitcnt vmcnt(0)')
        st(15)
        E('s_branch L_stamps')
    else:
        E('s_endpgm')
    return L

def kd(name, nv, ao):
    return ['.p2align 6', f'.amdhsa_kernel {name}', f'  .amdhsa_next_free_vgpr {nv}', '  .amdhsa_next_free_sgpr 102', f'  .amdhsa_accum_offset {ao}',
            '  .amdhsa_group_segment_fixed_size 0', '  .amdhsa_kernarg_size 104', '  .amdhsa_user_sgpr_count 2',
            '  .amdhsa_user_sgpr_kernarg_segment_ptr 1', '  .amdhsa_system_sgpr_workgroup_id_x 1', '.end_amdhsa_kernel']

def build(fname):
    hdr = [l for l in open('cdna_kernels/' + NAME + '.s.ref').read().split('\n') if l.startswith(';') and '@launch' not in l and 'Override' not in l and 'grid=ceil' not in l]
    L = hdr[:]
    L.append(f'; @launch grid=(256,1,1) block=(256,1,1) lds={LDS_TOTAL}')
    L += ['.amdgcn_target "amdgcn-amd-amdhsa--gfx950"', '.text', f'.globl {NAME}_kernel', '.p2align 8', f'.type {NAME}_kernel,@function', f'{NAME}_kernel:']
    L += ['s_cmp_ge_u32 s2, 256', 's_cbranch_scc1 L_exit', 's_bitcmp1_b32 s2, 3', 's_cbranch_scc0 ' + ('L_exit' if cfg.noA else 'L_pathA')] + (['s_branch L_exit'] if cfg.noB else [])
    L += path_B_text()
    L += reduce_tail()
    L += ['L_exit:', 's_endpgm', 'L_pathA:']
    L += path_A()
    if cfg.stamps:
        L += ['L_stamps:', 's_waitcnt lgkmcnt(0)', f's_add_u32 s{SWS}, s{SWS}, 0xc800000', f's_addc_u32 s{SWS+1}, s{SWS+1}, 0']
        if cfg.trace: L += ['s_lshl_b32 s58, s2, 12', 's_add_u32 s58, s58, 0x40000', 'v_lshlrev_b32 v40, 4, v0', f'buffer_store_dwordx4 v[2:5], v40, {srd(SWS)}, s58 offen']
        L += [
              's_lshl_b32 s58, s2, 7'] + ([f's_lshl_b32 s59, s{sW}, 15', 's_add_u32 s58, s58, s59'] if cfg.allw else []) + ['v_mov_b32 v40, s58', 'v_cmp_eq_u32 vcc, 0, ' + ('v1' if cfg.allw else 'v0'), 's_and_saveexec_b64 s[58:59], vcc', 's_cbranch_execz L_exit2']
        for k in range(16):
            L += [f'v_mov_b32 v42, s{sST+2*k}', f'v_mov_b32 v43, s{sST+2*k+1}', f'buffer_store_dwordx2 v[42:43], v40, {srd(SWS)}, 0 offen offset:{8*k}', 's_nop 1']
        L += ['L_exit2:', 's_endpgm']
    L += ['.p2align 4', 'L_code_end:']
    L += ['.section .rodata,"a"'] + kd(NAME + '_kernel', 512, 256)
    if cfg.nomfma: L = [l for l in L if not l.startswith('v_mfma')]
    txt = '\n'.join(l if (l.startswith(';') or l.startswith('.') or l.endswith(':') or l.startswith('  ')) else '    ' + l for l in L) + '\n'
    open(fname, 'w').write(txt)

if __name__ == '__main__':
    out = sys.argv[1] if len(sys.argv) > 1 else 'cdna_kernels/' + NAME + '.s'
    for a in sys.argv[2:]:
        k, v = a.split('=')
        assert hasattr(cfg, k), k
        val = {'True': True, 'False': False}.get(v, int(v) if v.isdigit() else v)
        setattr(cfg, k, val.replace('+', ' ') if isinstance(val, str) else val)
    build(out)
```

```python
import sys, struct
NAME = 'concat_heads__gqa_block_cached__mha_block_cached__near_ridge'

class Cfg:
    stamps = False
    kvpol = 'nt'
    wpol = ''
    rot = True
    warm = 1
    earlyK = True
    noA = False
    noB = False
    nomfma = False
    ramp = 2
    estore = True
    sleep = 1
    pk = True
    codepf = 1
    allw = False
    pvn = '1111101011111111'
    sn = '22112222'
    pvnA = 'x0111222111111111'
    snA = 'x00002221'
    expW = 1
    outpol = ''
    sync = 2
    parkO = 0
    pfK = 10
    pfpol = ''
    stA = False
    rampB = 4
    tailB = '111011'
    snB = '22122222'
    stB = False
    pro = 1
    tlb = False
    defer = False
    parkA = 0
    endp = '3110'
    fsp = 6
    pfV = 0
    pfsel = 1
    pfw = 4
    stag = 0
    otl = '111011'
    b2 = False
    qn = '11122211011011'
    gq = 2
    sn1 = '22112222'
    half = True
    hv = 0
    hvpol = ''
    hvat = 15
    hv2 = 0
    hv2n = 6
    hvs = 0
    hb = 10
    endA = True
    pollpol = 'sc1'
    rdpol = 'sc1'
    stpol = 'sc1'
    jit = 0
    w3 = True
    word = '0123'
    fastq = True
    parkB = 0
    swap = True
    xb = 4
    gA = 1
    trace = False
    tailp = '110101'
    wl = 2
cfg = Cfg()

NQ = 6; QP = 4224; LEAD = 4
XB = 0; STAT = 49152; RING = 51200; RSZ = NQ * QP
LDS_TOTAL = RING + 4 * RSZ
PART = 43008
FLAGS = 384 * PART
SX, SW, SK, SV, SWO, SWS = 4, 8, 12, 16, 20, 24
sJ, sB, sW, sRS, sLC, sY, sPK, sPV, sT0, sT1, sT2, sU = range(28, 40)
sC = 40
sXC = 42
sFL, sPART, sXM, sBR = 46, 47, 48, 49
sTab = 50
sST = 64
SPF = 96
sRQ, sRO = 22, 23
sP1 = sY
SOUT = SV; SDBG = SX; sDO = sXM
vV, vWA, vWB, vOA, vK = 2, 6, 10, 14, 18
vX = 19
vTB = 22
vKB, vLin, vQW, vStW, vStR, vPW, vF6 = 26, 27, 28, 29, 30, 31, 32
vOW = 33
vTmp = 35
vM = 36
vSR = 48
vPF = 56
vXR = 60
vOld = 62; vZ = 63; vC1 = 19; vRdy = 20
vS = 64; vOUT = 160
aO = 96; aFR = 192; aONE = 248
M = lambda t: vM + 2 * t

def srd(n): return f's[{n}:{n+3}]'
def vr(b, n=4): return f'v[{b}:{b+n-1}]'
def ar(b, n=4): return f'a[{b}:{b+n-1}]'
MF = 'v_mfma_f32_16x16x32_bf16'

class Gen:
    def __init__(s, lab0):
        s.L = []; s.q = []; s.nlab = lab0
        s.stream = []
        s.pseq = 0; s.cseq = 0; s.freed = 0; s.owner = [-1] * NQ; s.tr = False; s.skipB = False; s.cold = []; s.b2 = False
    def plan(s, kinds, start, i0=0):
        for i, k in enumerate(kinds): s.stream.append((k, (start + i) % NQ, i0 + i))
    def E(s, t):
        s.L.append(t)
        if t == 's_waitcnt lgkmcnt(0)': s.freed = s.cseq
    def vm(s, t, tag):
        s.L.append(t); s.q.append(tag)
    def need(s, tag):
        idx = max(i for i, t in enumerate(s.q) if t == tag)
        n = len(s.q) - 1 - idx
        assert n <= 63, n
        return f's_waitcnt vmcnt({n})'
    def lab(s, p):
        s.nlab += 1; return f'L_{p}{s.nlab}'
    def tr_start(s):
        if cfg.trace and s.tr:
            s.L += ['s_mov_b32 m0, s100', 's_nop 0', 'v_writelane_b32 v42, s96, m0', 'v_writelane_b32 v43, s98, m0', 's_add_u32 s100, s100, 1', 's_memrealtime s[96:97]']
    def stamp(s, k):
        if cfg.stamps: s.E(f's_memrealtime s[{sST+2*k}:{sST+2*k+1}]')
    def capture(s, f, lab0=None):
        keep = s.L; s.L = []
        if lab0 is not None: s.nlab = lab0
        f(); t = s.L; s.L = keep
        return t
    def rolled(s, n, body, cnt=sLC):
        l0 = s.nlab
        texts = [s.capture(body, l0) for _ in range(n)]
        for t in texts[1:]:
            assert t == texts[0], 'loop iterations differ:\n' + '\n'.join(f'{a} | {b}' for a, b in zip(texts[0], t) if a != b)
        lb = s.lab('loop')
        s.L += [f's_mov_b32 s{cnt}, {n}', f'{lb}:'] + texts[0] + [f's_sub_u32 s{cnt}, s{cnt}, 1', f's_cmp_lg_u32 s{cnt}, 0', f's_cbranch_scc1 {lb}']
    def emit_item(s, it):
        if isinstance(it, str): s.E(it)
        elif it[0] == 'vm':
            if ' m0,' in s.L[-1]: s.L.append('s_nop 0')
            s.vm(it[1], it[2])
        elif it[0] == 'need':
            s.E(s.need(it[1]))
            if cfg.trace and s.tr: s.E('s_memrealtime s[98:99]')
    def emit_groups(s, G):
        for g in G:
            for it in g: s.emit_item(it)
    def interleave(s, mf, groups, fill=None, fstart=0):
        n = len(mf); g = len(groups)
        pos = {}
        for k in range(g):
            pos.setdefault(min(n - 1, (k * n) // max(g, 1)), []).append(k)
        fill = list(fill or []); nf = len(fill); done = 0
        for i, m in enumerate(mf):
            s.E(m)
            for k in pos.get(i, []):
                for it in groups[k]: s.emit_item(it)
            if i >= fstart:
                upto = (nf * (i - fstart + 1)) // (n - fstart)
                while done < upto or (done < nf and fill[done].startswith('s_cselect')):
                    s.L.append(fill[done])
                    if fill[done].startswith('buffer_'): s.q.append('misc')
                    done += 1
    @staticmethod
    def split(lst, n):
        cuts = [(len(lst) * i) // n for i in range(n + 1)]
        for k in range(1, n):
            while cuts[k] < len(lst) and lst[cuts[k]].startswith('s_cselect'): cuts[k] += 1
        return [lst[cuts[i]:max(cuts[i], cuts[i+1])] for i in range(n)]
    def gap(s, f, n, lo=0.0, hi=1.0):
        G = []
        for _ in range(n): G += s.prod()
        t = s.capture(f)
        pts = [i for i, x in enumerate(t) if (x.startswith('v_') or x.startswith('ds_')) and i > 0 and not t[i-1].startswith('s_cmp')]
        pos = {}
        for k in range(len(G)):
            fr = lo + (hi - lo) * (k + 0.5) / len(G)
            pos.setdefault(pts[min(len(pts) - 1, int(fr * len(pts)))], []).append(k)
        for i, x in enumerate(t):
            for k in pos.get(i, []):
                for it in G[k]: s.emit_item(it)
            s.L.append(x)

    def prod(s):
        kind, slot, idx = s.stream[s.pseq]
        assert s.owner[slot] < s.freed, (s.pseq, slot, s.owner[slot], s.freed)
        s.owner[slot] = s.pseq
        tag = ('q', s.pseq); s.pseq += 1
        if kind == 'WB' and s.skipB: return []
        G = [[f's_add_u32 m0, s{sRS}, {slot*QP}']]
        if kind == 'K':
            for p in range(4):
                G.append([('vm', f'buffer_load_dwordx4 v{vK}, {srd(SK)}, s{sPK} offen offset:{p*1024} {cfg.kvpol} lds', tag)])
                if p < 3: G[-1].append(f's_add_u32 m0, s{sRS}, {slot*QP + (p+1)*32}')
            G[-1].append(f's_add_u32 s{sPK}, s{sPK}, {0x4000 + (15 << 18 if s.b2 and idx == 15 else 0)}')
        else:
            vo, sr, so, pol = {'V': (vV, SV, sPV, cfg.kvpol), 'WA': (vWA, SW, sTab + idx, cfg.wpol), 'WB': (vWB, SW, sTab + idx - 8, cfg.wpol)}[kind]
            for p in range(4):
                G.append([('vm', f'buffer_load_dwordx4 v{vo+p}, {srd(sr)}, s{so} offen offset:{p*1024} {pol} lds', tag)])
            if kind == 'V': G[-1].append(f's_add_u32 s{sPV}, s{sPV}, {0x4000 + (15 << 18 if s.b2 and idx == 15 else 0)}')
        return G
    def x_loads(s, ms=range(4)):
        g = []
        for m in ms:
            for t in range(3):
                g += [f's_add_u32 m0, s{sXM}, {XB + (12*m + 2*t)*1024}', 's_nop 0',
                      f'buffer_load_dwordx4 v{vX+t}, {srd(SX)}, s{sXC+m} offen {cfg.wpol} lds']
        return g
    def table(s, lo, hi, n, rot, step, base):
        o = []
        if lo == 0:
            o += base + [f's_add_u32 s{sT2}, s{sT1}, {n*step}', f's_mul_i32 s{sT0}, s{rot[0]}, {rot[1]*step}', f's_add_u32 s{sTab}, s{sT0}, s{sT1}']
            lo = 1
        for k in range(lo, hi):
            o += [f's_add_u32 s{sT0}, s{sTab+k-1}, {step}', f's_cmp_ge_u32 s{sT0}, s{sT2}', f's_cselect_b32 s{sTab+k}, s{sT1}, s{sT0}']
        return o
    def wq_table(s, lo, hi): return s.table(lo, hi, 14, (sRQ, 2), 0x40000, [f's_lshl_b32 s{sT1}, s{sJ}, {9 if s.b2 else 10}'])
    def wq_head(s): return [f'v_add_u32 v{vWA+p}, 512, v{vWA+p}' for p in range(4)]
    def wo_head(s): return [f'v_add_u32 v{vWA+p}, {256*896}, v{vWA+p}' for p in range(8)]
    def w_to_wo(s):
        o = [f's_mov_b32 s{SW}, s{SWO}', f's_mov_b32 s{SW+1}, s{SWO+1}']
        o += s.table(0, 8, 8, (sRO, 1), 28672, [f's_mul_i32 s{sT1}, s{sJ}, {(256 if s.b2 else 512)*896}'])
        o += [f'v_mov_b32 v{vWA+p}, v{vOA+p}' for p in range(4)]
        return o

    def tg_bufs(s, T, par, ylds, base):
        a = base + par * (16 + (4 * T if ylds else 0))
        return a, a + 16
    def tg_fetch(s, T, st, ymode, base, bar=False, dst=None):
        ylds = ymode is not None
        a, y = s.tg_bufs(T, st & 1, ylds, base)
        if dst is not None: a = dst
        kind, slot, idx = s.stream[s.cseq]
        assert kind != 'K'
        tag = ('q', s.cseq); s.cseq += 1
        if kind == 'WB' and s.skipB: return []
        g0 = [('need', tag)] + (['s_barrier'] if bar else [])
        o = slot * QP
        rd = [[f'ds_read_b64_tr_b16 {ar(a+4*d,2)}, v{vTB+d} offset:{o}', f'ds_read_b64_tr_b16 {ar(a+4*d+2,2)}, v{vTB+d} offset:{o+2048}'] for d in range(4)]
        if ymode == 'x': yr = [f'ds_read_b128 {ar(y+4*t)}, v{vXR+(st&1)} offset:{XB + ((st%14)>>1)*6144 + t*2048}' for t in range(T)]
        elif ymode == 'p': yr = [f'ds_read_b128 {ar(y+4*t)}, v{vLin} offset:{XB + ((st*T*1024) % 49152) + t*1024}' for t in range(T)]
        G = [g0 + rd[0]]
        if ylds:
            h = (T + 1) // 2
            G += [yr[:h], rd[1], yr[h:], rd[2], rd[3]]
        else:
            G += [rd[1], rd[2], rd[3]]
        return G
    def tg_step(s, T, st, acc, pref, nprod, ymode, ystat=None, lacc=None, base=aFR, extra=None, c0=False, fill=None, head=None, bar=False, src=None, nomf=False, dual=None):
        ylds = ymode is not None
        a, y = s.tg_bufs(T, st & 1, ylds, base)
        if src is not None: a = src
        if not ylds: y = ystat
        s.E('s_waitcnt lgkmcnt(0)'); s.tr_start()
        for x in (head or []): s.E(x)
        mf = []
        for d in range(4):
            for t in range(T):
                c = vr(acc + (d * T + t) * 4)
                mf.append(f'{MF} {c}, {ar(a+4*d)}, {ar(y+4*t)}, {0 if c0 else c}')
        if dual:
            for d in range(4):
                for t in range(3):
                    c = vr(dual[0] + (d * 3 + t) * 4)
                    mf.append(f'{MF} {c}, {ar(a+4*d)}, {ar(dual[1]+4*t)}, {0 if c0 else c}')
        if lacc is not None:
            for t in range(T):
                c = vr(lacc + 4 * t)
                mf.append(f'{MF} {c}, {ar(aONE)}, {ar(y+4*t)}, {0 if c0 else c}')
        if nomf: mf = ['s_nop 7' if nomf == 1 else 's_nop 0']
        F = s.tg_fetch(T, st + 1, ymode, base, bar) if pref else []
        P = [extra] if extra else []
        for _ in range(nprod): P += s.prod()
        if lacc is not None: G = P + F
        elif F and P and not extra: G = F[:-1] + [F[-1] + P[0]] + P[1:]
        else: G = F + P
        s.interleave(mf, G, fill)
    def tg_phase(s, T, acc, nprods, ymode, lacc=None, base=aFR, c0=True, st0=0, first=True, last=True, bar=False, extra=None, heads=None, bars=(), fills=None, z=False, dual=None):
        if first: s.emit_groups(s.tg_fetch(T, st0, ymode, base, bar))
        n = len(nprods)
        for i, np_ in enumerate(nprods):
            s.tg_step(T, st0 + i, acc, not (last and i == n - 1), np_, ymode, None, lacc, base,
                      extra=(extra or {}).get(st0 + i), c0=((c0 and first or z) and i == 0), head=(heads or {}).get(st0 + i), bar=(st0 + i + 1) in bars, fill=(fills or {}).get(st0 + i), dual=(dual(st0 + i) if dual else None))
    def zero(s, base, n):
        for r in range(base, base + n): s.E(f'v_mov_b32 v{r}, 0')

    def k_fetch(s, dst):
        k0, slot, _ = s.stream[s.cseq]; k1, slot1, _ = s.stream[s.cseq + 1]
        assert k0 == 'K' and k1 == 'K' and slot1 == slot + 1
        s.cseq += 2
        tag = ('q', s.cseq - 1)
        rd = [f'ds_read_b128 {dst(k)}, v{vKB} offset:{slot*QP + k*64}' for k in range(8)]
        return [[('need', tag)] + rd[0:2], rd[2:4], rd[4:6], rd[6:8]]
    def s_phase(s, T, nprods, parked=0, hook=None, qb=0, fills=None, heads=None):
        buf = lambda tau: ((lambda k: vr(vOUT + tau * 32 + 4 * k)) if tau < parked else (lambda k: ar(aFR + (tau & 1) * 32 + 4 * k)))
        if not parked: s.emit_groups(s.k_fetch(buf(0)))
        for tau in range(8):
            if tau == 0 or tau >= parked: s.E('s_waitcnt lgkmcnt(0)'); s.tr_start()
            for x in (heads or {}).get(tau, []): s.E(x)
            mf = []
            for k in range(8):
                for t in range(T):
                    c = vr(vS + (tau * T + t) * 4)
                    qf = qb + ((t // 3) * 24 + k * 3 + (t % 3)) * 4
                    mf.append(f'{MF} {c}, {buf(tau)(k)}, {ar(qf)}, {c if k else 0}')
            F = s.k_fetch(buf(tau + 1)) if (tau < 7 and tau + 1 >= parked) else []
            P = []
            h = hook(tau) if hook else None
            if h: P += [h]
            for _ in range(nprods[tau]): P += s.prod()
            G = P + F
            while len(G) < 4: G = [[]] + G
            if tau > 0: G[-1] = G[-1] + s.tile_max(T, tau - 1)
            s.interleave(mf, G, (fills or {}).get(tau), 8 if tau == 0 else 0)
    def tile_max(s, T, tau):
        S = lambda t, r: vS + (tau * T + t) * 4 + r
        if tau == 0:
            return [f'v_max3_f32 v{M(t)}, v{S(t,0)}, v{S(t,1)}, v{S(t,2)}' for t in range(T)] + [f'v_max_f32 v{M(t)}, v{M(t)}, v{S(t,3)}' for t in range(T)]
        return [f'v_max3_f32 v{M(t)}, v{M(t)}, v{S(t,0)}, v{S(t,1)}' for t in range(T)] + [f'v_max3_f32 v{M(t)}, v{M(t)}, v{S(t,2)}, v{S(t,3)}' for t in range(T)]
    def sm_a(s, T):
        E = s.E
        for x in s.tile_max(T, 7): E(x)
        for op in ('v_permlane32_swap_b32', 'v_permlane16_swap_b32'):
            for t in range(T): E(f'v_mov_b32 v{M(t)+1}, v{M(t)}')
            E('s_nop 1')
            for t in range(T): E(f'{op} v{M(t)}, v{M(t)+1}')
            E('s_nop 1')
            for t in range(T): E(f'v_max_f32 v{M(t)}, v{M(t)}, v{M(t)+1}')
        for t in range(T): E(f'ds_write_b32 v{vStW}, v{M(t)} offset:{t*256}')
        E(f'v_mov_b32 v{vTmp}, 0x3f803f80')
        for r in range(4): E(f'v_accvgpr_write_b32 a{aONE+r}, v{vTmp}')
    def sm_rd(s, t0):
        for t in range(t0, t0 + 3): s.E(f'ds_read_b128 {vr(vSR+4*(t-t0))}, v{vStR} offset:{t*256}')
    def sm_b(s, t0):
        E = s.E
        for t in range(t0, t0 + 3):
            b = vSR + 4 * (t - t0); E(f'v_max3_f32 v{M(t)}, v{b}, v{b+1}, v{b+2}')
        for t in range(t0, t0 + 3):
            b = vSR + 4 * (t - t0); E(f'v_max_f32 v{M(t)}, v{M(t)}, v{b+3}')
        for t in range(t0, t0 + 3): E(f'v_mul_f32 v{M(t)}, s{sC}, v{M(t)}')
    def softmax(s, T):
        E = s.E
        E('s_nop 7'); E('s_nop 1')
        s.sm_a(T)
        E('s_waitcnt lgkmcnt(0)'); E('s_barrier')
        for t0 in range(0, T, 3):
            s.sm_rd(t0)
            E('s_waitcnt lgkmcnt(0)')
            s.sm_b(t0)
    def p_write(s, T, tau, t, reg):
        return f'ds_write_b64 v{vPW}, {vr(reg,2)} offset:{XB + 2*tau*T*1024 + t*1024}'
    def exp_pack(s, T, tau, dst=None, wtau=None):
        E = s.E
        for t0 in range(0, T, 3):
            regs = [(t, vS + (tau * T + t) * 4) for t in range(t0, t0 + 3)]
            for t, b in regs:
                if cfg.pk:
                    for r in (0, 2): E(f'v_pk_fma_f32 {vr(b+r,2)}, {vr(b+r,2)}, s[{sC}:{sC+1}], {vr(M(t),2)} op_sel_hi:[1,0,0] neg_lo:[0,0,1] neg_hi:[0,0,1]')
                else:
                    for r in range(4): E(f'v_fma_f32 v{b+r}, v{b+r}, s{sC}, -v{M(t)}')
            for t, b in regs:
                for r in range(4): E(f'v_exp_f32 v{b+r}, v{b+r}')
            E('s_nop 0')
            for t, b in regs:
                d = dst(t) if dst else b
                E(f'v_cvt_pk_bf16_f32 v{d}, v{b}, v{b+1}'); E(f'v_cvt_pk_bf16_f32 v{d+1}, v{b+2}, v{b+3}')
                if wtau is not None: E(s.p_write(T, wtau, t, d))
    def q_pack(s, acc, dst, nops=True):
        if nops: s.E('s_nop 7'); s.E('s_nop 1')
        for d in range(4):
            for t in range(3):
                a = acc + (d * 3 + t) * 4; o = dst + (d * 3 + t) * 2
                s.E(f'v_cvt_pk_bf16_f32 v{o}, v{a}, v{a+1}'); s.E(f'v_cvt_pk_bf16_f32 v{o+1}, v{a+2}, v{a+3}')
    def q_write(s, src, hd):
        for d in range(4):
            for t in range(3):
                o = src + (d * 3 + t) * 2
                s.E(f'ds_write_b64 v{vQW}, {vr(o,2)} offset:{XB + hd*24576 + (d>>1)*3072 + t*1024 + (d&1)*512}')
    def frag_read(s, n, off=0, dst=0, addr=vLin):
        for f in range(n): s.E(f'ds_read_b128 {ar(dst+4*f)}, v{addr} offset:{XB + off + f*1024}')
    def o_pack(s, T, acc, lacc, write_now, M=M, nops=True):
        E = s.E
        if nops: E('s_nop 7'); E('s_nop 1')
        for t in range(T): E(f'v_rcp_f32 v{M(t)}, v{lacc+4*t}')
        E('s_nop 0')
        W = []
        for kk in range(2):
            for t in range(T):
                a0 = acc + ((2 * kk) * T + t) * 4; a1 = acc + ((2 * kk + 1) * T + t) * 4
                for a in (a0, a1):
                    if cfg.pk:
                        for r in (0, 2): E(f'v_pk_mul_f32 {vr(a+r,2)}, {vr(a+r,2)}, {vr(M(t),2)} op_sel_hi:[1,0]')
                    else:
                        for r in range(4): E(f'v_mul_f32 v{a+r}, v{a+r}, v{M(t)}')
                E(f'v_cvt_pk_bf16_f32 v{a0}, v{a0}, v{a0+1}'); E(f'v_cvt_pk_bf16_f32 v{a0+1}, v{a0+2}, v{a0+3}')
                E(f'v_cvt_pk_bf16_f32 v{a0+2}, v{a1}, v{a1+1}'); E(f'v_cvt_pk_bf16_f32 v{a0+3}, v{a1+2}, v{a1+3}')
                w = f'ds_write_b128 v{vOW+kk}, {vr(a0)} offset:{XB + (t//3)*24576 + (t%3)*1024}'
                if write_now: E(w)
                else: W.append(w)
        return W
    def store_slice(s, sg):
        o = []
        for bb in range(2 if s.b2 else 1):
            base = ((vOUT if sg else vS) + bb * 48) if s.b2 else vOUT + sg * 48
            for u in range(2):
                o.append(f's_add_u32 s{sT0}, s{sP1 if sg else sPART}, {u*3072 + bb*16*PART}')
                for t in range(3):
                    a0 = base + (2 * u * 3 + t) * 4; a1 = a0 + 12
                    o += [f'v_cvt_pk_bf16_f32 v{a0}, v{a0}, v{a0+1}', f'v_cvt_pk_bf16_f32 v{a0+1}, v{a0+2}, v{a0+3}',
                          f'v_cvt_pk_bf16_f32 v{a0+2}, v{a1}, v{a1+1}', f'v_cvt_pk_bf16_f32 v{a0+3}, v{a1+2}, v{a1+3}',
                          f'buffer_store_dwordx4 {vr(a0)}, v{vF6}, {srd(SWS)}, s{sT0} offen offset:{t*1024} {cfg.stpol}']
        return o
    def o_proj(s, *a, **k):
        if not cfg.w3: return s.o_proj1(*a, **k)
        st0 = (list(s.q), s.pseq, s.cseq, s.freed, list(s.owner))
        s.skipB = True
        t3 = s.capture(lambda: s.o_proj1(*a, **k))
        q3 = list(s.q)
        s.skipB = False
        s.q, s.pseq, s.cseq, s.freed, s.owner = st0
        tm = s.capture(lambda: s.o_proj1(*a, **k))
        for tag in set(t for t in s.q if t != 'misc' and t[1] >= s.cseq):
            d = lambda q: len(q) - 1 - max(i for i, t in enumerate(q) if t == tag)
            assert d(q3) >= d(s.q), (tag, d(q3), d(s.q))
        l3, lj = s.lab('w3_'), s.lab('wj_')
        s.L += [f's_cmp_eq_u32 s{sW}, 3', f's_cbranch_scc1 {l3}'] + tm + [f'{lj}:']
        s.cold += [f'{l3}:'] + t3 + [f's_branch {lj}']
    def o_proj1(s, nprods, yb, c0=False, extra=None, fills=None, heads=None, primed=False, parked=0, dual=False):
        if not primed and not parked: s.emit_groups(s.tg_fetch(3, 0, None, aFR))
        for st in range(16):
            ab = (vOUT if st >> 3 else vS) if dual else vOUT + (st >> 3) * 48
            s.tg_step(3, st, ab, st < 15 and st + 1 >= parked, nprods[st], None, yb + (st & 7) * 12, None, aFR, (extra or {}).get(st),
                      c0=(c0 and st in (0, 8)), fill=(fills or {}).get(st), head=(heads or {}).get(st), src=(aO + 16 * st if st < parked else None),
                      nomf=((1 if st == 8 else 2) if (s.skipB and st >= 8) else 0), dual=((ab + 48, aO + (st & 7) * 12) if dual else None))
    def ready_add(s):
        return [] if cfg.sync == 1 else [f'buffer_atomic_add v{vC1}, v{vZ}, {srd(SDBG)}, s{sDO} offen sc1']
    def ready_load(s):
        return [] if cfg.sync == 1 else [f'buffer_load_dword v{vRdy}, v{vZ}, {srd(SDBG)}, s{sDO} offen sc1']
    def finish(s):
        E = s.E
        E('s_nop 7'); E('s_nop 1')
        rl = 'L_reduceB' if s.b2 else 'L_reduce'
        if cfg.w3: E(f's_cmp_eq_u32 s{sW}, 3'); E(f's_cbranch_scc1 {rl}')
        for x in s.store_slice(1): E(x)
        E(f's_branch {rl}')
        s.L += s.cold

    def setup_ids(s, br):
        E = s.E
        E('v_and_b32 v1, 63, v0'); E('v_lshrrev_b32 v40, 6, v0')
        E(f's_and_b32 s{sJ}, s2, 7'); E(f's_lshr_b32 s{sB}, s2, 4')
        if s.b2:
            E(f's_and_b32 s{sT0}, s{sB}, 1'); E(f's_lshl_b32 s{sJ}, s{sJ}, 1'); E(f's_add_u32 s{sJ}, s{sJ}, s{sT0}'); E(f's_and_b32 s{sB}, s{sB}, 14')
        E(f'v_readfirstlane_b32 s{sW}, v40')
        E('v_lshrrev_b32 v43, 3, v1')
        E('v_and_b32 v47, 7, v1')
        if cfg.rot:
            E(f's_mul_i32 s{sRQ}, s{sB}, 7'); E(f's_lshr_b32 s{sRQ}, s{sRQ}, 4'); E(f's_lshr_b32 s{sRO}, s{sB}, 1')
        else:
            E(f's_mov_b32 s{sRQ}, 0'); E(f's_mov_b32 s{sRO}, 0')
        E(f's_mul_i32 s{sRS}, s{sW}, {RSZ}'); E(f's_add_u32 s{sRS}, s{sRS}, {RING}')
    def setup_x(s):
        E = s.E
        E('v_and_b32 v45, 1, v40'); E('v_lshl_add_u32 v46, v45, 3, v43'); E(f'v_mul_u32_u24 v{vX}, 896, v46')
        E('v_lshrrev_b32 v46, 1, v46'); E('v_xor_b32 v46, v46, v47'); E(f'v_lshl_add_u32 v{vX}, v46, 4, v{vX}')
        E(f'v_add_u32 v{vX+1}, 14336, v{vX}'); E(f'v_add_u32 v{vX+2}, 28672, v{vX}')
        E(f's_lshr_b32 s{sT0}, s{sW}, 1'); E(f's_mul_i32 s{sXM}, s{sT0}, 6'); E(f's_and_b32 s{sT1}, s{sW}, 1'); E(f's_add_u32 s{sXM}, s{sXM}, s{sT1}'); E(f's_lshl_b32 s{sXM}, s{sXM}, 10')
        E(f's_add_u32 s{sT1}, s{sT0}, s{sRQ}'); E(f's_mul_i32 s{sT2}, s{sB}, 43008')
        for m in range(4):
            E(f's_add_u32 s{sXC+m}, s{sT1}, {2*m}'); E(f's_cmp_ge_u32 s{sXC+m}, 7'); E(f's_cselect_b32 s{sLC}, 7, 0'); E(f's_sub_u32 s{sXC+m}, s{sXC+m}, s{sLC}')
            E(f's_lshl_b32 s{sXC+m}, s{sXC+m}, 7'); E(f's_add_u32 s{sXC+m}, s{sXC+m}, s{sT2}')
        E(f's_cmp_eq_u32 s{sT0}, 1'); E(f's_cselect_b32 s{sXC+3}, 0x40000000, s{sXC+3}')
    def setup_w(s):
        E = s.E
        E('v_and_b32 v45, 6, v43'); E('v_xor_b32 v44, v47, v45'); E('v_lshlrev_b32 v44, 4, v44')
        E('v_lshl_add_u32 v44, v40, 7, v44')
        E('v_lshrrev_b32 v45, 2, v43'); E('v_lshlrev_b32 v45, 3, v45'); E('v_and_b32 v46, 3, v43'); E('v_add_u32 v45, v45, v46')
        E(f'v_lshl_add_u32 v{vWA}, v45, 13, v44')
        for p in range(1, 4): E(f'v_add_u32 v{vWA+p}, {(16*(p&1)+4*(p>>1))*8192 - p*1024}, v{vWA}')
    def setup_k(s, br):
        E = s.E
        E('v_lshrrev_b32 v45, 5, v1'); E('v_and_b32 v46, 31, v1'); E('v_xor_b32 v46, v46, v45'); E('v_lshlrev_b32 v46, 4, v46')
        E('v_lshl_add_u32 v46, v45, 9, v46'); E(f'v_lshl_add_u32 v{vK}, v40, 12, v46')
        E(f's_lshl_b32 s{sPK}, s{sB}, {4 if s.b2 else 3}'); E(f's_add_u32 s{sPK}, s{sPK}, s{sJ}')
        E(f's_add_u32 s{sPART}, s{sPK}, {128*br}'); E(f's_mul_i32 s{sPART}, s{sPART}, {PART}')
        E(f's_lshl_b32 s{sPK}, s{sPK}, {19 if br and not s.b2 else 18}'); E(f's_mov_b32 s{sPV}, s{sPK}')
        E(f'v_lshlrev_b32 v{vLin}, 4, v1')
    def setup_rd(s, k=True):
        E = s.E
        E('v_and_b32 v41, 15, v1')
        E('v_lshrrev_b32 v42, 4, v1')
        E('v_lshrrev_b32 v45, 2, v41')
        E('v_and_b32 v46, 1, v42'); E('v_lshl_add_u32 v45, v46, 2, v45')
        E('v_lshrrev_b32 v46, 1, v42'); E('v_lshlrev_b32 v46, 10, v46'); E('v_lshl_add_u32 v46, v45, 7, v46')
        E('v_and_b32 v47, 3, v41'); E('v_lshl_add_u32 v46, v47, 3, v46'); E(f'v_add_u32 v46, s{sRS}, v46')
        E('v_lshrrev_b32 v45, 1, v45')
        for d in range(4):
            E(f'v_xor_b32 v47, {d}, v45'); E(f'v_lshl_add_u32 v{vTB+d}, v47, 5, v46')
        E('v_lshrrev_b32 v45, 3, v41'); E('v_lshlrev_b32 v45, 10, v45'); E('v_and_b32 v46, 7, v41'); E('v_lshl_add_u32 v45, v46, 7, v45')
        E('v_lshrrev_b32 v46, 1, v41'); E('v_xor_b32 v46, v46, v42'); E(f'v_lshl_add_u32 v{vXR}, v46, 4, v45'); E(f'v_xor_b32 v{vXR+1}, 64, v{vXR}')
        if k: s.setup_kb()
    def setup_kb(s):
        E = s.E
        E('v_lshrrev_b32 v45, 1, v41'); E(f'v_mul_u32_u24 v{vKB}, 1056, v45'); E('v_and_b32 v45, 1, v41')
        E(f'v_lshl_add_u32 v{vKB}, v45, 9, v{vKB}'); E('v_xor_b32 v45, v45, v42'); E(f'v_lshl_add_u32 v{vKB}, v45, 4, v{vKB}')
        E(f'v_add_u32 v{vKB}, s{sRS}, v{vKB}')
    def setup_late(s, T, br):
        E = s.E
        E(f'v_lshl_add_u32 v{vV}, v43, 9, v44')
        for p in range(1, 4): E(f'v_add_u32 v{vV+p}, {p*3072}, v{vV}')
        E(f'v_mul_u32_u24 v{vOA}, 896, v43'); E(f'v_add_u32 v{vOA}, v{vOA}, v44')
        for p in range(1, 4): E(f'v_add_u32 v{vOA+p}, {p*(8*896-1024)}, v{vOA}')
        E(f's_add_u32 s{sP1}, s{sPART}, 24576')
        E(f's_cmp_eq_u32 s{sW}, 3'); E(f's_cselect_b32 s{sLC}, 0x40000000, 512'); E(f's_cselect_b32 s{sP1}, 0x40000000, s{sP1}')
        E(f's_mov_b32 s{sU}, 0')
        if cfg.swap:
            if cfg.w3:
                E(f's_cselect_b32 s{sC}, 0, s{sB}'); E(f's_bitcmp1_b32 s{sC}, {1 if s.b2 else 0}')
            else:
                E(f's_bitcmp1_b32 s{sB}, 0')
            E(f's_cselect_b32 s{sU}, s{sLC}, 0'); E(f's_cselect_b32 s{sLC}, 0, s{sLC}')
            E(f's_cselect_b32 s{sC}, s{sP1}, s{sPART}'); E(f's_cselect_b32 s{sP1}, s{sPART}, s{sP1}'); E(f's_mov_b32 s{sPART}, s{sC}')
        for p in range(4): E(f'v_add_u32 v{vWB+p}, s{sLC}, v{vOA+p}')
        for p in range(4): E(f'v_add_u32 v{vOA+p}, s{sU}, v{vOA+p}')
        E(f'v_mul_u32_u24 v45, 6144, v40'); E(f'v_add_u32 v{vF6}, v45, v{vLin}')
        E('v_lshrrev_b32 v46, 1, v42'); E('v_lshl_add_u32 v45, v46, 8, v45')
        E('v_lshl_add_u32 v45, v41, 4, v45'); E('v_and_b32 v47, 1, v42'); E(f'v_lshl_add_u32 v{vQW}, v47, 3, v45')
        E(f'v_mul_u32_u24 v45, {T*1024}, v46'); E('v_and_b32 v46, 1, v40'); E('v_lshl_add_u32 v46, v46, 1, v47')
        E('v_lshl_add_u32 v45, v46, 8, v45'); E('v_lshl_add_u32 v45, v41, 4, v45'); E('v_lshrrev_b32 v46, 1, v40'); E(f'v_lshl_add_u32 v{vPW}, v46, 3, v45')
        E(f'v_lshlrev_b32 v45, 4, v41'); E(f'v_add_u32 v{vStR}, {STAT}, v45'); E(f'v_lshl_add_u32 v{vStW}, v40, 2, v{vStR}')
        for kk in range(2):
            E(f's_lshl_b32 s{sLC}, s{sW}, 1'); E(f's_add_u32 s{sLC}, s{sLC}, {8+kk}'); E(f's_sub_u32 s{sLC}, s{sLC}, s{sRO}'); E(f's_and_b32 s{sLC}, s{sLC}, 7')
            E(f's_mul_i32 s{sLC}, s{sLC}, 3072'); E(f'v_add_u32 v{vOW+kk}, s{sLC}, v{vLin}')
        c = struct.unpack('<I', struct.pack('<f', 1.4426950408889634 / 16.0))[0]
        E(f's_mov_b32 s{sC}, {c:#x}'); E(f's_mov_b32 s{sC+1}, s{sC}'); E(f's_mov_b32 s{sBR}, {br}')
    def touch(s, br):
        E = s.E
        E(f's_lshl_b32 s{sFL}, s{sB}, 8'); E(f's_add_u32 s{sFL}, s{sFL}, {FLAGS + br*4096}')
        E(f'v_min_u32 v{vZ}, 1, v0'); E(f'v_lshlrev_b32 v{vZ}, 30, v{vZ}')
        E(f'buffer_load_dword v{vOld}, v{vZ}, {srd(SWS)}, s{sFL} offen sc1')
        if cfg.tlb:
            if br: E(f'buffer_load_dword v{vPF}, v{vZ}, {srd(SK)}, s{sPK} offen {cfg.kvpol}')
            E(f'buffer_load_dword v{vPF}, v{vZ}, {srd(SV)}, s{sPV} offen {cfg.kvpol}')
            E(f'buffer_load_dword v{vPF}, v{vZ}, {srd(SWS)}, s{sPART} offen sc1')
    def load_ptrs(s, br):
        E = s.E
        o = 40 * br
        E(f's_load_dwordx2 s[{SX}:{SX+1}], s[0:1], {o}')
        E(f's_load_dwordx2 s[{SW}:{SW+1}], s[0:1], {o+24}')
        E(f's_load_dwordx2 s[{SK}:{SK+1}], s[0:1], {o+8}')
        E(f's_load_dwordx2 s[{SV}:{SV+1}], s[0:1], {o+16}')
        E(f's_load_dwordx2 s[{SWO}:{SWO+1}], s[0:1], {o+32}')
        E(f's_load_dwordx2 s[{SWS}:{SWS+1}], s[0:1], 96')
        kv = 16 * (16 if br else 8) * 262144
        for r, n in ((SX, 16 * 43008), (SW, 448 * 8192), (SK, kv), (SV, kv), (SWS, FLAGS + 8192)):
            E(f's_mov_b32 s{r+2}, {n}'); E(f's_mov_b32 s{r+3}, 0x20000')
    def pf_loop(s, n):
        def body():
            for k in range(4):
                s.E(f'buffer_load_dwordx4 {vr(vPF)}, v{vLin}, {srd(SPF)}, s{sT2} offen')
                s.E(f's_add_u32 s{sT2}, s{sT2}, s{sT1}')
            s.E('s_waitcnt vmcnt(24)')
        s.rolled(n // 4, body)

F = NQ - LEAD
WQ = ['WA'] * 14; WO = ['WA'] * 8 + ['WB'] * 8
def WN(n, entry=LEAD, stay=False, nat=False):
    up = LEAD + cfg.wl - entry
    if stay: return [2] * up + [1] * (n - up)
    if nat: return [2] * up + [1] * (n - up - 6) + [int(c) for c in str(cfg.tailp).zfill(6)]
    return [2] * up + [1] * (n - up - cfg.wl - LEAD) + [0] * cfg.wl + [1] * LEAD
def ramp_np(n): return WN(n, cfg.ramp, nat=True)
pat = lambda p: [int(c) for c in str(p).lstrip('x')]

def q_both(s, started):
    E = s.E
    ex = {14 - LEAD - cfg.wl: s.wq_head()}
    if cfg.xb < 4: ex[0] = s.x_loads(range(cfg.xb, 4))
    s.tg_phase(3, vS, WN(14, started, True), 'x', bar=True, extra=ex, bars=((4 * cfg.xb,) if cfg.xb < 4 else ()))
    s.q_pack(vS, vS + 48)
    s.tg_phase(3, vS, WN(14, LEAD + cfg.wl, nat=True), 'x')
def q_misc(s):
    E = s.E
    E(f's_load_dwordx2 s[{SDBG}:{SDBG+1}], s[0:1], 88')
    for x in s.w_to_wo(): E(x)
    E(f's_lshl_b32 s{sT0}, s{sB}, 4'); E(f's_lshl_b32 s{sDO}, s{sBR}, 3'); E(f's_add_u32 s{sDO}, s{sDO}, s{sT0}'); E(f'v_mov_b32 v{vC1}, 1')
def q_exch(s):
    E = s.E
    q_misc(s)
    s.q_pack(vS, vS + 72)
    E('s_barrier')
    s.q_write(vS + 48, 0); s.q_write(vS + 72, 1)
    E('s_waitcnt lgkmcnt(0)'); E('s_barrier')
    E(f's_mov_b32 s{SDBG+2}, 256')

def path_B_text():
    s = Gen(1000); E = s.E
    pb = cfg.parkB; dfl = None
    for kinds, st in ((['K'] * (2 * pb), 0), (WQ, 2 * pb), (WQ, 2 * pb + 2), (['K'] * (16 - 2 * pb), 2 * pb + 4), (['V'] * 16, 2), (['K'] * 16, 0), (WO, 4)): s.plan(kinds, st)
    pk_ = cfg.parkO
    assert pk_ in (0, 6)
    if pk_: s.plan(WO[:6], 2); s.plan(['V'] * 16, 2); s.plan(WO[6:], 0, 6)
    else: s.plan(['V'] * 16, 2); s.plan(WO, 0)
    s.stamp(0)
    s.load_ptrs(1)
    if pb:
        s.setup_ids(1); s.setup_k(1)
        E('s_waitcnt lgkmcnt(0)')
        for _ in range(2): s.emit_groups(s.prod())
        s.touch(1); s.setup_x(); s.setup_w(); s.setup_rd(); s.setup_late(3, 1)
        for x in s.wq_table(0, 14): E(x)
        for _ in range(2 * pb - 2): s.emit_groups(s.prod())
        s.emit_groups([s.x_loads(range(cfg.xb))])
        if pb < 3:
            for _ in range(cfg.rampB): s.emit_groups(s.prod())
        for tau in range(pb):
            s.emit_groups(s.k_fetch(lambda k: vr(vOUT + tau * 32 + 4 * k)))
            if tau == 0 and pb == 3:
                E('s_waitcnt lgkmcnt(0)')
                for _ in range(cfg.rampB): s.emit_groups(s.prod())
        E('s_waitcnt lgkmcnt(0)')
    else:
        sb = (lambda k: s.stamp(k)) if cfg.stB else (lambda k: None)
        if cfg.pro == 0:
            s.setup_ids(1); s.setup_x(); s.setup_w()
            for x in s.wq_table(0, cfg.rampB): E(x)
            E('s_waitcnt lgkmcnt(0)')
            s.emit_groups([s.x_loads(range(cfg.xb))])
            for _ in range(cfg.rampB): s.emit_groups(s.prod())
            for x in s.wq_table(cfg.rampB, 14): E(x)
            s.setup_k(1); s.touch(1); s.setup_rd(); s.setup_late(3, 1)
        else:
            s.setup_ids(1); s.setup_x()
            sb(2)
            E('s_waitcnt lgkmcnt(0)')
            sb(3)
            s.emit_groups([s.x_loads(range(cfg.xb))])
            sb(4)
            s.setup_w()
            if cfg.defer:
                for x in s.wq_table(0, 8): E(x)
                for _ in range(2): s.emit_groups(s.prod())
                s.setup_rd(False)
                sb(5)
                for _ in range(cfg.rampB - 2): s.emit_groups(s.prod())
                def rest():
                    s.setup_k(1); s.touch(1); s.setup_kb(); s.setup_late(3, 1)
                dfl = {0: s.wq_table(8, 11), 1: s.wq_table(11, 14)}
                dfl.update(dict(enumerate(Gen.split(s.capture(rest), 11), 2)))
            else:
                for x in s.wq_table(0, 14): E(x)
                s.setup_k(1); s.touch(1); s.setup_rd(); s.setup_late(3, 1)
                sb(5)
                for _ in range(cfg.rampB): s.emit_groups(s.prod())
        sb(6)
        if cfg.stB:
            st0_ = s.stamp
            s.stamp = lambda k: (None if 2 <= k <= 6 else st0_(k))
    if cfg.trace:
        s.tr = True; E('s_mov_b32 s100, 0'); E('s_memrealtime s[96:97]'); E('v_mov_b32 v42, 0'); E('v_mov_b32 v43, 0')
    if cfg.fastq:
        assert not pb and cfg.xb == 4
        cap = s.capture
        s.tg_phase(3, vS, WN(14, cfg.rampB, True), 'x', bar=True, extra={14 - LEAD - cfg.wl: s.wq_head()}, last=False, fills=dfl)
        p1 = cap(lambda: s.q_pack(vS, vS + 48, False)); w1 = cap(lambda: s.q_write(vS + 48, 0)); r1 = cap(lambda: s.frag_read(24))
        fl = dict(enumerate(Gen.split(p1, 3), 15)); fl[22] = w1; fl.update(dict(enumerate(Gen.split(r1, 4), 24)))
        s.tg_phase(3, vOUT, [1] * 8 + pat(cfg.tailB), 'x', st0=14, first=False, z=True, fills=fl, heads={22: ['s_barrier'], 24: ['s_barrier']})
        s.stamp(1)
        p2 = cap(lambda: s.q_pack(vOUT, vOUT + 48, False)); w2 = cap(lambda: s.q_write(vOUT + 48, 1)); r2 = cap(lambda: s.frag_read(24, 24576, aO))
        fl = {0: p2, 1: w2, 2: cap(lambda: q_misc(s))}; fl.update(dict(enumerate(Gen.split(r2, 4), 3)))
        s.s_phase(3, pat(cfg.snB), fills=fl, heads={1: ['s_barrier'], 3: ['s_barrier', f's_mov_b32 s{SDBG+2}, 256']})
    else:
        q_both(s, cfg.rampB)
        s.stamp(1)
        def g0():
            q_exch(s); s.frag_read(24)
        q2 = s.capture(lambda: s.frag_read(24, 24576, aO))
        if pb:
            s.gap(g0, 1, 0.5, 1.0)
            sn = [1] + [0] * (pb - 1) + pat(cfg.sn)[:8 - pb]
        else:
            s.gap(g0, F); sn = pat(cfg.sn)
        s.s_phase(3, sn, parked=pb, fills=dict(enumerate(Gen.split(q2, 4), 2)))
    s.stamp(2)
    def g1():
        s.softmax(3)
        for tau in range(8): s.exp_pack(3, tau, wtau=tau)
        E('s_waitcnt lgkmcnt(0)'); E('s_barrier')
    s.gap(g1, F, 0.1, 0.9)
    s.stamp(3)
    s.tg_phase(3, vOUT, pat(cfg.pvn)[:12], 'p', lacc=vOUT + 48, heads={8: s.ready_add()}, last=False)
    def late():
        s.tg_phase(3, vOUT, pat(cfg.pvn)[12:], 'p', lacc=vOUT + 48, st0=12, first=False, heads={12: ['s_barrier']})
        s.stamp(4)
        if cfg.trace: E('v_mov_b32 v44, v42'); E('v_mov_b32 v45, v43'); E('s_mov_b32 s100, 0')
        op = s.capture(lambda: s.o_pack(3, vOUT, vOUT + 48, True, M=lambda t: vSR + 2 * t, nops=False))
        of = s.capture(lambda: s.frag_read(24, 0, 0))
        fl = dict(enumerate(Gen.split(op, 2))); fl.update(dict(enumerate(Gen.split(of, 4), 3)))
        s.s_phase(3, [2] * 8, qb=aO, fills=fl, heads={3: ['s_barrier']})
        s.stamp(5)
        if cfg.expW:
            a_ = s.capture(lambda: s.sm_a(3)); r_ = s.capture(lambda: s.sm_rd(0)); b_ = s.capture(lambda: s.sm_b(0))
            exf = lambda: [s.exp_pack(3, tau, wtau=tau) for tau in range(8)]
            if cfg.expW == 2:
                fl = {1: a_, 2: r_, 3: b_}; fl.update(dict(enumerate(Gen.split(s.capture(exf), 12), 4))); hb = 2
            else:
                hb = cfg.hb; fl = dict(enumerate(Gen.split(a_, 4), 3)); fl.update({hb: r_, hb + 1: b_})
            if pk_:
                s.o_proj(WN(16, stay=True), 0, c0=True, fills=fl, heads={hb: ['s_barrier']}, extra={10: s.wo_head()})
                s.stamp(6)
                for k in range(6):
                    s.emit_groups(s.tg_fetch(3, 0, None, aFR, dst=aO + 16 * k))
                    if k in (1, 3):
                        E('s_waitcnt lgkmcnt(0)'); s.emit_groups(s.prod())
                E('s_waitcnt lgkmcnt(0)')
                s.gap(exf, 4, 0.0, 1.0)
            else:
                s.o_proj(WN(16, nat=True), 0, c0=True, fills=fl, heads={hb: ['s_barrier']})
                s.stamp(6)
                for x in s.wo_head(): E(x)
                if cfg.expW == 2:
                    for _ in range(F): s.emit_groups(s.prod())
                else:
                    s.gap(exf, F, 0.1, 0.9)
            E('s_waitcnt lgkmcnt(0)'); E('s_barrier')
        else:
            s.o_proj(WN(16, nat=True), 0, c0=True)
            s.stamp(6)
            for x in s.wo_head(): E(x)
            s.gap(g1, F, 0.1, 0.9)
    def early():
        s.tg_phase(3, vOUT, [3, 1, 1, 0], 'p', lacc=vOUT + 48, st0=12, first=False, heads={12: ['s_barrier']})
        s.stamp(4)
        s.emit_groups(s.tg_fetch(3, 0, None, aFR))
        s.o_pack(3, vOUT, vOUT + 48, True, nops=False)
        E('s_waitcnt lgkmcnt(0)'); E('s_barrier')
        of = s.capture(lambda: s.frag_read(24, 0, 0))
        for x in of[:6]: E(x)
        tl = pat(cfg.otl)
        s.o_proj([1, 1, 1, 2] + [1] * 6 + tl, 0, c0=True, fills=dict(enumerate(Gen.split(of[6:], 6))), primed=True, heads={10: ['s_barrier']})
        s.stamp(5)
        for x in s.wo_head(): E(x)
        sn = [2] * 8
        for k in range(sum(tl) - 4): sn[2 + k] = 1
        s.s_phase(3, sn, qb=aO)
        s.stamp(6)
        s.gap(g1, F, 0.1, 0.9)
    if not cfg.stag: late()
    else:
        z = (list(s.q), s.pseq, s.cseq, s.freed, list(s.owner)); st_keep = list(s.stream)
        p0 = s.pseq
        assert s.stream[p0][0] == 'K' and s.stream[p0][2] == 0
        s.stream = st_keep[:p0] + [(k, i % NQ, i) for i, k in enumerate(WO)] + [('K', (4 + i) % NQ, i) for i in range(16)] + st_keep[p0 + 32:]
        te = s.capture(early); ze = (list(s.q), s.pseq, s.cseq)
        s.q, s.pseq, s.cseq, s.freed, s.owner = z; s.stream = st_keep
        tlate = s.capture(late)
        assert ze[1:] == (s.pseq, s.cseq) and ze[0][-24:] == s.q[-24:]
        s.L += [f's_bitcmp1_b32 s{sB}, {cfg.stag - 1}', 's_cbranch_scc1 L_early'] + tlate + ['L_join:']
        s.cold += ['L_early:'] + te + ['s_branch L_join']
    s.stamp(7)
    ep = pat(cfg.endp)
    s.tg_phase(3, vS, pat(cfg.pvn)[:12] + ep, 'p', lacc=vS + 48, heads={4: s.ready_load(), 12: ['s_barrier']})
    s.stamp(8)
    if not pk_: s.emit_groups(s.tg_fetch(3, 0, None, aFR))
    def g2():
        s.o_pack(3, vS, vS + 48, True, nops=bool(pk_))
    if sum(ep) == 4: s.gap(g2, F, 0.0, 0.6)
    else: g2()
    E('s_waitcnt lgkmcnt(0)'); E('s_barrier')
    of = s.capture(lambda: s.frag_read(24, 0, 0))
    for x in of[:6]: E(x)
    s.stamp(9)
    fl = dict(enumerate(Gen.split(of[6:], cfg.fsp))); fl.update(dict(enumerate(Gen.split(s.store_slice(0), 6), 9)))
    x5 = 1 if sum(ep) == 5 else 0
    if pk_: s.o_proj([x5] + [0] * 5 + [1] * 4 + [0] * 6, 0, fills=fl, parked=6)
    else: s.o_proj([1, 1, 1, 1 + x5] + [1] * 6 + [0] * 6, 0, fills=fl, primed=True)
    for k in (10, 11): s.stamp(k)
    if cfg.trace:
        E('s_waitcnt lgkmcnt(0)'); s.tr_start()
        for i in range(4): E(f'v_mov_b32 v{2+i}, v{(44,45,42,43)[i]}')
    s.finish()
    return s.L

def path_B2_text():
    s = Gen(1000); E = s.E; s.b2 = True; cap = s.capture
    for i, sl in enumerate([0, 1, 2, 0, 1, 2, 3, 4, 5, 0, 1, 2, 3, 4]): s.stream.append(('WA', sl, i))
    for kinds, st in ((['K'] * 16, 0), (['V'] * 16, 4), (['K'] * 16, 2), (['V'] * 16, 0), (WO, 4)): s.plan(kinds, st)
    s.stamp(0)
    s.load_ptrs(1)
    s.setup_ids(1); s.setup_x()
    E('s_waitcnt lgkmcnt(0)')
    s.emit_groups([s.x_loads()])
    for m in range(4): E(f's_add_u32 s{sXC+m}, s{sXC+m}, 43008')
    for m in range(4):
        for t in range(3):
            E(f's_add_u32 m0, s{sRS}, {(3+t)*QP + m*1024}'); E('s_nop 0')
            E(f'buffer_load_dwordx4 v{vX+t}, {srd(SX)}, s{sXC+m} offen {cfg.wpol} lds')
    s.setup_w()
    for x in s.wq_table(0, 14): E(x)
    s.setup_k(1); s.touch(1); s.setup_rd(); s.setup_late(3, 1)
    E('v_lshrrev_b32 v45, 3, v41'); E(f'v_mul_u32_u24 v45, {RSZ-1024}, v45'); E(f'v_add_u32 v45, {RING + 3*QP}, v45')
    E(f'v_add_u32 v{vSR}, v45, v{vXR}'); E(f'v_add_u32 v{vSR+1}, v45, v{vXR+1}')
    for _ in range(3): s.emit_groups(s.prod())
    if cfg.trace:
        s.tr = True; E('s_mov_b32 s100, 0'); E('s_memrealtime s[96:97]'); E('v_mov_b32 v42, 0'); E('v_mov_b32 v43, 0')
    x1 = [f'ds_read_b128 {ar(12*st+4*t)}, v{vSR+(st&1)} offset:{((st>>1)&1)*2*RSZ + t*QP + (st>>2)*1024}' for st in range(14) for t in range(3)]
    s.emit_groups(s.tg_fetch(3, 0, 'x', aFR, True))
    for x in x1[:6]: E(x)
    fl = dict(enumerate(Gen.split(x1[6:], 2)))
    s.tg_phase(3, vS, pat(cfg.qn), 'x', first=False, z=True, fills=fl, heads={3: ['s_barrier'], 9: ['s_barrier']}, dual=lambda st: (vOUT, 12 * st))
    s.stamp(1)
    def g0():
        s.q_pack(vS, vS + 48)
        s.q_write(vS + 48, 0)
        E('s_waitcnt lgkmcnt(0)'); E('s_barrier')
        s.frag_read(24)
    s.gap(g0, cfg.gq, 0.3, 1.0)
    p2 = cap(lambda: s.q_pack(vOUT, vOUT + 48, False)); w2 = cap(lambda: s.q_write(vOUT + 48, 1)); r2 = cap(lambda: s.frag_read(24, 24576, aO))
    fl = {0: p2, 1: w2, 2: cap(lambda: q_misc(s))}; fl.update(dict(enumerate(Gen.split(r2, 4), 3)))
    s.s_phase(3, pat(cfg.sn1), fills=fl, heads={3: ['s_barrier', f's_mov_b32 s{SDBG+2}, 256']})
    s.stamp(2)
    def g1():
        s.softmax(3)
        for tau in range(8): s.exp_pack(3, tau, wtau=tau)
        E('s_waitcnt lgkmcnt(0)'); E('s_barrier')
    s.gap(g1, F, 0.1, 0.9)
    s.stamp(3)
    s.tg_phase(3, vOUT, pat(cfg.pvn), 'p', lacc=vOUT + 48, heads={8: s.ready_add(), 12: ['s_barrier']})
    s.stamp(4)
    if cfg.trace: E('v_mov_b32 v44, v42'); E('v_mov_b32 v45, v43'); E('s_mov_b32 s100, 0')
    op = cap(lambda: s.o_pack(3, vOUT, vOUT + 48, True, M=lambda t: vSR + 2 * t, nops=False))
    of = cap(lambda: s.frag_read(24, 0, 0))
    fl = dict(enumerate(Gen.split(op, 2))); fl.update(dict(enumerate(Gen.split(of, 4), 3)))
    s.s_phase(3, [2] * 8, qb=aO, fills=fl, heads={3: ['s_barrier']})
    s.stamp(5); s.stamp(6)
    s.gap(g1, F, 0.1, 0.9)
    s.stamp(7)
    s.tg_phase(3, vOUT, pat(cfg.pvn)[:12] + [3, 1, 1, 0], 'p', lacc=vOUT + 48, heads={4: s.ready_load(), 12: ['s_barrier']})
    s.stamp(8)
    s.emit_groups(s.tg_fetch(3, 0, None, aFR))
    s.o_pack(3, vOUT, vOUT + 48, True, nops=False)
    E('s_waitcnt lgkmcnt(0)'); E('s_barrier')
    of = cap(lambda: s.frag_read(24, 0, aO))
    for x in of[:6]: E(x)
    s.stamp(9)
    fl = dict(enumerate(Gen.split(of[6:], 6))); fl.update(dict(enumerate(Gen.split(s.store_slice(0), 6), 9)))
    s.o_proj([1, 1, 1, 2] + [1] * 6 + [0] * 6, 0, c0=True, fills=fl, primed=True, dual=True)
    for k in (10, 11): s.stamp(k)
    if cfg.trace:
        E('s_waitcnt lgkmcnt(0)'); s.tr_start()
        for i in range(4): E(f'v_mov_b32 v{2+i}, v{(44,45,42,43)[i]}')
    s.finish()
    return s.L

def path_A():
    s = Gen(2000); E = s.E
    park = 3 if cfg.earlyK else 0
    pa = cfg.parkA
    assert park and pa in (0, 6)
    for kinds, st in ((['K'] * 6, 0), (WQ, 0), (WQ, 2), (['K'] * 10, 4)): s.plan(kinds, st)
    if pa: s.plan(WO[:6], 2); s.plan(['V'] * 16, 2); s.plan(WO[6:], 0, 6); s.plan(WO, 4)
    else: s.plan(['V'] * 16, 2); s.plan(WO, 0); s.plan(WO, 4)
    s.stamp(0)
    s.load_ptrs(0)
    if cfg.warm: E(f's_load_dwordx4 s[{sST+8}:{sST+11}], s[0:1], 64')
    s.setup_ids(0); s.setup_k(0)
    E('s_waitcnt lgkmcnt(0)')
    def warm():
        E(f's_mul_i32 s{sT0}, s{sB}, 28'); E(f's_mul_i32 s{sT1}, s{sW}, 7'); E(f's_add_u32 s{sT0}, s{sT0}, s{sT1}')
        E(f's_mov_b32 s{SPF+2}, {448*8192}'); E(f's_mov_b32 s{SPF+3}, 0x20000')
        for c in str(cfg.word).lstrip('x'):
            ptr, isq = ((sST + 8, True), (SW, True), (sST + 10, False), (SWO, False))[int(c)]
            E(f's_mov_b32 s{SPF}, s{ptr}'); E(f's_mov_b32 s{SPF+1}, s{ptr+1}')
            if isq:
                E(f's_lshl_b32 s{sT2}, s{sT0}, 13'); E(f's_lshl_b32 s{sT1}, s{sJ}, 10')
            else:
                E(f's_lshl_b32 s{sT2}, s{sT0}, 10'); E(f's_mul_i32 s{sT1}, s{sJ}, {512*896}')
            E(f's_add_u32 s{sT2}, s{sT2}, s{sT1}')
            for k in range(7):
                E(f'buffer_load_dwordx4 {vr(vPF)}, v{vLin}, {srd(SPF)}, s{sT2} offen')
                if k < 6: E(f's_add_u32 s{sT2}, s{sT2}, {8192 if isq else 1024}')
    def wo_warm(own, head2):
        o = []
        n = 4 if head2 else 7
        o += [f's_mul_i32 s{sT2}, s{sB}, {14336 if head2 else 28672}', f's_mul_i32 s{sT1}, s{sW}, {3584 if head2 else 7168}', f's_add_u32 s{sT2}, s{sT2}, s{sT1}',
              f's_mul_i32 s{sT1}, s{sJ}, {512*896}', f's_add_u32 s{sT2}, s{sT2}, s{sT1}']
        if head2: o += [f's_add_u32 s{sT2}, s{sT2}, {256*896}']
        for k in range(n):
            o += [f'buffer_load_dwordx4 {vr(vOA)}, v{vLin}, {srd(SW if own else SPF)}, s{sT2} offen']
            if k < n - 1: o += [f's_add_u32 s{sT2}, s{sT2}, 1024']
        return o
    def code_pf(va, vd):
        lb = s.lab('pc')
        o = [f's_getpc_b64 s[{sT0}:{sT0+1}]', f'{lb}:', f's_sub_u32 s{sT0}, s{sT0}, {lb}-{NAME}_kernel', f's_subb_u32 s{sT0+1}, s{sT0+1}, 0',
             f's_lshl_b32 s{sT2}, s{sB}, 2', f's_add_u32 s{sT2}, s{sT2}, s{sW}', f's_mul_i32 s{sT2}, s{sT2}, 1408']
        for k in range(2):
            o += [f'v_add_u32 v{va}, s{sT2}, v{vLin}', f'v_min_u32 v{va}, L_code_end-{NAME}_kernel-16, v{va}',
                  f'v_mov_b32 v{va+1}, s{sT0+1}', f'v_add_co_u32 v{va}, vcc, s{sT0}, v{va}', 's_nop 1', f'v_addc_co_u32 v{va+1}, vcc, 0, v{va+1}, vcc',
                  f'global_load_dwordx4 {vr(vd)}, {vr(va,2)}, off']
            if k == 0: o += [f's_add_u32 s{sT2}, s{sT2}, 1024']
        return o
    sa = (lambda k: s.stamp(k)) if cfg.stA else (lambda k: None)
    sa(7)
    if cfg.codepf & 1:
        for x in code_pf(48, vPF): E(x)
    if cfg.warm == 1: warm()
    sa(8)
    if park:
        for _ in range(2): s.emit_groups(s.prod())
    s.touch(0); s.setup_x(); s.setup_w(); s.setup_rd(); s.setup_late(6, 0)
    for x in s.wq_table(0, 14): E(x)
    if park:
        for _ in range(4): s.emit_groups(s.prod())
    sa(9)
    if cfg.pfK:
        if cfg.pfsel: E(f's_bitcmp1_b32 s{sB}, {cfg.pfsel - 1}'); E('s_cbranch_scc0 L_nopf')
        E(f's_mov_b32 s{sT2}, s{sPK}')
        for k in range(cfg.pfK):
            for p in range(4): E(f'buffer_load_dwordx4 {vr(vPF)}, v{vK}, {srd(SK)}, s{sT2} offen offset:{p*1024} {cfg.pfpol}')
            E(f's_add_u32 s{sT2}, s{sT2}, 0x4000')
            if cfg.pfw < 63: E(f's_waitcnt vmcnt({cfg.pfw})')
        E(f's_mov_b32 s{sT2}, s{sPV}')
        for k in range(cfg.pfV):
            for p in range(4): E(f'buffer_load_dwordx4 {vr(vPF)}, v{vK}, {srd(SV)}, s{sT2} offen offset:{p*1024} {cfg.pfpol}')
            E(f's_add_u32 s{sT2}, s{sT2}, 0x4000')
            if cfg.pfw < 63: E(f's_waitcnt vmcnt({cfg.pfw})')
        if cfg.pfsel: E('L_nopf:')
    if cfg.warm == 2: warm()
    s.emit_groups([s.x_loads(range(cfg.xb))])
    sa(10)
    if park:
        for tau in range(3):
            s.emit_groups(s.k_fetch(lambda k: vr(vOUT + tau * 32 + 4 * k)))
            if tau == 0:
                E('s_waitcnt lgkmcnt(0)')
                for _ in range(cfg.ramp): s.emit_groups(s.prod())
        E('s_waitcnt lgkmcnt(0)')
    else:
        for _ in range(cfg.ramp): s.emit_groups(s.prod())
    s.stamp(1)
    q_both(s, cfg.ramp)
    s.stamp(2)
    def g0():
        q_exch(s); s.frag_read(48)
    sHV = sXC
    def hv_loads(n):
        o = []
        for k in range(n):
            o += [f'buffer_load_dwordx4 {vr(vOA)}, v{vLin}, {srd(SPF)}, s{sHV} offen offset:{p*1024} {cfg.hvpol}' for p in range(4)]
            o += [f's_add_u32 s{sHV}, s{sHV}, 0x4000']
        return o
    if cfg.hv2 or cfg.hvs:
        for x in [f's_load_dwordx2 s[{SPF}:{SPF+1}], s[0:1], 56', f's_mov_b32 s{SPF+2}, {256*262144}', f's_mov_b32 s{SPF+3}, 0x20000',
                  f's_lshl_b32 s{sHV}, s{sB}, 3', f's_add_u32 s{sHV}, s{sHV}, s{sJ}', f's_lshl_b32 s{sHV}, s{sHV}, 19', f's_lshl_b32 s{sT1}, s{sW}, 12',
                  f's_add_u32 s{sHV}, s{sHV}, s{sT1}', f's_add_u32 s{sHV}, s{sHV}, {524288 - (cfg.hv2 + cfg.hvs)*16384}']: E(x)
    if park:
        g0()
        hs = {1: s.ready_add(), 4: [f's_load_dwordx2 s[{SPF}:{SPF+1}], s[0:1], 72', f's_mov_b32 s{SPF+2}, {448*8192}', f's_mov_b32 s{SPF+3}, 0x20000'] if cfg.jit else []}
        if cfg.hvs: hs.update(dict(enumerate(Gen.split(hv_loads(cfg.hvs), 4), 4)))
        s.s_phase(6, pat(cfg.snA), parked=park, heads=hs)
    else:
        s.gap(g0, F)
        s.s_phase(6, pat(cfg.sn), heads={1: s.ready_add()})
    s.stamp(3)
    hold = lambda tau: (lambda t: vS + 48 + ((tau - 4) * 6 + t) * 2)
    def g1():
        s.softmax(6)
        for tau in range(4):
            s.exp_pack(6, tau, wtau=tau)
            if cfg.codepf & 2 and tau == 1:
                for x in code_pf(vXR, vOA): E(x)
            if cfg.jit & 1 and tau in (0, 2):
                for x in wo_warm(tau == 2, False): E(x)
        for tau in range(4, 8): s.exp_pack(6, tau, dst=hold(tau))
        E('s_waitcnt lgkmcnt(0)'); E('s_barrier')
    if pa:
        def g1a():
            s.softmax(6)
            for tau in range(2): s.exp_pack(6, tau, wtau=tau)
        def g1b():
            for tau in range(2, 4): s.exp_pack(6, tau, wtau=tau)
            for tau in range(4, 8): s.exp_pack(6, tau, dst=hold(tau))
            E('s_waitcnt lgkmcnt(0)'); E('s_barrier')
        s.gap(g1a, 6 - (s.pseq - s.cseq), 0.0, 0.7)
        for k in range(6): s.emit_groups(s.tg_fetch(3, 0, None, aFR, dst=aO + 16 * k))
        E('s_waitcnt lgkmcnt(0)')
        s.gap(g1b, cfg.gA + 1, 0.0, 0.8)
    else:
        s.gap(g1, cfg.gA, 0.1, 0.8)
    s.stamp(4)
    pv = pat(cfg.pvnA)
    s.tg_phase(6, vOUT, pv[:8], 'p', lacc=vS, base=0, heads=dict(enumerate(Gen.split(hv_loads(cfg.hv2), cfg.hv2n))) if cfg.hv2 else None)
    E('s_barrier')
    for tau in range(4, 8):
        for t in range(6): E(s.p_write(6, tau - 4, t, hold(tau)(t)))
    E('s_waitcnt lgkmcnt(0)'); E('s_barrier')
    if cfg.endA: pv = pv[:12] + [3, 1, 1, 0]
    hds = {9: s.ready_load()}; hfl = {}
    if cfg.hv:
        hds[10] = [f's_load_dwordx2 s[{SPF}:{SPF+1}], s[0:1], 56', f's_mov_b32 s{SPF+2}, {256*262144}', f's_mov_b32 s{SPF+3}, 0x20000',
                   f's_lshl_b32 s{sT2}, s{sB}, 3', f's_add_u32 s{sT2}, s{sT2}, s{sJ}', f's_lshl_b32 s{sT2}, s{sT2}, 19', f's_lshl_b32 s{sT1}, s{sW}, 12',
                   f's_add_u32 s{sT2}, s{sT2}, s{sT1}', f's_add_u32 s{sT2}, s{sT2}, {524288 - cfg.hv*16384}']
        o = []
        for k in range(cfg.hv):
            o += [f'buffer_load_dwordx4 {vr(vOA)}, v{vLin}, {srd(SPF)}, s{sT2} offen offset:{p*1024} {cfg.hvpol}' for p in range(4)]
            o += [f's_add_u32 s{sT2}, s{sT2}, 0x4000']
        hfl[cfg.hvat] = o
    s.tg_phase(6, vOUT, pv[8:], 'p', lacc=vS, base=0, c0=False, st0=8, heads=hds, fills=hfl)
    s.stamp(5)
    Wl = []
    def g2():
        Wl.extend(s.o_pack(6, vOUT, vS, False))
    if cfg.endA: g2()
    else: s.gap(g2, F, 0.0, 0.6)
    if cfg.codepf & 4:
        for x in code_pf(vXR, vOA): E(x)
    if cfg.jit & 2:
        for x in wo_warm(False, True): E(x)
    E('s_barrier')
    for w in Wl: E(w)
    if not pa: s.emit_groups(s.tg_fetch(3, 0, None, aFR))
    E('s_waitcnt lgkmcnt(0)'); E('s_barrier')
    of = s.capture(lambda: s.frag_read(48))
    for x in of[:6]: E(x)
    s.stamp(6)
    fl = dict(enumerate(Gen.split(of[6:24], cfg.fsp))); fl.update(dict(enumerate(Gen.split(of[24:], 8), 7)))
    xa = 1 if cfg.endA else 0
    if pa: s.o_proj([xa] + [0] * 5 + [1] * 10, 0, c0=True, fills=fl, parked=6, extra={10: s.wo_head()})
    else: s.o_proj([1, 1, 1, 1 + xa] + [1] * 12, 0, c0=True, fills=fl, primed=True, extra={10: s.wo_head()})
    s.o_proj([1] * 10 + [0] * 6, aO, fills=dict(enumerate(Gen.split(s.store_slice(0), 6), 9)))
    for k in range(11 if cfg.stA else 7, 12): s.stamp(k)
    s.finish()
    return s.L

def reduce_tail(b2=False):
    NP = 16 if b2 else 8
    sfx = 'B' if b2 else ''
    L = []; E = L.append
    sOld, sF2 = sPK, sPV
    def st(k):
        if cfg.stamps: E(f's_memrealtime s[{sST+2*k}:{sST+2*k+1}]')
    E('L_reduce' + sfx + ':')
    E(f's_load_dwordx2 s[{SOUT}:{SOUT+1}], s[0:1], 80')
    E(f'v_readfirstlane_b32 s{sOld}, v{vOld}'); E(f'v_readfirstlane_b32 s{sT1}, v{vRdy}')
    if b2:
        E(f's_mul_i32 s{sPART}, s{sB}, {16*PART}'); E(f's_add_u32 s{sPART}, s{sPART}, {128*PART}')
    else:
        E(f's_lshl_b32 s{sT0}, s{sBR}, 4'); E(f's_add_u32 s{sT0}, s{sT0}, s{sB}')
        E(f's_mul_i32 s{sPART}, s{sT0}, {8*PART}')
    E(f's_lshl_b32 s{sT2}, s{sW}, {4 if b2 else 3}'); E(f's_add_u32 s{sT2}, s{sT2}, s{sJ}')
    E('v_and_b32 v42, 15, v1'); E('v_mul_u32_u24 v42, 1792, v42'); E('v_lshrrev_b32 v43, 4, v1'); E('v_lshl_add_u32 v42, v43, 3, v42')
    E(f's_mul_i32 s{sY}, s{sB}, {48*1792}'); E(f's_mul_i32 s{sT0}, s{sBR}, 896'); E(f's_add_u32 s{sY}, s{sY}, s{sT0}')
    E(f's_mov_b32 s{sLC}, 0x400000'); E(f'v_add_u32 v44, 1, v{vOld}')
    E('s_waitcnt vmcnt(0) lgkmcnt(0)')
    E('s_barrier')
    st(12)
    E(f's_mov_b32 s{SOUT+2}, {16*48*896*2}'); E(f's_mov_b32 s{SOUT+3}, 0x20000')
    E(f's_cmp_lg_u32 s{sW}, 0'); E('s_cbranch_scc1 L_rwait' + sfx + '')
    if cfg.sync == 2:
        E('L_rdy' + sfx + ':')
        E(f's_cmp_ge_u32 s{sT1}, {NP}'); E('s_cbranch_scc1 L_rdyok' + sfx + '')
        E(f's_sub_u32 s{sLC}, s{sLC}, 1'); E('s_cbranch_scc1 L_rdyok' + sfx + '')
        E('s_sleep 8')
        E(f'buffer_load_dword v{vRdy}, v{vZ}, {srd(SDBG)}, s{sDO} offen sc1')
        E('s_waitcnt vmcnt(0)')
        E(f'v_readfirstlane_b32 s{sT1}, v{vRdy}')
        E('s_branch L_rdy' + sfx + '')
        E('L_rdyok' + sfx + ':')
        E(f'buffer_atomic_add v{vC1}, v{vZ}, {srd(SWS)}, s{sFL} offen sc0 sc1')
        E(f's_add_u32 s{sOld}, s{sOld}, {NP-1}')
        E('s_waitcnt vmcnt(0)')
        E(f'v_readfirstlane_b32 s{sT1}, v{vC1}')
        E(f's_cmp_eq_u32 s{sT1}, s{sOld}'); E('s_cbranch_scc1 L_rwait' + sfx + '')
        E(f's_add_u32 s{sOld}, s{sOld}, 1')
        E('L_poll' + sfx + ':')
        E(f'buffer_load_dword v41, v{vZ}, {srd(SWS)}, s{sFL} offen {cfg.pollpol}')
        E(f's_sub_u32 s{sLC}, s{sLC}, 1'); E('s_cbranch_scc1 L_rwait' + sfx + '')
        E('s_waitcnt vmcnt(0)')
        E(f'v_readfirstlane_b32 s{sT1}, v41')
        if cfg.sleep: E(f's_sleep {cfg.sleep}')
        E(f's_cmp_lg_u32 s{sT1}, s{sOld}'); E('s_cbranch_scc1 L_poll' + sfx + '')
    else:
        E(f'buffer_atomic_add v{vC1}, v{vZ}, {srd(SDBG)}, s{sDO} offen sc0 sc1')
        E('s_waitcnt vmcnt(0)')
        E(f'v_readfirstlane_b32 s{sT1}, v{vC1}')
        E(f's_cmp_lt_u32 s{sT1}, 7'); E('s_cbranch_scc1 L_poll' + sfx + '')
        E(f'buffer_store_dword v44, v{vZ}, {srd(SWS)}, s{sFL} offen sc1')
        E('s_branch L_rwait' + sfx + '')
        E('L_poll' + sfx + ':')
        E(f'buffer_load_dword v41, v{vZ}, {srd(SWS)}, s{sFL} offen {cfg.pollpol}')
        E(f's_sub_u32 s{sLC}, s{sLC}, 1'); E('s_cbranch_scc1 L_rwait' + sfx + '')
        E('s_waitcnt vmcnt(0)')
        E(f'v_readfirstlane_b32 s{sT1}, v41')
        if cfg.sleep: E(f's_sleep {cfg.sleep}')
        E(f's_cmp_eq_u32 s{sT1}, s{sOld}'); E('s_cbranch_scc1 L_poll' + sfx + '')
    E('L_rwait' + sfx + ':')
    E('s_barrier')
    st(13); st(14)
    def split(freg):
        if b2:
            E(f's_cmp_ge_u32 s{freg}, 42'); E(f's_cselect_b32 s{sLC}, {16*PART - 42*1024}, 0')
            E(f's_lshl_b32 s{sT0}, s{freg}, 10'); E(f's_add_u32 s{sT0}, s{sT0}, s{sLC}')
        else:
            E(f's_lshl_b32 s{sT0}, s{freg}, 10')
        E(f's_add_u32 s{sT0}, s{sT0}, s{sPART}')
    def loads(base, freg):
        split(freg)
        for j in range(NP):
            E(f'buffer_load_dwordx4 {vr(base+4*j)}, v{vLin}, {srd(SWS)}, s{sT0} offen {cfg.rdpol}')
            if j < NP - 1: E(f's_add_u32 s{sT0}, s{sT0}, {PART}')
    def task(base, freg, younger):
        E(f's_mul_i32 s{sT0}, s{freg}, 171'); E(f's_lshr_b32 s{sT0}, s{sT0}, 10')
        E(f's_mul_i32 s{sT1}, s{sT0}, 6'); E(f's_sub_u32 s{sT1}, s{freg}, s{sT1}')
        if b2:
            E(f's_cmp_ge_u32 s{sT0}, 7'); E(f's_cselect_b32 s{sU}, {48*1792 - 7*128}, 0')
        E(f's_lshl_b32 s{sT0}, s{sT0}, 7'); E(f's_add_u32 s{sT0}, s{sT0}, s{sY}')
        if b2: E(f's_add_u32 s{sT0}, s{sT0}, s{sU}')
        E(f's_cmp_ge_u32 s{sT1}, 3'); E(f's_cselect_b32 s{sLC}, {64 - 3*16*1792}, 0'); E(f's_add_u32 s{sT0}, s{sT0}, s{sLC}')
        E(f's_mul_i32 s{sT1}, s{sT1}, {16*1792}'); E(f's_add_u32 s{sT0}, s{sT0}, s{sT1}')
        E(f's_mov_b32 s{sLC}, 0xffff0000')
        for j in range(NP):
            E(f's_waitcnt vmcnt({NP-1-j+younger})')
            for r in range(4):
                src = base + 4 * j + r
                if j == 0:
                    E(f'v_lshlrev_b32 v{48+2*r}, 16, v{src}'); E(f'v_and_b32 v{49+2*r}, s{sLC}, v{src}')
                else:
                    t = 44 + 2 * (r & 1)
                    E(f'v_lshlrev_b32 v{t}, 16, v{src}'); E(f'v_and_b32 v{t+1}, s{sLC}, v{src}')
                    E(f'v_pk_add_f32 {vr(48+2*r,2)}, {vr(48+2*r,2)}, {vr(t,2)}')
        for r in range(4): E(f'v_cvt_pk_bf16_f32 v{base+r}, v{48+2*r}, v{49+2*r}')
        E(f'buffer_store_dwordx2 {vr(base,2)}, v42, {srd(SOUT)}, s{sT0} offen {cfg.outpol}')
        E(f'buffer_store_dwordx2 {vr(base+2,2)}, v42, {srd(SOUT)}, s{sT0} offen offset:32 {cfg.outpol}')
    NW = 64 if b2 else 32
    E(f's_cmp_ge_u32 s{sT2}, {20 if b2 else 10}'); E('s_cbranch_scc1 L_r1' + sfx)
    E(f's_add_u32 s{sF2}, s{sT2}, {NW}')
    loads(128, sF2)
    loads(64, sT2)
    task(128, sF2, NP)
    task(64, sT2, 2)
    E('s_branch L_rend' + sfx)
    E('L_r1' + sfx + ':')
    loads(64, sT2)
    task(64, sT2, 0)
    E('L_rend' + sfx + ':')
    if cfg.stamps:
        E('s_waitcnt vmcnt(0)')
        st(15)
        E('s_branch L_stamps')
    else:
        E('s_endpgm')
    return L

def kd(name, nv, ao):
    return ['.p2align 6', f'.amdhsa_kernel {name}', f'  .amdhsa_next_free_vgpr {nv}', '  .amdhsa_next_free_sgpr 102', f'  .amdhsa_accum_offset {ao}',
            '  .amdhsa_group_segment_fixed_size 0', '  .amdhsa_kernarg_size 104', '  .amdhsa_user_sgpr_count 2',
            '  .amdhsa_user_sgpr_kernarg_segment_ptr 1', '  .amdhsa_system_sgpr_workgroup_id_x 1', '.end_amdhsa_kernel']

def build(fname):
    hdr = [l for l in open('cdna_kernels/' + NAME + '.s.ref').read().split('\n') if l.startswith(';') and '@launch' not in l and 'Override' not in l and 'grid=ceil' not in l]
    L = hdr[:]
    L.append(f'; @launch grid=(256,1,1) block=(256,1,1) lds={LDS_TOTAL}')
    L += ['.amdgcn_target "amdgcn-amd-amdhsa--gfx950"', '.text', f'.globl {NAME}_kernel', '.p2align 8', f'.type {NAME}_kernel,@function', f'{NAME}_kernel:']
    L += ['s_cmp_ge_u32 s2, 256', 's_cbranch_scc1 L_exit', 's_bitcmp1_b32 s2, 3', 's_cbranch_scc0 ' + ('L_exit' if cfg.noA else 'L_pathA')] + (['s_branch L_exit'] if cfg.noB else [])
    if cfg.b2:
        L += path_B2_text(); L += reduce_tail(True)
    else:
        L += path_B_text()
    L += reduce_tail()
    L += ['L_exit:', 's_endpgm', 'L_pathA:']
    L += path_A()
    if cfg.stamps:
        L += ['L_stamps:', 's_waitcnt lgkmcnt(0)', f's_add_u32 s{SWS}, s{SWS}, 0xc800000', f's_addc_u32 s{SWS+1}, s{SWS+1}, 0']
        if cfg.trace: L += ['s_lshl_b32 s58, s2, 12', 's_add_u32 s58, s58, 0x40000', 'v_lshlrev_b32 v40, 4, v0', f'buffer_store_dwordx4 v[2:5], v40, {srd(SWS)}, s58 offen']
        L += [
              's_lshl_b32 s58, s2, 7'] + ([f's_lshl_b32 s59, s{sW}, 15', 's_add_u32 s58, s58, s59'] if cfg.allw else []) + ['v_mov_b32 v40, s58', 'v_cmp_eq_u32 vcc, 0, ' + ('v1' if cfg.allw else 'v0'), 's_and_saveexec_b64 s[58:59], vcc', 's_cbranch_execz L_exit2']
        for k in range(16):
            L += [f'v_mov_b32 v42, s{sST+2*k}', f'v_mov_b32 v43, s{sST+2*k+1}', f'buffer_store_dwordx2 v[42:43], v40, {srd(SWS)}, 0 offen offset:{8*k}', 's_nop 1']
        L += ['L_exit2:', 's_endpgm']
    L += ['.p2align 4', 'L_code_end:']
    L += ['.section .rodata,"a"'] + kd(NAME + '_kernel', 512, 256)
    if cfg.nomfma: L = [l for l in L if not l.startswith('v_mfma')]
    txt = '\n'.join(l if (l.startswith(';') or l.startswith('.') or l.endswith(':') or l.startswith('  ')) else '    ' + l for l in L) + '\n'
    open(fname, 'w').write(txt)

if __name__ == '__main__':
    out = sys.argv[1] if len(sys.argv) > 1 else 'cdna_kernels/' + NAME + '.s'
    for a in sys.argv[2:]:
        k, v = a.split('=')
        assert hasattr(cfg, k), k
        val = {'True': True, 'False': False}.get(v, int(v) if v.isdigit() else v)
        setattr(cfg, k, val.replace('+', ' ') if isinstance(val, str) else val)
    build(out)
```

```python
import sys, struct
NAME = 'concat_heads__gqa_block_cached__mha_block_cached__near_ridge'

class Cfg:
    stamps = False
    kvpol = 'nt'
    wpol = ''
    rot = True
    warm = 1
    earlyK = True
    noA = False
    noB = False
    nomfma = False
    ramp = 2
    estore = True
    sleep = 1
    pk = True
    codepf = 1
    allw = False
    pvn = '1111101011111111'
    sn = '22112222'
    pvnA = 'x0111222111111111'
    snA = 'x00002221'
    expW = 1
    outpol = ''
    sync = 2
    parkO = 0
    pfK = 10
    pfpol = ''
    stA = False
    rampB = 4
    tailB = '111011'
    snB = '22122222'
    stB = False
    pro = 1
    tlb = False
    defer = False
    parkA = 0
    endp = '3110'
    fsp = 6
    safe = True
    est = 12
    pfV = 0
    pfsel = 1
    pfw = 4
    stag = 0
    otl = '111011'
    b2 = False
    qn = '11122211011011'
    gq = 2
    sn1 = '22112222'
    half = True
    hv = 0
    hvpol = ''
    hvat = 15
    hv2 = 0
    hv2n = 6
    hvs = 0
    hb = 10
    endA = True
    pollpol = 'sc1'
    rdpol = 'sc1'
    stpol = 'sc1'
    jit = 0
    w3 = True
    word = '0123'
    fastq = True
    parkB = 0
    swap = True
    xb = 4
    gA = 1
    trace = False
    tailp = '110101'
    wl = 2
cfg = Cfg()

NQ = 6; QP = 4224; LEAD = 4
XB = 0; STAT = 49152; RING = 51200; RSZ = NQ * QP
LDS_TOTAL = RING + 4 * RSZ
PART = 43008
FLAGS = 384 * PART
SX, SW, SK, SV, SWO, SWS = 4, 8, 12, 16, 20, 24
sJ, sB, sW, sRS, sLC, sY, sPK, sPV, sT0, sT1, sT2, sU = range(28, 40)
sC = 40
sXC = 42
sFL, sPART, sXM, sBR = 46, 47, 48, 49
sTab = 50
sST = 64
SPF = 96
sRQ, sRO = 22, 23
sP1 = sY
SOUT = SV; SDBG = SX; sDO = sXM
vV, vWA, vWB, vOA, vK = 2, 6, 10, 14, 18
vX = 19
vTB = 22
vKB, vLin, vQW, vStW, vStR, vPW, vF6 = 26, 27, 28, 29, 30, 31, 32
vOW = 33
vTmp = 35
vM = 36
vSR = 48
vPF = 56
vXR = 60
vOld = 62; vZ = 63; vC1 = 19; vRdy = 20
vS = 64; vOUT = 160
aO = 96; aFR = 192; aONE = 248
M = lambda t: vM + 2 * t

def srd(n): return f's[{n}:{n+3}]'
def vr(b, n=4): return f'v[{b}:{b+n-1}]'
def ar(b, n=4): return f'a[{b}:{b+n-1}]'
MF = 'v_mfma_f32_16x16x32_bf16'

class Gen:
    def __init__(s, lab0):
        s.L = []; s.q = []; s.nlab = lab0
        s.stream = []
        s.pseq = 0; s.cseq = 0; s.freed = 0; s.owner = [-1] * NQ; s.tr = False; s.skipB = False; s.cold = []; s.b2 = False; s.done = set()
    def plan(s, kinds, start, i0=0):
        for i, k in enumerate(kinds): s.stream.append((k, (start + i) % NQ, i0 + i))
    def E(s, t):
        s.L.append(t)
        if t == 's_waitcnt lgkmcnt(0)': s.freed = s.cseq
        if t == 's_waitcnt vmcnt(0) ': s.done |= set(s.q); s.q = []
    def vm(s, t, tag):
        s.L.append(t); s.q.append(tag)
    def need(s, tag):
        if tag not in s.q: return None
        idx = max(i for i, t in enumerate(s.q) if t == tag)
        n = len(s.q) - 1 - idx
        assert n <= 63, n
        return f's_waitcnt vmcnt({n})'
    def lab(s, p):
        s.nlab += 1; return f'L_{p}{s.nlab}'
    def tr_start(s):
        if cfg.trace and s.tr:
            s.L += ['s_mov_b32 m0, s100', 's_nop 0', 'v_writelane_b32 v42, s96, m0', 'v_writelane_b32 v43, s98, m0', 's_add_u32 s100, s100, 1', 's_memrealtime s[96:97]']
    def stamp(s, k):
        if cfg.stamps: s.E(f's_memrealtime s[{sST+2*k}:{sST+2*k+1}]')
    def capture(s, f, lab0=None):
        keep = s.L; s.L = []
        if lab0 is not None: s.nlab = lab0
        f(); t = s.L; s.L = keep
        return t
    def rolled(s, n, body, cnt=sLC):
        l0 = s.nlab
        texts = [s.capture(body, l0) for _ in range(n)]
        for t in texts[1:]:
            assert t == texts[0], 'loop iterations differ:\n' + '\n'.join(f'{a} | {b}' for a, b in zip(texts[0], t) if a != b)
        lb = s.lab('loop')
        s.L += [f's_mov_b32 s{cnt}, {n}', f'{lb}:'] + texts[0] + [f's_sub_u32 s{cnt}, s{cnt}, 1', f's_cmp_lg_u32 s{cnt}, 0', f's_cbranch_scc1 {lb}']
    def emit_item(s, it):
        if isinstance(it, str): s.E(it)
        elif it[0] == 'vm':
            if ' m0,' in s.L[-1]: s.L.append('s_nop 0')
            s.vm(it[1], it[2])
        elif it[0] == 'need':
            w = s.need(it[1])
            assert w is not None or it[1] in s.done, it
            if w: s.E(w)
            if cfg.trace and s.tr: s.E('s_memrealtime s[98:99]')
    def emit_groups(s, G):
        for g in G:
            for it in g: s.emit_item(it)
    def interleave(s, mf, groups, fill=None, fstart=0):
        n = len(mf); g = len(groups)
        pos = {}
        for k in range(g):
            pos.setdefault(min(n - 1, (k * n) // max(g, 1)), []).append(k)
        fill = list(fill or []); nf = len(fill); done = 0
        for i, m in enumerate(mf):
            s.E(m)
            for k in pos.get(i, []):
                for it in groups[k]: s.emit_item(it)
            if i >= fstart:
                upto = (nf * (i - fstart + 1)) // (n - fstart)
                while done < upto or (done < nf and fill[done].startswith('s_cselect')):
                    s.L.append(fill[done])
                    if fill[done].startswith('buffer_'): s.q.append('misc')
                    done += 1
    @staticmethod
    def split(lst, n):
        cuts = [(len(lst) * i) // n for i in range(n + 1)]
        for k in range(1, n):
            while cuts[k] < len(lst) and lst[cuts[k]].startswith('s_cselect'): cuts[k] += 1
        return [lst[cuts[i]:max(cuts[i], cuts[i+1])] for i in range(n)]
    def gap(s, f, n, lo=0.0, hi=1.0):
        G = []
        for _ in range(n): G += s.prod()
        t = s.capture(f)
        pts = [i for i, x in enumerate(t) if (x.startswith('v_') or x.startswith('ds_')) and i > 0 and not t[i-1].startswith('s_cmp')]
        pos = {}
        for k in range(len(G)):
            fr = lo + (hi - lo) * (k + 0.5) / len(G)
            pos.setdefault(pts[min(len(pts) - 1, int(fr * len(pts)))], []).append(k)
        for i, x in enumerate(t):
            for k in pos.get(i, []):
                for it in G[k]: s.emit_item(it)
            s.L.append(x)

    def prod(s):
        kind, slot, idx = s.stream[s.pseq]
        assert s.owner[slot] < s.freed, (s.pseq, slot, s.owner[slot], s.freed)
        s.owner[slot] = s.pseq
        tag = ('q', s.pseq); s.pseq += 1
        if kind == 'WB' and s.skipB: return []
        G = [[f's_add_u32 m0, s{sRS}, {slot*QP}']]
        if kind == 'K':
            for p in range(4):
                G.append([('vm', f'buffer_load_dwordx4 v{vK}, {srd(SK)}, s{sPK} offen offset:{p*1024} {cfg.kvpol} lds', tag)])
                if p < 3: G[-1].append(f's_add_u32 m0, s{sRS}, {slot*QP + (p+1)*32}')
            G[-1].append(f's_add_u32 s{sPK}, s{sPK}, {0x4000 + (15 << 18 if s.b2 and idx == 15 else 0)}')
        else:
            vo, sr, so, pol = {'V': (vV, SV, sPV, cfg.kvpol), 'WA': (vWA, SW, sTab + idx, cfg.wpol), 'WB': (vWB, SW, sTab + idx - 8, cfg.wpol)}[kind]
            for p in range(4):
                G.append([('vm', f'buffer_load_dwordx4 v{vo+p}, {srd(sr)}, s{so} offen offset:{p*1024} {pol} lds', tag)])
            if kind == 'V': G[-1].append(f's_add_u32 s{sPV}, s{sPV}, {0x4000 + (15 << 18 if s.b2 and idx == 15 else 0)}')
        return G
    def x_loads(s, ms=range(4)):
        g = []
        for m in ms:
            for t in range(3):
                g += [f's_add_u32 m0, s{sXM}, {XB + (12*m + 2*t)*1024}', 's_nop 0',
                      f'buffer_load_dwordx4 v{vX+t}, {srd(SX)}, s{sXC+m} offen {cfg.wpol} lds']
        return g
    def table(s, lo, hi, n, rot, step, base):
        o = []
        if lo == 0:
            o += base + [f's_add_u32 s{sT2}, s{sT1}, {n*step}', f's_mul_i32 s{sT0}, s{rot[0]}, {rot[1]*step}', f's_add_u32 s{sTab}, s{sT0}, s{sT1}']
            lo = 1
        for k in range(lo, hi):
            o += [f's_add_u32 s{sT0}, s{sTab+k-1}, {step}', f's_cmp_ge_u32 s{sT0}, s{sT2}', f's_cselect_b32 s{sTab+k}, s{sT1}, s{sT0}']
        return o
    def wq_table(s, lo, hi): return s.table(lo, hi, 14, (sRQ, 2), 0x40000, [f's_lshl_b32 s{sT1}, s{sJ}, {9 if s.b2 else 10}'])
    def wq_head(s): return [f'v_add_u32 v{vWA+p}, 512, v{vWA+p}' for p in range(4)]
    def wo_head(s): return [f'v_add_u32 v{vWA+p}, {256*896}, v{vWA+p}' for p in range(8)]
    def w_to_wo(s):
        o = [f's_mov_b32 s{SW}, s{SWO}', f's_mov_b32 s{SW+1}, s{SWO+1}']
        o += s.table(0, 8, 8, (sRO, 1), 28672, [f's_mul_i32 s{sT1}, s{sJ}, {(256 if s.b2 else 512)*896}'])
        o += [f'v_mov_b32 v{vWA+p}, v{vOA+p}' for p in range(4)]
        return o

    def tg_bufs(s, T, par, ylds, base):
        a = base + par * (16 + (4 * T if ylds else 0))
        return a, a + 16
    def tg_fetch(s, T, st, ymode, base, bar=False, dst=None):
        ylds = ymode is not None
        a, y = s.tg_bufs(T, st & 1, ylds, base)
        if dst is not None: a = dst
        kind, slot, idx = s.stream[s.cseq]
        assert kind != 'K'
        tag = ('q', s.cseq); s.cseq += 1
        if kind == 'WB' and s.skipB: return []
        g0 = [('need', tag)] + (['s_barrier'] if bar else [])
        o = slot * QP
        rd = [[f'ds_read_b64_tr_b16 {ar(a+4*d,2)}, v{vTB+d} offset:{o}', f'ds_read_b64_tr_b16 {ar(a+4*d+2,2)}, v{vTB+d} offset:{o+2048}'] for d in range(4)]
        if ymode == 'x': yr = [f'ds_read_b128 {ar(y+4*t)}, v{vXR+(st&1)} offset:{XB + ((st%14)>>1)*6144 + t*2048}' for t in range(T)]
        elif ymode == 'p': yr = [f'ds_read_b128 {ar(y+4*t)}, v{vLin} offset:{XB + ((st*T*1024) % 49152) + t*1024}' for t in range(T)]
        G = [g0 + rd[0]]
        if ylds:
            h = (T + 1) // 2
            G += [yr[:h], rd[1], yr[h:], rd[2], rd[3]]
        else:
            G += [rd[1], rd[2], rd[3]]
        return G
    def tg_step(s, T, st, acc, pref, nprod, ymode, ystat=None, lacc=None, base=aFR, extra=None, c0=False, fill=None, head=None, bar=False, src=None, nomf=False, dual=None):
        ylds = ymode is not None
        a, y = s.tg_bufs(T, st & 1, ylds, base)
        if src is not None: a = src
        if not ylds: y = ystat
        s.E('s_waitcnt lgkmcnt(0)'); s.tr_start()
        for x in (head or []): s.E(x)
        mf = []
        for d in range(4):
            for t in range(T):
                c = vr(acc + (d * T + t) * 4)
                mf.append(f'{MF} {c}, {ar(a+4*d)}, {ar(y+4*t)}, {0 if c0 else c}')
        if dual:
            for d in range(4):
                for t in range(3):
                    c = vr(dual[0] + (d * 3 + t) * 4)
                    mf.append(f'{MF} {c}, {ar(a+4*d)}, {ar(dual[1]+4*t)}, {0 if c0 else c}')
        if lacc is not None:
            for t in range(T):
                c = vr(lacc + 4 * t)
                mf.append(f'{MF} {c}, {ar(aONE)}, {ar(y+4*t)}, {0 if c0 else c}')
        if nomf: mf = ['s_nop 7' if nomf == 1 else 's_nop 0']
        F = s.tg_fetch(T, st + 1, ymode, base, bar) if pref else []
        P = [extra] if extra else []
        for _ in range(nprod): P += s.prod()
        if lacc is not None: G = P + F
        elif F and P and not extra: G = F[:-1] + [F[-1] + P[0]] + P[1:]
        else: G = F + P
        s.interleave(mf, G, fill)
    def tg_phase(s, T, acc, nprods, ymode, lacc=None, base=aFR, c0=True, st0=0, first=True, last=True, bar=False, extra=None, heads=None, bars=(), fills=None, z=False, dual=None):
        if first: s.emit_groups(s.tg_fetch(T, st0, ymode, base, bar))
        n = len(nprods)
        for i, np_ in enumerate(nprods):
            s.tg_step(T, st0 + i, acc, not (last and i == n - 1), np_, ymode, None, lacc, base,
                      extra=(extra or {}).get(st0 + i), c0=((c0 and first or z) and i == 0), head=(heads or {}).get(st0 + i), bar=(st0 + i + 1) in bars, fill=(fills or {}).get(st0 + i), dual=(dual(st0 + i) if dual else None))
    def zero(s, base, n):
        for r in range(base, base + n): s.E(f'v_mov_b32 v{r}, 0')

    def k_fetch(s, dst):
        k0, slot, _ = s.stream[s.cseq]; k1, slot1, _ = s.stream[s.cseq + 1]
        assert k0 == 'K' and k1 == 'K' and slot1 == slot + 1
        s.cseq += 2
        tag = ('q', s.cseq - 1)
        rd = [f'ds_read_b128 {dst(k)}, v{vKB} offset:{slot*QP + k*64}' for k in range(8)]
        return [[('need', tag)] + rd[0:2], rd[2:4], rd[4:6], rd[6:8]]
    def s_phase(s, T, nprods, parked=0, hook=None, qb=0, fills=None, heads=None):
        buf = lambda tau: ((lambda k: vr(vOUT + tau * 32 + 4 * k)) if tau < parked else (lambda k: ar(aFR + (tau & 1) * 32 + 4 * k)))
        if not parked: s.emit_groups(s.k_fetch(buf(0)))
        for tau in range(8):
            if tau == 0 or tau >= parked: s.E('s_waitcnt lgkmcnt(0)'); s.tr_start()
            for x in (heads or {}).get(tau, []): s.E(x)
            mf = []
            for k in range(8):
                for t in range(T):
                    c = vr(vS + (tau * T + t) * 4)
                    qf = qb + ((t // 3) * 24 + k * 3 + (t % 3)) * 4
                    mf.append(f'{MF} {c}, {buf(tau)(k)}, {ar(qf)}, {c if k else 0}')
            F = s.k_fetch(buf(tau + 1)) if (tau < 7 and tau + 1 >= parked) else []
            P = []
            h = hook(tau) if hook else None
            if h: P += [h]
            for _ in range(nprods[tau]): P += s.prod()
            G = P + F
            while len(G) < 4: G = [[]] + G
            if tau > 0: G[-1] = G[-1] + s.tile_max(T, tau - 1)
            s.interleave(mf, G, (fills or {}).get(tau), 8 if tau == 0 else 0)
    def tile_max(s, T, tau):
        S = lambda t, r: vS + (tau * T + t) * 4 + r
        if tau == 0:
            return [f'v_max3_f32 v{M(t)}, v{S(t,0)}, v{S(t,1)}, v{S(t,2)}' for t in range(T)] + [f'v_max_f32 v{M(t)}, v{M(t)}, v{S(t,3)}' for t in range(T)]
        return [f'v_max3_f32 v{M(t)}, v{M(t)}, v{S(t,0)}, v{S(t,1)}' for t in range(T)] + [f'v_max3_f32 v{M(t)}, v{M(t)}, v{S(t,2)}, v{S(t,3)}' for t in range(T)]
    def sm_a(s, T):
        E = s.E
        for x in s.tile_max(T, 7): E(x)
        for op in ('v_permlane32_swap_b32', 'v_permlane16_swap_b32'):
            for t in range(T): E(f'v_mov_b32 v{M(t)+1}, v{M(t)}')
            E('s_nop 1')
            for t in range(T): E(f'{op} v{M(t)}, v{M(t)+1}')
            E('s_nop 1')
            for t in range(T): E(f'v_max_f32 v{M(t)}, v{M(t)}, v{M(t)+1}')
        for t in range(T): E(f'ds_write_b32 v{vStW}, v{M(t)} offset:{t*256}')
        E(f'v_mov_b32 v{vTmp}, 0x3f803f80')
        for r in range(4): E(f'v_accvgpr_write_b32 a{aONE+r}, v{vTmp}')
    def sm_rd(s, t0):
        for t in range(t0, t0 + 3): s.E(f'ds_read_b128 {vr(vSR+4*(t-t0))}, v{vStR} offset:{t*256}')
    def sm_b(s, t0):
        E = s.E
        for t in range(t0, t0 + 3):
            b = vSR + 4 * (t - t0); E(f'v_max3_f32 v{M(t)}, v{b}, v{b+1}, v{b+2}')
        for t in range(t0, t0 + 3):
            b = vSR + 4 * (t - t0); E(f'v_max_f32 v{M(t)}, v{M(t)}, v{b+3}')
        for t in range(t0, t0 + 3): E(f'v_mul_f32 v{M(t)}, s{sC}, v{M(t)}')
    def softmax(s, T):
        E = s.E
        E('s_nop 7'); E('s_nop 1')
        s.sm_a(T)
        E('s_waitcnt lgkmcnt(0)'); E('s_barrier')
        for t0 in range(0, T, 3):
            s.sm_rd(t0)
            E('s_waitcnt lgkmcnt(0)')
            s.sm_b(t0)
    def p_write(s, T, tau, t, reg):
        return f'ds_write_b64 v{vPW}, {vr(reg,2)} offset:{XB + 2*tau*T*1024 + t*1024}'
    def exp_pack(s, T, tau, dst=None, wtau=None):
        E = s.E
        for t0 in range(0, T, 3):
            regs = [(t, vS + (tau * T + t) * 4) for t in range(t0, t0 + 3)]
            for t, b in regs:
                if cfg.pk:
                    for r in (0, 2): E(f'v_pk_fma_f32 {vr(b+r,2)}, {vr(b+r,2)}, s[{sC}:{sC+1}], {vr(M(t),2)} op_sel_hi:[1,0,0] neg_lo:[0,0,1] neg_hi:[0,0,1]')
                else:
                    for r in range(4): E(f'v_fma_f32 v{b+r}, v{b+r}, s{sC}, -v{M(t)}')
            for t, b in regs:
                for r in range(4): E(f'v_exp_f32 v{b+r}, v{b+r}')
            E('s_nop 0')
            for t, b in regs:
                d = dst(t) if dst else b
                E(f'v_cvt_pk_bf16_f32 v{d}, v{b}, v{b+1}'); E(f'v_cvt_pk_bf16_f32 v{d+1}, v{b+2}, v{b+3}')
                if wtau is not None: E(s.p_write(T, wtau, t, d))
    def q_pack(s, acc, dst, nops=True):
        if nops: s.E('s_nop 7'); s.E('s_nop 1')
        for d in range(4):
            for t in range(3):
                a = acc + (d * 3 + t) * 4; o = dst + (d * 3 + t) * 2
                s.E(f'v_cvt_pk_bf16_f32 v{o}, v{a}, v{a+1}'); s.E(f'v_cvt_pk_bf16_f32 v{o+1}, v{a+2}, v{a+3}')
    def q_write(s, src, hd):
        for d in range(4):
            for t in range(3):
                o = src + (d * 3 + t) * 2
                s.E(f'ds_write_b64 v{vQW}, {vr(o,2)} offset:{XB + hd*24576 + (d>>1)*3072 + t*1024 + (d&1)*512}')
    def frag_read(s, n, off=0, dst=0, addr=vLin):
        for f in range(n): s.E(f'ds_read_b128 {ar(dst+4*f)}, v{addr} offset:{XB + off + f*1024}')
    def o_pack(s, T, acc, lacc, write_now, M=M, nops=True):
        E = s.E
        if nops: E('s_nop 7'); E('s_nop 1')
        for t in range(T): E(f'v_rcp_f32 v{M(t)}, v{lacc+4*t}')
        E('s_nop 0')
        W = []
        for kk in range(2):
            for t in range(T):
                a0 = acc + ((2 * kk) * T + t) * 4; a1 = acc + ((2 * kk + 1) * T + t) * 4
                for a in (a0, a1):
                    if cfg.pk:
                        for r in (0, 2): E(f'v_pk_mul_f32 {vr(a+r,2)}, {vr(a+r,2)}, {vr(M(t),2)} op_sel_hi:[1,0]')
                    else:
                        for r in range(4): E(f'v_mul_f32 v{a+r}, v{a+r}, v{M(t)}')
                E(f'v_cvt_pk_bf16_f32 v{a0}, v{a0}, v{a0+1}'); E(f'v_cvt_pk_bf16_f32 v{a0+1}, v{a0+2}, v{a0+3}')
                E(f'v_cvt_pk_bf16_f32 v{a0+2}, v{a1}, v{a1+1}'); E(f'v_cvt_pk_bf16_f32 v{a0+3}, v{a1+2}, v{a1+3}')
                w = f'ds_write_b128 v{vOW+kk}, {vr(a0)} offset:{XB + (t//3)*24576 + (t%3)*1024}'
                if write_now: E(w)
                else: W.append(w)
        return W
    def store_slice(s, sg):
        o = []
        for bb in range(2 if s.b2 else 1):
            base = ((vOUT if sg else vS) + bb * 48) if s.b2 else vOUT + sg * 48
            for u in range(2):
                o.append(f's_add_u32 s{sT0}, s{sP1 if sg else sPART}, {u*3072 + bb*16*PART}')
                for t in range(3):
                    a0 = base + (2 * u * 3 + t) * 4; a1 = a0 + 12
                    o += [f'v_cvt_pk_bf16_f32 v{a0}, v{a0}, v{a0+1}', f'v_cvt_pk_bf16_f32 v{a0+1}, v{a0+2}, v{a0+3}',
                          f'v_cvt_pk_bf16_f32 v{a0+2}, v{a1}, v{a1+1}', f'v_cvt_pk_bf16_f32 v{a0+3}, v{a1+2}, v{a1+3}',
                          f'buffer_store_dwordx4 {vr(a0)}, v{vF6}, {srd(SWS)}, s{sT0} offen offset:{t*1024} {cfg.stpol}']
        return o
    def o_proj(s, *a, **k):
        if not cfg.w3: return s.o_proj1(*a, **k)
        st0 = (list(s.q), s.pseq, s.cseq, s.freed, list(s.owner))
        s.skipB = True
        t3 = s.capture(lambda: s.o_proj1(*a, **k))
        q3 = list(s.q)
        s.skipB = False
        s.q, s.pseq, s.cseq, s.freed, s.owner = st0
        tm = s.capture(lambda: s.o_proj1(*a, **k))
        for tag in set(t for t in s.q if t != 'misc' and t[1] >= s.cseq):
            d = lambda q: len(q) - 1 - max(i for i, t in enumerate(q) if t == tag)
            assert d(q3) >= d(s.q), (tag, d(q3), d(s.q))
        l3, lj = s.lab('w3_'), s.lab('wj_')
        s.L += [f's_cmp_eq_u32 s{sW}, 3', f's_cbranch_scc1 {l3}'] + tm + [f'{lj}:']
        s.cold += [f'{l3}:'] + t3 + [f's_branch {lj}']
    def o_proj1(s, nprods, yb, c0=False, extra=None, fills=None, heads=None, primed=False, parked=0, dual=False):
        if not primed and not parked: s.emit_groups(s.tg_fetch(3, 0, None, aFR))
        for st in range(16):
            ab = (vOUT if st >> 3 else vS) if dual else vOUT + (st >> 3) * 48
            s.tg_step(3, st, ab, st < 15 and st + 1 >= parked, nprods[st], None, yb + (st & 7) * 12, None, aFR, (extra or {}).get(st),
                      c0=(c0 and st in (0, 8)), fill=(fills or {}).get(st), head=(heads or {}).get(st), src=(aO + 16 * st if st < parked else None),
                      nomf=((1 if st == 8 else 2) if (s.skipB and st >= 8) else 0), dual=((ab + 48, aO + (st & 7) * 12) if dual else None))
    def ready_add(s):
        return [] if cfg.sync == 1 else [f'buffer_atomic_add v{vC1}, v{vZ}, {srd(SDBG)}, s{sDO} offen sc1']
    def ready_load(s):
        return [] if cfg.sync == 1 else [f'buffer_load_dword v{vRdy}, v{vZ}, {srd(SDBG)}, s{sDO} offen sc1']
    def finish(s):
        E = s.E
        E('s_nop 7'); E('s_nop 1')
        rl = 'L_reduceB' if s.b2 else 'L_reduce'
        if cfg.w3: E(f's_cmp_eq_u32 s{sW}, 3'); E(f's_cbranch_scc1 {rl}')
        for x in s.store_slice(1): E(x)
        E(f's_branch {rl}')
        s.L += s.cold

    def setup_ids(s, br):
        E = s.E
        E('v_and_b32 v1, 63, v0'); E('v_lshrrev_b32 v40, 6, v0')
        E(f's_and_b32 s{sJ}, s2, 7'); E(f's_lshr_b32 s{sB}, s2, 4')
        if s.b2:
            E(f's_and_b32 s{sT0}, s{sB}, 1'); E(f's_lshl_b32 s{sJ}, s{sJ}, 1'); E(f's_add_u32 s{sJ}, s{sJ}, s{sT0}'); E(f's_and_b32 s{sB}, s{sB}, 14')
        E(f'v_readfirstlane_b32 s{sW}, v40')
        E('v_lshrrev_b32 v43, 3, v1')
        E('v_and_b32 v47, 7, v1')
        if cfg.rot:
            E(f's_mul_i32 s{sRQ}, s{sB}, 7'); E(f's_lshr_b32 s{sRQ}, s{sRQ}, 4'); E(f's_lshr_b32 s{sRO}, s{sB}, 1')
        else:
            E(f's_mov_b32 s{sRQ}, 0'); E(f's_mov_b32 s{sRO}, 0')
        E(f's_mul_i32 s{sRS}, s{sW}, {RSZ}'); E(f's_add_u32 s{sRS}, s{sRS}, {RING}')
    def setup_x(s):
        E = s.E
        E('v_and_b32 v45, 1, v40'); E('v_lshl_add_u32 v46, v45, 3, v43'); E(f'v_mul_u32_u24 v{vX}, 896, v46')
        E('v_lshrrev_b32 v46, 1, v46'); E('v_xor_b32 v46, v46, v47'); E(f'v_lshl_add_u32 v{vX}, v46, 4, v{vX}')
        E(f'v_add_u32 v{vX+1}, 14336, v{vX}'); E(f'v_add_u32 v{vX+2}, 28672, v{vX}')
        E(f's_lshr_b32 s{sT0}, s{sW}, 1'); E(f's_mul_i32 s{sXM}, s{sT0}, 6'); E(f's_and_b32 s{sT1}, s{sW}, 1'); E(f's_add_u32 s{sXM}, s{sXM}, s{sT1}'); E(f's_lshl_b32 s{sXM}, s{sXM}, 10')
        E(f's_add_u32 s{sT1}, s{sT0}, s{sRQ}'); E(f's_mul_i32 s{sT2}, s{sB}, 43008')
        for m in range(4):
            E(f's_add_u32 s{sXC+m}, s{sT1}, {2*m}'); E(f's_cmp_ge_u32 s{sXC+m}, 7'); E(f's_cselect_b32 s{sLC}, 7, 0'); E(f's_sub_u32 s{sXC+m}, s{sXC+m}, s{sLC}')
            E(f's_lshl_b32 s{sXC+m}, s{sXC+m}, 7'); E(f's_add_u32 s{sXC+m}, s{sXC+m}, s{sT2}')
        E(f's_cmp_eq_u32 s{sT0}, 1'); E(f's_cselect_b32 s{sXC+3}, 0x40000000, s{sXC+3}')
    def setup_w(s):
        E = s.E
        E('v_and_b32 v45, 6, v43'); E('v_xor_b32 v44, v47, v45'); E('v_lshlrev_b32 v44, 4, v44')
        E('v_lshl_add_u32 v44, v40, 7, v44')
        E('v_lshrrev_b32 v45, 2, v43'); E('v_lshlrev_b32 v45, 3, v45'); E('v_and_b32 v46, 3, v43'); E('v_add_u32 v45, v45, v46')
        E(f'v_lshl_add_u32 v{vWA}, v45, 13, v44')
        for p in range(1, 4): E(f'v_add_u32 v{vWA+p}, {(16*(p&1)+4*(p>>1))*8192 - p*1024}, v{vWA}')
    def setup_k(s, br):
        E = s.E
        E('v_lshrrev_b32 v45, 5, v1'); E('v_and_b32 v46, 31, v1'); E('v_xor_b32 v46, v46, v45'); E('v_lshlrev_b32 v46, 4, v46')
        E('v_lshl_add_u32 v46, v45, 9, v46'); E(f'v_lshl_add_u32 v{vK}, v40, 12, v46')
        E(f's_lshl_b32 s{sPK}, s{sB}, {4 if s.b2 else 3}'); E(f's_add_u32 s{sPK}, s{sPK}, s{sJ}')
        E(f's_add_u32 s{sPART}, s{sPK}, {128*br}'); E(f's_mul_i32 s{sPART}, s{sPART}, {PART}')
        E(f's_lshl_b32 s{sPK}, s{sPK}, {19 if br and not s.b2 else 18}'); E(f's_mov_b32 s{sPV}, s{sPK}')
        E(f'v_lshlrev_b32 v{vLin}, 4, v1')
    def setup_rd(s, k=True):
        E = s.E
        E('v_and_b32 v41, 15, v1')
        E('v_lshrrev_b32 v42, 4, v1')
        E('v_lshrrev_b32 v45, 2, v41')
        E('v_and_b32 v46, 1, v42'); E('v_lshl_add_u32 v45, v46, 2, v45')
        E('v_lshrrev_b32 v46, 1, v42'); E('v_lshlrev_b32 v46, 10, v46'); E('v_lshl_add_u32 v46, v45, 7, v46')
        E('v_and_b32 v47, 3, v41'); E('v_lshl_add_u32 v46, v47, 3, v46'); E(f'v_add_u32 v46, s{sRS}, v46')
        E('v_lshrrev_b32 v45, 1, v45')
        for d in range(4):
            E(f'v_xor_b32 v47, {d}, v45'); E(f'v_lshl_add_u32 v{vTB+d}, v47, 5, v46')
        E('v_lshrrev_b32 v45, 3, v41'); E('v_lshlrev_b32 v45, 10, v45'); E('v_and_b32 v46, 7, v41'); E('v_lshl_add_u32 v45, v46, 7, v45')
        E('v_lshrrev_b32 v46, 1, v41'); E('v_xor_b32 v46, v46, v42'); E(f'v_lshl_add_u32 v{vXR}, v46, 4, v45'); E(f'v_xor_b32 v{vXR+1}, 64, v{vXR}')
        if k: s.setup_kb()
    def setup_kb(s):
        E = s.E
        E('v_lshrrev_b32 v45, 1, v41'); E(f'v_mul_u32_u24 v{vKB}, 1056, v45'); E('v_and_b32 v45, 1, v41')
        E(f'v_lshl_add_u32 v{vKB}, v45, 9, v{vKB}'); E('v_xor_b32 v45, v45, v42'); E(f'v_lshl_add_u32 v{vKB}, v45, 4, v{vKB}')
        E(f'v_add_u32 v{vKB}, s{sRS}, v{vKB}')
    def setup_late(s, T, br):
        E = s.E
        E(f'v_lshl_add_u32 v{vV}, v43, 9, v44')
        for p in range(1, 4): E(f'v_add_u32 v{vV+p}, {p*3072}, v{vV}')
        E(f'v_mul_u32_u24 v{vOA}, 896, v43'); E(f'v_add_u32 v{vOA}, v{vOA}, v44')
        for p in range(1, 4): E(f'v_add_u32 v{vOA+p}, {p*(8*896-1024)}, v{vOA}')
        E(f's_add_u32 s{sP1}, s{sPART}, 24576')
        E(f's_cmp_eq_u32 s{sW}, 3'); E(f's_cselect_b32 s{sLC}, 0x40000000, 512'); E(f's_cselect_b32 s{sP1}, 0x40000000, s{sP1}')
        E(f's_mov_b32 s{sU}, 0')
        if cfg.swap:
            if cfg.w3:
                E(f's_cselect_b32 s{sC}, 0, s{sB}'); E(f's_bitcmp1_b32 s{sC}, {1 if s.b2 else 0}')
            else:
                E(f's_bitcmp1_b32 s{sB}, 0')
            E(f's_cselect_b32 s{sU}, s{sLC}, 0'); E(f's_cselect_b32 s{sLC}, 0, s{sLC}')
            E(f's_cselect_b32 s{sC}, s{sP1}, s{sPART}'); E(f's_cselect_b32 s{sP1}, s{sPART}, s{sP1}'); E(f's_mov_b32 s{sPART}, s{sC}')
        for p in range(4): E(f'v_add_u32 v{vWB+p}, s{sLC}, v{vOA+p}')
        for p in range(4): E(f'v_add_u32 v{vOA+p}, s{sU}, v{vOA+p}')
        E(f'v_mul_u32_u24 v45, 6144, v40'); E(f'v_add_u32 v{vF6}, v45, v{vLin}')
        E('v_lshrrev_b32 v46, 1, v42'); E('v_lshl_add_u32 v45, v46, 8, v45')
        E('v_lshl_add_u32 v45, v41, 4, v45'); E('v_and_b32 v47, 1, v42'); E(f'v_lshl_add_u32 v{vQW}, v47, 3, v45')
        E(f'v_mul_u32_u24 v45, {T*1024}, v46'); E('v_and_b32 v46, 1, v40'); E('v_lshl_add_u32 v46, v46, 1, v47')
        E('v_lshl_add_u32 v45, v46, 8, v45'); E('v_lshl_add_u32 v45, v41, 4, v45'); E('v_lshrrev_b32 v46, 1, v40'); E(f'v_lshl_add_u32 v{vPW}, v46, 3, v45')
        E(f'v_lshlrev_b32 v45, 4, v41'); E(f'v_add_u32 v{vStR}, {STAT}, v45'); E(f'v_lshl_add_u32 v{vStW}, v40, 2, v{vStR}')
        for kk in range(2):
            E(f's_lshl_b32 s{sLC}, s{sW}, 1'); E(f's_add_u32 s{sLC}, s{sLC}, {8+kk}'); E(f's_sub_u32 s{sLC}, s{sLC}, s{sRO}'); E(f's_and_b32 s{sLC}, s{sLC}, 7')
            E(f's_mul_i32 s{sLC}, s{sLC}, 3072'); E(f'v_add_u32 v{vOW+kk}, s{sLC}, v{vLin}')
        c = struct.unpack('<I', struct.pack('<f', 1.4426950408889634 / 16.0))[0]
        E(f's_mov_b32 s{sC}, {c:#x}'); E(f's_mov_b32 s{sC+1}, s{sC}'); E(f's_mov_b32 s{sBR}, {br}')
    def touch(s, br):
        E = s.E
        E(f's_lshl_b32 s{sFL}, s{sB}, 8'); E(f's_add_u32 s{sFL}, s{sFL}, {FLAGS + br*4096}')
        E(f'v_min_u32 v{vZ}, 1, v0'); E(f'v_lshlrev_b32 v{vZ}, 30, v{vZ}')
        E(f'buffer_load_dword v{vOld}, v{vZ}, {srd(SWS)}, s{sFL} offen sc1')
        if cfg.tlb:
            if br: E(f'buffer_load_dword v{vPF}, v{vZ}, {srd(SK)}, s{sPK} offen {cfg.kvpol}')
            E(f'buffer_load_dword v{vPF}, v{vZ}, {srd(SV)}, s{sPV} offen {cfg.kvpol}')
            E(f'buffer_load_dword v{vPF}, v{vZ}, {srd(SWS)}, s{sPART} offen sc1')
    def load_ptrs(s, br):
        E = s.E
        o = 40 * br
        E(f's_load_dwordx2 s[{SX}:{SX+1}], s[0:1], {o}')
        E(f's_load_dwordx2 s[{SW}:{SW+1}], s[0:1], {o+24}')
        E(f's_load_dwordx2 s[{SK}:{SK+1}], s[0:1], {o+8}')
        E(f's_load_dwordx2 s[{SV}:{SV+1}], s[0:1], {o+16}')
        E(f's_load_dwordx2 s[{SWO}:{SWO+1}], s[0:1], {o+32}')
        E(f's_load_dwordx2 s[{SWS}:{SWS+1}], s[0:1], 96')
        kv = 16 * (16 if br else 8) * 262144
        for r, n in ((SX, 16 * 43008), (SW, 448 * 8192), (SK, kv), (SV, kv), (SWS, FLAGS + 8192)):
            E(f's_mov_b32 s{r+2}, {n}'); E(f's_mov_b32 s{r+3}, 0x20000')
    def pf_loop(s, n):
        def body():
            for k in range(4):
                s.E(f'buffer_load_dwordx4 {vr(vPF)}, v{vLin}, {srd(SPF)}, s{sT2} offen')
                s.E(f's_add_u32 s{sT2}, s{sT2}, s{sT1}')
            s.E('s_waitcnt vmcnt(24)')
        s.rolled(n // 4, body)

F = NQ - LEAD
WQ = ['WA'] * 14; WO = ['WA'] * 8 + ['WB'] * 8
def WN(n, entry=LEAD, stay=False, nat=False):
    up = LEAD + cfg.wl - entry
    if stay: return [2] * up + [1] * (n - up)
    if nat: return [2] * up + [1] * (n - up - 6) + [int(c) for c in str(cfg.tailp).zfill(6)]
    return [2] * up + [1] * (n - up - cfg.wl - LEAD) + [0] * cfg.wl + [1] * LEAD
def ramp_np(n): return WN(n, cfg.ramp, nat=True)
pat = lambda p: [int(c) for c in str(p).lstrip('x')]

def es_fill(s):
    if cfg.safe: return dict(enumerate(Gen.split(s.store_slice(0), 16 - cfg.est), cfg.est))
    return dict(enumerate(Gen.split(s.store_slice(0), 6), 9))
def es_head():
    return {cfg.est: ['s_waitcnt vmcnt(0) ']} if cfg.safe else None
def q_both(s, started):
    E = s.E
    ex = {14 - LEAD - cfg.wl: s.wq_head()}
    if cfg.xb < 4: ex[0] = s.x_loads(range(cfg.xb, 4))
    s.tg_phase(3, vS, WN(14, started, True), 'x', bar=True, extra=ex, bars=((4 * cfg.xb,) if cfg.xb < 4 else ()))
    s.q_pack(vS, vS + 48)
    s.tg_phase(3, vS, WN(14, LEAD + cfg.wl, nat=True), 'x')
def q_misc(s):
    E = s.E
    E(f's_load_dwordx2 s[{SDBG}:{SDBG+1}], s[0:1], 88')
    for x in s.w_to_wo(): E(x)
    E(f's_lshl_b32 s{sT0}, s{sB}, 4'); E(f's_lshl_b32 s{sDO}, s{sBR}, 3'); E(f's_add_u32 s{sDO}, s{sDO}, s{sT0}'); E(f'v_mov_b32 v{vC1}, 1')
def q_exch(s):
    E = s.E
    q_misc(s)
    s.q_pack(vS, vS + 72)
    E('s_barrier')
    s.q_write(vS + 48, 0); s.q_write(vS + 72, 1)
    E('s_waitcnt lgkmcnt(0)'); E('s_barrier')
    E(f's_mov_b32 s{SDBG+2}, 256')

def path_B_text():
    s = Gen(1000); E = s.E
    pb = cfg.parkB; dfl = None
    for kinds, st in ((['K'] * (2 * pb), 0), (WQ, 2 * pb), (WQ, 2 * pb + 2), (['K'] * (16 - 2 * pb), 2 * pb + 4), (['V'] * 16, 2), (['K'] * 16, 0), (WO, 4)): s.plan(kinds, st)
    pk_ = cfg.parkO
    assert pk_ in (0, 6)
    if pk_: s.plan(WO[:6], 2); s.plan(['V'] * 16, 2); s.plan(WO[6:], 0, 6)
    else: s.plan(['V'] * 16, 2); s.plan(WO, 0)
    s.stamp(0)
    s.load_ptrs(1)
    if pb:
        s.setup_ids(1); s.setup_k(1)
        E('s_waitcnt lgkmcnt(0)')
        for _ in range(2): s.emit_groups(s.prod())
        s.touch(1); s.setup_x(); s.setup_w(); s.setup_rd(); s.setup_late(3, 1)
        for x in s.wq_table(0, 14): E(x)
        for _ in range(2 * pb - 2): s.emit_groups(s.prod())
        s.emit_groups([s.x_loads(range(cfg.xb))])
        if pb < 3:
            for _ in range(cfg.rampB): s.emit_groups(s.prod())
        for tau in range(pb):
            s.emit_groups(s.k_fetch(lambda k: vr(vOUT + tau * 32 + 4 * k)))
            if tau == 0 and pb == 3:
                E('s_waitcnt lgkmcnt(0)')
                for _ in range(cfg.rampB): s.emit_groups(s.prod())
        E('s_waitcnt lgkmcnt(0)')
    else:
        sb = (lambda k: s.stamp(k)) if cfg.stB else (lambda k: None)
        if cfg.pro == 0:
            s.setup_ids(1); s.setup_x(); s.setup_w()
            for x in s.wq_table(0, cfg.rampB): E(x)
            E('s_waitcnt lgkmcnt(0)')
            s.emit_groups([s.x_loads(range(cfg.xb))])
            for _ in range(cfg.rampB): s.emit_groups(s.prod())
            for x in s.wq_table(cfg.rampB, 14): E(x)
            s.setup_k(1); s.touch(1); s.setup_rd(); s.setup_late(3, 1)
        else:
            s.setup_ids(1); s.setup_x()
            sb(2)
            E('s_waitcnt lgkmcnt(0)')
            sb(3)
            s.emit_groups([s.x_loads(range(cfg.xb))])
            sb(4)
            s.setup_w()
            if cfg.defer:
                for x in s.wq_table(0, 8): E(x)
                for _ in range(2): s.emit_groups(s.prod())
                s.setup_rd(False)
                sb(5)
                for _ in range(cfg.rampB - 2): s.emit_groups(s.prod())
                def rest():
                    s.setup_k(1); s.touch(1); s.setup_kb(); s.setup_late(3, 1)
                dfl = {0: s.wq_table(8, 11), 1: s.wq_table(11, 14)}
                dfl.update(dict(enumerate(Gen.split(s.capture(rest), 11), 2)))
            else:
                for x in s.wq_table(0, 14): E(x)
                s.setup_k(1); s.touch(1); s.setup_rd(); s.setup_late(3, 1)
                sb(5)
                for _ in range(cfg.rampB): s.emit_groups(s.prod())
        sb(6)
        if cfg.stB:
            st0_ = s.stamp
            s.stamp = lambda k: (None if 2 <= k <= 6 else st0_(k))
    if cfg.trace:
        s.tr = True; E('s_mov_b32 s100, 0'); E('s_memrealtime s[96:97]'); E('v_mov_b32 v42, 0'); E('v_mov_b32 v43, 0')
    if cfg.fastq:
        assert not pb and cfg.xb == 4
        cap = s.capture
        s.tg_phase(3, vS, WN(14, cfg.rampB, True), 'x', bar=True, extra={14 - LEAD - cfg.wl: s.wq_head()}, last=False, fills=dfl)
        p1 = cap(lambda: s.q_pack(vS, vS + 48, False)); w1 = cap(lambda: s.q_write(vS + 48, 0)); r1 = cap(lambda: s.frag_read(24))
        fl = dict(enumerate(Gen.split(p1, 3), 15)); fl[22] = w1; fl.update(dict(enumerate(Gen.split(r1, 4), 24)))
        s.tg_phase(3, vOUT, [1] * 8 + pat(cfg.tailB), 'x', st0=14, first=False, z=True, fills=fl, heads={22: ['s_barrier'], 24: ['s_barrier']})
        s.stamp(1)
        p2 = cap(lambda: s.q_pack(vOUT, vOUT + 48, False)); w2 = cap(lambda: s.q_write(vOUT + 48, 1)); r2 = cap(lambda: s.frag_read(24, 24576, aO))
        fl = {0: p2, 1: w2, 2: cap(lambda: q_misc(s))}; fl.update(dict(enumerate(Gen.split(r2, 4), 3)))
        s.s_phase(3, pat(cfg.snB), fills=fl, heads={1: ['s_barrier'], 3: ['s_barrier', f's_mov_b32 s{SDBG+2}, 256']})
    else:
        q_both(s, cfg.rampB)
        s.stamp(1)
        def g0():
            q_exch(s); s.frag_read(24)
        q2 = s.capture(lambda: s.frag_read(24, 24576, aO))
        if pb:
            s.gap(g0, 1, 0.5, 1.0)
            sn = [1] + [0] * (pb - 1) + pat(cfg.sn)[:8 - pb]
        else:
            s.gap(g0, F); sn = pat(cfg.sn)
        s.s_phase(3, sn, parked=pb, fills=dict(enumerate(Gen.split(q2, 4), 2)))
    s.stamp(2)
    def g1():
        s.softmax(3)
        for tau in range(8): s.exp_pack(3, tau, wtau=tau)
        E('s_waitcnt lgkmcnt(0)'); E('s_barrier')
    s.gap(g1, F, 0.1, 0.9)
    s.stamp(3)
    s.tg_phase(3, vOUT, pat(cfg.pvn)[:12], 'p', lacc=vOUT + 48, heads={8: s.ready_add()}, last=False)
    def late():
        s.tg_phase(3, vOUT, pat(cfg.pvn)[12:], 'p', lacc=vOUT + 48, st0=12, first=False, heads={12: ['s_barrier']})
        s.stamp(4)
        if cfg.trace: E('v_mov_b32 v44, v42'); E('v_mov_b32 v45, v43'); E('s_mov_b32 s100, 0')
        op = s.capture(lambda: s.o_pack(3, vOUT, vOUT + 48, True, M=lambda t: vSR + 2 * t, nops=False))
        of = s.capture(lambda: s.frag_read(24, 0, 0))
        fl = dict(enumerate(Gen.split(op, 2))); fl.update(dict(enumerate(Gen.split(of, 4), 3)))
        s.s_phase(3, [2] * 8, qb=aO, fills=fl, heads={3: ['s_barrier']})
        s.stamp(5)
        if cfg.expW:
            a_ = s.capture(lambda: s.sm_a(3)); r_ = s.capture(lambda: s.sm_rd(0)); b_ = s.capture(lambda: s.sm_b(0))
            exf = lambda: [s.exp_pack(3, tau, wtau=tau) for tau in range(8)]
            if cfg.expW == 2:
                fl = {1: a_, 2: r_, 3: b_}; fl.update(dict(enumerate(Gen.split(s.capture(exf), 12), 4))); hb = 2
            else:
                hb = cfg.hb; fl = dict(enumerate(Gen.split(a_, 4), 3)); fl.update({hb: r_, hb + 1: b_})
            if pk_:
                s.o_proj(WN(16, stay=True), 0, c0=True, fills=fl, heads={hb: ['s_barrier']}, extra={10: s.wo_head()})
                s.stamp(6)
                for k in range(6):
                    s.emit_groups(s.tg_fetch(3, 0, None, aFR, dst=aO + 16 * k))
                    if k in (1, 3):
                        E('s_waitcnt lgkmcnt(0)'); s.emit_groups(s.prod())
                E('s_waitcnt lgkmcnt(0)')
                s.gap(exf, 4, 0.0, 1.0)
            else:
                s.o_proj(WN(16, nat=True), 0, c0=True, fills=fl, heads={hb: ['s_barrier']})
                s.stamp(6)
                for x in s.wo_head(): E(x)
                if cfg.expW == 2:
                    for _ in range(F): s.emit_groups(s.prod())
                else:
                    s.gap(exf, F, 0.1, 0.9)
            E('s_waitcnt lgkmcnt(0)'); E('s_barrier')
        else:
            s.o_proj(WN(16, nat=True), 0, c0=True)
            s.stamp(6)
            for x in s.wo_head(): E(x)
            s.gap(g1, F, 0.1, 0.9)
    def early():
        s.tg_phase(3, vOUT, [3, 1, 1, 0], 'p', lacc=vOUT + 48, st0=12, first=False, heads={12: ['s_barrier']})
        s.stamp(4)
        s.emit_groups(s.tg_fetch(3, 0, None, aFR))
        s.o_pack(3, vOUT, vOUT + 48, True, nops=False)
        E('s_waitcnt lgkmcnt(0)'); E('s_barrier')
        of = s.capture(lambda: s.frag_read(24, 0, 0))
        for x in of[:6]: E(x)
        tl = pat(cfg.otl)
        s.o_proj([1, 1, 1, 2] + [1] * 6 + tl, 0, c0=True, fills=dict(enumerate(Gen.split(of[6:], 6))), primed=True, heads={10: ['s_barrier']})
        s.stamp(5)
        for x in s.wo_head(): E(x)
        sn = [2] * 8
        for k in range(sum(tl) - 4): sn[2 + k] = 1
        s.s_phase(3, sn, qb=aO)
        s.stamp(6)
        s.gap(g1, F, 0.1, 0.9)
    if not cfg.stag: late()
    else:
        z = (list(s.q), s.pseq, s.cseq, s.freed, list(s.owner)); st_keep = list(s.stream)
        p0 = s.pseq
        assert s.stream[p0][0] == 'K' and s.stream[p0][2] == 0
        s.stream = st_keep[:p0] + [(k, i % NQ, i) for i, k in enumerate(WO)] + [('K', (4 + i) % NQ, i) for i in range(16)] + st_keep[p0 + 32:]
        te = s.capture(early); ze = (list(s.q), s.pseq, s.cseq)
        s.q, s.pseq, s.cseq, s.freed, s.owner = z; s.stream = st_keep
        tlate = s.capture(late)
        assert ze[1:] == (s.pseq, s.cseq) and ze[0][-24:] == s.q[-24:]
        s.L += [f's_bitcmp1_b32 s{sB}, {cfg.stag - 1}', 's_cbranch_scc1 L_early'] + tlate + ['L_join:']
        s.cold += ['L_early:'] + te + ['s_branch L_join']
    s.stamp(7)
    ep = pat(cfg.endp)
    s.tg_phase(3, vS, pat(cfg.pvn)[:12] + ep, 'p', lacc=vS + 48, heads={4: s.ready_load(), 12: ['s_barrier']})
    s.stamp(8)
    if not pk_: s.emit_groups(s.tg_fetch(3, 0, None, aFR))
    def g2():
        s.o_pack(3, vS, vS + 48, True, nops=bool(pk_))
    if sum(ep) == 4: s.gap(g2, F, 0.0, 0.6)
    else: g2()
    E('s_waitcnt lgkmcnt(0)'); E('s_barrier')
    of = s.capture(lambda: s.frag_read(24, 0, 0))
    for x in of[:6]: E(x)
    s.stamp(9)
    fl = dict(enumerate(Gen.split(of[6:], cfg.fsp))); fl.update(es_fill(s))
    x5 = 1 if sum(ep) == 5 else 0
    if pk_: s.o_proj([x5] + [0] * 5 + [1] * 4 + [0] * 6, 0, fills=fl, parked=6)
    else: s.o_proj([1, 1, 1, 1 + x5] + [1] * 6 + [0] * 6, 0, fills=fl, primed=True, heads=es_head())
    for k in (10, 11): s.stamp(k)
    if cfg.trace:
        E('s_waitcnt lgkmcnt(0)'); s.tr_start()
        for i in range(4): E(f'v_mov_b32 v{2+i}, v{(44,45,42,43)[i]}')
    s.finish()
    return s.L

def path_B2_text():
    s = Gen(1000); E = s.E; s.b2 = True; cap = s.capture
    for i, sl in enumerate([0, 1, 2, 0, 1, 2, 3, 4, 5, 0, 1, 2, 3, 4]): s.stream.append(('WA', sl, i))
    for kinds, st in ((['K'] * 16, 0), (['V'] * 16, 4), (['K'] * 16, 2), (['V'] * 16, 0), (WO, 4)): s.plan(kinds, st)
    s.stamp(0)
    s.load_ptrs(1)
    s.setup_ids(1); s.setup_x()
    E('s_waitcnt lgkmcnt(0)')
    s.emit_groups([s.x_loads()])
    for m in range(4): E(f's_add_u32 s{sXC+m}, s{sXC+m}, 43008')
    for m in range(4):
        for t in range(3):
            E(f's_add_u32 m0, s{sRS}, {(3+t)*QP + m*1024}'); E('s_nop 0')
            E(f'buffer_load_dwordx4 v{vX+t}, {srd(SX)}, s{sXC+m} offen {cfg.wpol} lds')
    s.setup_w()
    for x in s.wq_table(0, 14): E(x)
    s.setup_k(1); s.touch(1); s.setup_rd(); s.setup_late(3, 1)
    E('v_lshrrev_b32 v45, 3, v41'); E(f'v_mul_u32_u24 v45, {RSZ-1024}, v45'); E(f'v_add_u32 v45, {RING + 3*QP}, v45')
    E(f'v_add_u32 v{vSR}, v45, v{vXR}'); E(f'v_add_u32 v{vSR+1}, v45, v{vXR+1}')
    for _ in range(3): s.emit_groups(s.prod())
    if cfg.trace:
        s.tr = True; E('s_mov_b32 s100, 0'); E('s_memrealtime s[96:97]'); E('v_mov_b32 v42, 0'); E('v_mov_b32 v43, 0')
    x1 = [f'ds_read_b128 {ar(12*st+4*t)}, v{vSR+(st&1)} offset:{((st>>1)&1)*2*RSZ + t*QP + (st>>2)*1024}' for st in range(14) for t in range(3)]
    s.emit_groups(s.tg_fetch(3, 0, 'x', aFR, True))
    for x in x1[:6]: E(x)
    fl = dict(enumerate(Gen.split(x1[6:], 2)))
    s.tg_phase(3, vS, pat(cfg.qn), 'x', first=False, z=True, fills=fl, heads={3: ['s_barrier'], 9: ['s_barrier']}, dual=lambda st: (vOUT, 12 * st))
    s.stamp(1)
    def g0():
        s.q_pack(vS, vS + 48)
        s.q_write(vS + 48, 0)
        E('s_waitcnt lgkmcnt(0)'); E('s_barrier')
        s.frag_read(24)
    s.gap(g0, cfg.gq, 0.3, 1.0)
    p2 = cap(lambda: s.q_pack(vOUT, vOUT + 48, False)); w2 = cap(lambda: s.q_write(vOUT + 48, 1)); r2 = cap(lambda: s.frag_read(24, 24576, aO))
    fl = {0: p2, 1: w2, 2: cap(lambda: q_misc(s))}; fl.update(dict(enumerate(Gen.split(r2, 4), 3)))
    s.s_phase(3, pat(cfg.sn1), fills=fl, heads={3: ['s_barrier', f's_mov_b32 s{SDBG+2}, 256']})
    s.stamp(2)
    def g1():
        s.softmax(3)
        for tau in range(8): s.exp_pack(3, tau, wtau=tau)
        E('s_waitcnt lgkmcnt(0)'); E('s_barrier')
    s.gap(g1, F, 0.1, 0.9)
    s.stamp(3)
    s.tg_phase(3, vOUT, pat(cfg.pvn), 'p', lacc=vOUT + 48, heads={8: s.ready_add(), 12: ['s_barrier']})
    s.stamp(4)
    if cfg.trace: E('v_mov_b32 v44, v42'); E('v_mov_b32 v45, v43'); E('s_mov_b32 s100, 0')
    op = cap(lambda: s.o_pack(3, vOUT, vOUT + 48, True, M=lambda t: vSR + 2 * t, nops=False))
    of = cap(lambda: s.frag_read(24, 0, 0))
    fl = dict(enumerate(Gen.split(op, 2))); fl.update(dict(enumerate(Gen.split(of, 4), 3)))
    s.s_phase(3, [2] * 8, qb=aO, fills=fl, heads={3: ['s_barrier']})
    s.stamp(5); s.stamp(6)
    s.gap(g1, F, 0.1, 0.9)
    s.stamp(7)
    s.tg_phase(3, vOUT, pat(cfg.pvn)[:12] + [3, 1, 1, 0], 'p', lacc=vOUT + 48, heads={4: s.ready_load(), 12: ['s_barrier']})
    s.stamp(8)
    s.emit_groups(s.tg_fetch(3, 0, None, aFR))
    s.o_pack(3, vOUT, vOUT + 48, True, nops=False)
    E('s_waitcnt lgkmcnt(0)'); E('s_barrier')
    of = cap(lambda: s.frag_read(24, 0, aO))
    for x in of[:6]: E(x)
    s.stamp(9)
    fl = dict(enumerate(Gen.split(of[6:], 6))); fl.update(dict(enumerate(Gen.split(s.store_slice(0), 6), 9)))
    s.o_proj([1, 1, 1, 2] + [1] * 6 + [0] * 6, 0, c0=True, fills=fl, primed=True, dual=True)
    for k in (10, 11): s.stamp(k)
    if cfg.trace:
        E('s_waitcnt lgkmcnt(0)'); s.tr_start()
        for i in range(4): E(f'v_mov_b32 v{2+i}, v{(44,45,42,43)[i]}')
    s.finish()
    return s.L

def path_A():
    s = Gen(2000); E = s.E
    park = 3 if cfg.earlyK else 0
    pa = cfg.parkA
    assert park and pa in (0, 6)
    for kinds, st in ((['K'] * 6, 0), (WQ, 0), (WQ, 2), (['K'] * 10, 4)): s.plan(kinds, st)
    if pa: s.plan(WO[:6], 2); s.plan(['V'] * 16, 2); s.plan(WO[6:], 0, 6); s.plan(WO, 4)
    else: s.plan(['V'] * 16, 2); s.plan(WO, 0); s.plan(WO, 4)
    s.stamp(0)
    s.load_ptrs(0)
    if cfg.warm: E(f's_load_dwordx4 s[{sST+8}:{sST+11}], s[0:1], 64')
    s.setup_ids(0); s.setup_k(0)
    E('s_waitcnt lgkmcnt(0)')
    def warm():
        E(f's_mul_i32 s{sT0}, s{sB}, 28'); E(f's_mul_i32 s{sT1}, s{sW}, 7'); E(f's_add_u32 s{sT0}, s{sT0}, s{sT1}')
        E(f's_mov_b32 s{SPF+2}, {448*8192}'); E(f's_mov_b32 s{SPF+3}, 0x20000')
        for c in str(cfg.word).lstrip('x'):
            ptr, isq = ((sST + 8, True), (SW, True), (sST + 10, False), (SWO, False))[int(c)]
            E(f's_mov_b32 s{SPF}, s{ptr}'); E(f's_mov_b32 s{SPF+1}, s{ptr+1}')
            if isq:
                E(f's_lshl_b32 s{sT2}, s{sT0}, 13'); E(f's_lshl_b32 s{sT1}, s{sJ}, 10')
            else:
                E(f's_lshl_b32 s{sT2}, s{sT0}, 10'); E(f's_mul_i32 s{sT1}, s{sJ}, {512*896}')
            E(f's_add_u32 s{sT2}, s{sT2}, s{sT1}')
            for k in range(7):
                E(f'buffer_load_dwordx4 {vr(vPF)}, v{vLin}, {srd(SPF)}, s{sT2} offen')
                if k < 6: E(f's_add_u32 s{sT2}, s{sT2}, {8192 if isq else 1024}')
    def wo_warm(own, head2):
        o = []
        n = 4 if head2 else 7
        o += [f's_mul_i32 s{sT2}, s{sB}, {14336 if head2 else 28672}', f's_mul_i32 s{sT1}, s{sW}, {3584 if head2 else 7168}', f's_add_u32 s{sT2}, s{sT2}, s{sT1}',
              f's_mul_i32 s{sT1}, s{sJ}, {512*896}', f's_add_u32 s{sT2}, s{sT2}, s{sT1}']
        if head2: o += [f's_add_u32 s{sT2}, s{sT2}, {256*896}']
        for k in range(n):
            o += [f'buffer_load_dwordx4 {vr(vOA)}, v{vLin}, {srd(SW if own else SPF)}, s{sT2} offen']
            if k < n - 1: o += [f's_add_u32 s{sT2}, s{sT2}, 1024']
        return o
    def code_pf(va, vd):
        lb = s.lab('pc')
        o = [f's_getpc_b64 s[{sT0}:{sT0+1}]', f'{lb}:', f's_sub_u32 s{sT0}, s{sT0}, {lb}-{NAME}_kernel', f's_subb_u32 s{sT0+1}, s{sT0+1}, 0',
             f's_lshl_b32 s{sT2}, s{sB}, 2', f's_add_u32 s{sT2}, s{sT2}, s{sW}', f's_mul_i32 s{sT2}, s{sT2}, 1408']
        for k in range(2):
            o += [f'v_add_u32 v{va}, s{sT2}, v{vLin}', f'v_min_u32 v{va}, L_code_end-{NAME}_kernel-16, v{va}',
                  f'v_mov_b32 v{va+1}, s{sT0+1}', f'v_add_co_u32 v{va}, vcc, s{sT0}, v{va}', 's_nop 1', f'v_addc_co_u32 v{va+1}, vcc, 0, v{va+1}, vcc',
                  f'global_load_dwordx4 {vr(vd)}, {vr(va,2)}, off']
            if k == 0: o += [f's_add_u32 s{sT2}, s{sT2}, 1024']
        return o
    sa = (lambda k: s.stamp(k)) if cfg.stA else (lambda k: None)
    sa(7)
    if cfg.codepf & 1:
        for x in code_pf(48, vPF): E(x)
    if cfg.warm == 1: warm()
    sa(8)
    if park:
        for _ in range(2): s.emit_groups(s.prod())
    s.touch(0); s.setup_x(); s.setup_w(); s.setup_rd(); s.setup_late(6, 0)
    for x in s.wq_table(0, 14): E(x)
    if park:
        for _ in range(4): s.emit_groups(s.prod())
    sa(9)
    if cfg.pfK:
        if cfg.pfsel: E(f's_bitcmp1_b32 s{sB}, {cfg.pfsel - 1}'); E('s_cbranch_scc0 L_nopf')
        E(f's_mov_b32 s{sT2}, s{sPK}')
        for k in range(cfg.pfK):
            for p in range(4): E(f'buffer_load_dwordx4 {vr(vPF)}, v{vK}, {srd(SK)}, s{sT2} offen offset:{p*1024} {cfg.pfpol}')
            E(f's_add_u32 s{sT2}, s{sT2}, 0x4000')
            if cfg.pfw < 63: E(f's_waitcnt vmcnt({cfg.pfw})')
        E(f's_mov_b32 s{sT2}, s{sPV}')
        for k in range(cfg.pfV):
            for p in range(4): E(f'buffer_load_dwordx4 {vr(vPF)}, v{vK}, {srd(SV)}, s{sT2} offen offset:{p*1024} {cfg.pfpol}')
            E(f's_add_u32 s{sT2}, s{sT2}, 0x4000')
            if cfg.pfw < 63: E(f's_waitcnt vmcnt({cfg.pfw})')
        if cfg.pfsel: E('L_nopf:')
    if cfg.warm == 2: warm()
    s.emit_groups([s.x_loads(range(cfg.xb))])
    sa(10)
    if park:
        for tau in range(3):
            s.emit_groups(s.k_fetch(lambda k: vr(vOUT + tau * 32 + 4 * k)))
            if tau == 0:
                E('s_waitcnt lgkmcnt(0)')
                for _ in range(cfg.ramp): s.emit_groups(s.prod())
        E('s_waitcnt lgkmcnt(0)')
    else:
        for _ in range(cfg.ramp): s.emit_groups(s.prod())
    s.stamp(1)
    q_both(s, cfg.ramp)
    s.stamp(2)
    def g0():
        q_exch(s); s.frag_read(48)
    sHV = sXC
    def hv_loads(n):
        o = []
        for k in range(n):
            o += [f'buffer_load_dwordx4 {vr(vOA)}, v{vLin}, {srd(SPF)}, s{sHV} offen offset:{p*1024} {cfg.hvpol}' for p in range(4)]
            o += [f's_add_u32 s{sHV}, s{sHV}, 0x4000']
        return o
    if cfg.hv2 or cfg.hvs:
        for x in [f's_load_dwordx2 s[{SPF}:{SPF+1}], s[0:1], 56', f's_mov_b32 s{SPF+2}, {256*262144}', f's_mov_b32 s{SPF+3}, 0x20000',
                  f's_lshl_b32 s{sHV}, s{sB}, 3', f's_add_u32 s{sHV}, s{sHV}, s{sJ}', f's_lshl_b32 s{sHV}, s{sHV}, 19', f's_lshl_b32 s{sT1}, s{sW}, 12',
                  f's_add_u32 s{sHV}, s{sHV}, s{sT1}', f's_add_u32 s{sHV}, s{sHV}, {524288 - (cfg.hv2 + cfg.hvs)*16384}']: E(x)
    if park:
        g0()
        hs = {1: s.ready_add(), 4: [f's_load_dwordx2 s[{SPF}:{SPF+1}], s[0:1], 72', f's_mov_b32 s{SPF+2}, {448*8192}', f's_mov_b32 s{SPF+3}, 0x20000'] if cfg.jit else []}
        if cfg.hvs: hs.update(dict(enumerate(Gen.split(hv_loads(cfg.hvs), 4), 4)))
        s.s_phase(6, pat(cfg.snA), parked=park, heads=hs)
    else:
        s.gap(g0, F)
        s.s_phase(6, pat(cfg.sn), heads={1: s.ready_add()})
    s.stamp(3)
    hold = lambda tau: (lambda t: vS + 48 + ((tau - 4) * 6 + t) * 2)
    def g1():
        s.softmax(6)
        for tau in range(4):
            s.exp_pack(6, tau, wtau=tau)
            if cfg.codepf & 2 and tau == 1:
                for x in code_pf(vXR, vOA): E(x)
            if cfg.jit & 1 and tau in (0, 2):
                for x in wo_warm(tau == 2, False): E(x)
        for tau in range(4, 8): s.exp_pack(6, tau, dst=hold(tau))
        E('s_waitcnt lgkmcnt(0)'); E('s_barrier')
    if pa:
        def g1a():
            s.softmax(6)
            for tau in range(2): s.exp_pack(6, tau, wtau=tau)
        def g1b():
            for tau in range(2, 4): s.exp_pack(6, tau, wtau=tau)
            for tau in range(4, 8): s.exp_pack(6, tau, dst=hold(tau))
            E('s_waitcnt lgkmcnt(0)'); E('s_barrier')
        s.gap(g1a, 6 - (s.pseq - s.cseq), 0.0, 0.7)
        for k in range(6): s.emit_groups(s.tg_fetch(3, 0, None, aFR, dst=aO + 16 * k))
        E('s_waitcnt lgkmcnt(0)')
        s.gap(g1b, cfg.gA + 1, 0.0, 0.8)
    else:
        s.gap(g1, cfg.gA, 0.1, 0.8)
    s.stamp(4)
    pv = pat(cfg.pvnA)
    s.tg_phase(6, vOUT, pv[:8], 'p', lacc=vS, base=0, heads=dict(enumerate(Gen.split(hv_loads(cfg.hv2), cfg.hv2n))) if cfg.hv2 else None)
    E('s_barrier')
    for tau in range(4, 8):
        for t in range(6): E(s.p_write(6, tau - 4, t, hold(tau)(t)))
    E('s_waitcnt lgkmcnt(0)'); E('s_barrier')
    if cfg.endA: pv = pv[:12] + [3, 1, 1, 0]
    hds = {9: s.ready_load()}; hfl = {}
    if cfg.hv:
        hds[10] = [f's_load_dwordx2 s[{SPF}:{SPF+1}], s[0:1], 56', f's_mov_b32 s{SPF+2}, {256*262144}', f's_mov_b32 s{SPF+3}, 0x20000',
                   f's_lshl_b32 s{sT2}, s{sB}, 3', f's_add_u32 s{sT2}, s{sT2}, s{sJ}', f's_lshl_b32 s{sT2}, s{sT2}, 19', f's_lshl_b32 s{sT1}, s{sW}, 12',
                   f's_add_u32 s{sT2}, s{sT2}, s{sT1}', f's_add_u32 s{sT2}, s{sT2}, {524288 - cfg.hv*16384}']
        o = []
        for k in range(cfg.hv):
            o += [f'buffer_load_dwordx4 {vr(vOA)}, v{vLin}, {srd(SPF)}, s{sT2} offen offset:{p*1024} {cfg.hvpol}' for p in range(4)]
            o += [f's_add_u32 s{sT2}, s{sT2}, 0x4000']
        hfl[cfg.hvat] = o
    s.tg_phase(6, vOUT, pv[8:], 'p', lacc=vS, base=0, c0=False, st0=8, heads=hds, fills=hfl)
    s.stamp(5)
    Wl = []
    def g2():
        Wl.extend(s.o_pack(6, vOUT, vS, False))
    if cfg.endA: g2()
    else: s.gap(g2, F, 0.0, 0.6)
    if cfg.codepf & 4:
        for x in code_pf(vXR, vOA): E(x)
    if cfg.jit & 2:
        for x in wo_warm(False, True): E(x)
    E('s_barrier')
    for w in Wl: E(w)
    if not pa: s.emit_groups(s.tg_fetch(3, 0, None, aFR))
    E('s_waitcnt lgkmcnt(0)'); E('s_barrier')
    of = s.capture(lambda: s.frag_read(48))
    for x in of[:6]: E(x)
    s.stamp(6)
    fl = dict(enumerate(Gen.split(of[6:24], cfg.fsp))); fl.update(dict(enumerate(Gen.split(of[24:], 8), 7)))
    xa = 1 if cfg.endA else 0
    if pa: s.o_proj([xa] + [0] * 5 + [1] * 10, 0, c0=True, fills=fl, parked=6, extra={10: s.wo_head()})
    else: s.o_proj([1, 1, 1, 1 + xa] + [1] * 12, 0, c0=True, fills=fl, primed=True, extra={10: s.wo_head()})
    s.o_proj([1] * 10 + [0] * 6, aO, fills=es_fill(s), heads=es_head())
    for k in range(11 if cfg.stA else 7, 12): s.stamp(k)
    s.finish()
    return s.L

def reduce_tail(b2=False):
    NP = 16 if b2 else 8
    sfx = 'B' if b2 else ''
    L = []; E = L.append
    sOld, sF2 = sPK, sPV
    def st(k):
        if cfg.stamps: E(f's_memrealtime s[{sST+2*k}:{sST+2*k+1}]')
    E('L_reduce' + sfx + ':')
    E(f's_load_dwordx2 s[{SOUT}:{SOUT+1}], s[0:1], 80')
    E(f'v_readfirstlane_b32 s{sOld}, v{vOld}'); E(f'v_readfirstlane_b32 s{sT1}, v{vRdy}')
    if b2:
        E(f's_mul_i32 s{sPART}, s{sB}, {16*PART}'); E(f's_add_u32 s{sPART}, s{sPART}, {128*PART}')
    else:
        E(f's_lshl_b32 s{sT0}, s{sBR}, 4'); E(f's_add_u32 s{sT0}, s{sT0}, s{sB}')
        E(f's_mul_i32 s{sPART}, s{sT0}, {8*PART}')
    E(f's_lshl_b32 s{sT2}, s{sW}, {4 if b2 else 3}'); E(f's_add_u32 s{sT2}, s{sT2}, s{sJ}')
    E('v_and_b32 v42, 15, v1'); E('v_mul_u32_u24 v42, 1792, v42'); E('v_lshrrev_b32 v43, 4, v1'); E('v_lshl_add_u32 v42, v43, 3, v42')
    E(f's_mul_i32 s{sY}, s{sB}, {48*1792}'); E(f's_mul_i32 s{sT0}, s{sBR}, 896'); E(f's_add_u32 s{sY}, s{sY}, s{sT0}')
    E(f's_mov_b32 s{sLC}, 0x400000'); E(f'v_add_u32 v44, 1, v{vOld}')
    E('s_waitcnt vmcnt(0) lgkmcnt(0)')
    E('s_barrier')
    st(12)
    E(f's_mov_b32 s{SOUT+2}, {16*48*896*2}'); E(f's_mov_b32 s{SOUT+3}, 0x20000')
    E(f's_cmp_lg_u32 s{sW}, 0'); E('s_cbranch_scc1 L_rwait' + sfx + '')
    if cfg.sync == 2:
        E('L_rdy' + sfx + ':')
        E(f's_cmp_ge_u32 s{sT1}, {NP}'); E('s_cbranch_scc1 L_rdyok' + sfx + '')
        E(f's_sub_u32 s{sLC}, s{sLC}, 1'); E('s_cbranch_scc1 L_rdyok' + sfx + '')
        E('s_sleep 8')
        E(f'buffer_load_dword v{vRdy}, v{vZ}, {srd(SDBG)}, s{sDO} offen sc1')
        E('s_waitcnt vmcnt(0)')
        E(f'v_readfirstlane_b32 s{sT1}, v{vRdy}')
        E('s_branch L_rdy' + sfx + '')
        E('L_rdyok' + sfx + ':')
        E(f'buffer_atomic_add v{vC1}, v{vZ}, {srd(SWS)}, s{sFL} offen sc0 sc1')
        E(f's_add_u32 s{sOld}, s{sOld}, {NP-1}')
        E('s_waitcnt vmcnt(0)')
        E(f'v_readfirstlane_b32 s{sT1}, v{vC1}')
        E(f's_cmp_eq_u32 s{sT1}, s{sOld}'); E('s_cbranch_scc1 L_rwait' + sfx + '')
        E(f's_add_u32 s{sOld}, s{sOld}, 1')
        E('L_poll' + sfx + ':')
        E(f'buffer_load_dword v41, v{vZ}, {srd(SWS)}, s{sFL} offen {cfg.pollpol}')
        E(f's_sub_u32 s{sLC}, s{sLC}, 1'); E('s_cbranch_scc1 L_rwait' + sfx + '')
        E('s_waitcnt vmcnt(0)')
        E(f'v_readfirstlane_b32 s{sT1}, v41')
        if cfg.sleep: E(f's_sleep {cfg.sleep}')
        E(f's_cmp_lg_u32 s{sT1}, s{sOld}'); E('s_cbranch_scc1 L_poll' + sfx + '')
    else:
        E(f'buffer_atomic_add v{vC1}, v{vZ}, {srd(SDBG)}, s{sDO} offen sc0 sc1')
        E('s_waitcnt vmcnt(0)')
        E(f'v_readfirstlane_b32 s{sT1}, v{vC1}')
        E(f's_cmp_lt_u32 s{sT1}, 7'); E('s_cbranch_scc1 L_poll' + sfx + '')
        E(f'buffer_store_dword v44, v{vZ}, {srd(SWS)}, s{sFL} offen sc1')
        E('s_branch L_rwait' + sfx + '')
        E('L_poll' + sfx + ':')
        E(f'buffer_load_dword v41, v{vZ}, {srd(SWS)}, s{sFL} offen {cfg.pollpol}')
        E(f's_sub_u32 s{sLC}, s{sLC}, 1'); E('s_cbranch_scc1 L_rwait' + sfx + '')
        E('s_waitcnt vmcnt(0)')
        E(f'v_readfirstlane_b32 s{sT1}, v41')
        if cfg.sleep: E(f's_sleep {cfg.sleep}')
        E(f's_cmp_eq_u32 s{sT1}, s{sOld}'); E('s_cbranch_scc1 L_poll' + sfx + '')
    E('L_rwait' + sfx + ':')
    E('s_barrier')
    st(13); st(14)
    def split(freg):
        if b2:
            E(f's_cmp_ge_u32 s{freg}, 42'); E(f's_cselect_b32 s{sLC}, {16*PART - 42*1024}, 0')
            E(f's_lshl_b32 s{sT0}, s{freg}, 10'); E(f's_add_u32 s{sT0}, s{sT0}, s{sLC}')
        else:
            E(f's_lshl_b32 s{sT0}, s{freg}, 10')
        E(f's_add_u32 s{sT0}, s{sT0}, s{sPART}')
    def loads(base, freg):
        split(freg)
        for j in range(NP):
            E(f'buffer_load_dwordx4 {vr(base+4*j)}, v{vLin}, {srd(SWS)}, s{sT0} offen {cfg.rdpol}')
            if j < NP - 1: E(f's_add_u32 s{sT0}, s{sT0}, {PART}')
    def task(base, freg, younger, defer=None):
        E(f's_mul_i32 s{sT0}, s{freg}, 171'); E(f's_lshr_b32 s{sT0}, s{sT0}, 10')
        E(f's_mul_i32 s{sT1}, s{sT0}, 6'); E(f's_sub_u32 s{sT1}, s{freg}, s{sT1}')
        if b2:
            E(f's_cmp_ge_u32 s{sT0}, 7'); E(f's_cselect_b32 s{sU}, {48*1792 - 7*128}, 0')
        E(f's_lshl_b32 s{sT0}, s{sT0}, 7'); E(f's_add_u32 s{sT0}, s{sT0}, s{sY}')
        if b2: E(f's_add_u32 s{sT0}, s{sT0}, s{sU}')
        E(f's_cmp_ge_u32 s{sT1}, 3'); E(f's_cselect_b32 s{sLC}, {64 - 3*16*1792}, 0'); E(f's_add_u32 s{sT0}, s{sT0}, s{sLC}')
        E(f's_mul_i32 s{sT1}, s{sT1}, {16*1792}'); E(f's_add_u32 s{sT0}, s{sT0}, s{sT1}')
        E(f's_mov_b32 s{sLC}, 0xffff0000')
        for j in range(NP):
            E(f's_waitcnt vmcnt({NP-1-j+younger})')
            for r in range(4):
                src = base + 4 * j + r
                if j == 0:
                    E(f'v_lshlrev_b32 v{48+2*r}, 16, v{src}'); E(f'v_and_b32 v{49+2*r}, s{sLC}, v{src}')
                else:
                    t = 44 + 2 * (r & 1)
                    E(f'v_lshlrev_b32 v{t}, 16, v{src}'); E(f'v_and_b32 v{t+1}, s{sLC}, v{src}')
                    E(f'v_pk_add_f32 {vr(48+2*r,2)}, {vr(48+2*r,2)}, {vr(t,2)}')
        for r in range(4): E(f'v_cvt_pk_bf16_f32 v{base+r}, v{48+2*r}, v{49+2*r}')
        if defer is not None:
            E(f's_mov_b32 s{defer}, s{sT0}'); return
        stores(base, sT0)
    def stores(base, so):
        E(f'buffer_store_dwordx2 {vr(base,2)}, v42, {srd(SOUT)}, s{so} offen {cfg.outpol}')
        E(f'buffer_store_dwordx2 {vr(base+2,2)}, v42, {srd(SOUT)}, s{so} offen offset:32 {cfg.outpol}')
    NW = 64 if b2 else 32
    E(f's_cmp_ge_u32 s{sT2}, {20 if b2 else 10}'); E('s_cbranch_scc1 L_r1' + sfx)
    E(f's_add_u32 s{sF2}, s{sT2}, {NW}')
    loads(128, sF2)
    loads(64, sT2)
    task(128, sF2, NP, defer=sF2)
    task(64, sT2, 0)
    stores(128, sF2)
    E('s_branch L_rend' + sfx)
    E('L_r1' + sfx + ':')
    loads(64, sT2)
    task(64, sT2, 0)
    E('L_rend' + sfx + ':')
    if cfg.stamps:
        E('s_waitcnt vmcnt(0)')
        st(15)
        E('s_branch L_stamps')
    else:
        E('s_endpgm')
    return L

def kd(name, nv, ao):
    return ['.p2align 6', f'.amdhsa_kernel {name}', f'  .amdhsa_next_free_vgpr {nv}', '  .amdhsa_next_free_sgpr 102', f'  .amdhsa_accum_offset {ao}',
            '  .amdhsa_group_segment_fixed_size 0', '  .amdhsa_kernarg_size 104', '  .amdhsa_user_sgpr_count 2',
            '  .amdhsa_user_sgpr_kernarg_segment_ptr 1', '  .amdhsa_system_sgpr_workgroup_id_x 1', '.end_amdhsa_kernel']

def build(fname):
    hdr = [l for l in open('cdna_kernels/' + NAME + '.s.ref').read().split('\n') if l.startswith(';') and '@launch' not in l and 'Override' not in l and 'grid=ceil' not in l]
    L = hdr[:]
    L.append(f'; @launch grid=(256,1,1) block=(256,1,1) lds={LDS_TOTAL}')
    L += [
        '; Design (generated by a script of mine; one workgroup = 4 waves x 512 registers per CU, 256 workgroups):',
        ';   wg -> j = wg&7 (head pair), branch = bit 3 (0: GQA path A, 1: MHA path B), b = wg>>4 (batch).',
        ';   Every operand stream (wq, K, V, wo) goes HBM/L2 -> per-wave LDS ring (LDS-DMA, 6 x 4KB slots) -> MFMA fragments',
        ';   (ds_read_b128 for K, ds_read_b64_tr_b16 for wq/V/wo). Q, P and O are exchanged between waves through LDS.',
        ';   Softmax uses the true row max over all 512 keys; row sums come from a ones-row MFMA on the bf16 P.',
        ';   Each workgroup writes one bf16 partial of the output projection (its two heads) to d_ws with write-through',
        ';   stores; the 8 workgroups of a (branch, batch) group then count arrivals, and each sums 1/8 of the output.',
    ]
    L += ['.amdgcn_target "amdgcn-amd-amdhsa--gfx950"', '.text', f'.globl {NAME}_kernel', '.p2align 8', f'.type {NAME}_kernel,@function', f'{NAME}_kernel:']
    L += ['s_cmp_ge_u32 s2, 256', 's_cbranch_scc1 L_exit', 's_bitcmp1_b32 s2, 3', 's_cbranch_scc0 ' + ('L_exit' if cfg.noA else 'L_pathA')] + (['s_branch L_exit'] if cfg.noB else [])
    if cfg.b2:
        L += path_B2_text(); L += reduce_tail(True)
    else:
        L += path_B_text()
    L += reduce_tail()
    L += ['L_exit:', 's_endpgm', 'L_pathA:']
    L += path_A()
    if cfg.stamps:
        L += ['L_stamps:', 's_waitcnt lgkmcnt(0)', f's_add_u32 s{SWS}, s{SWS}, 0xc800000', f's_addc_u32 s{SWS+1}, s{SWS+1}, 0']
        if cfg.trace: L += ['s_lshl_b32 s58, s2, 12', 's_add_u32 s58, s58, 0x40000', 'v_lshlrev_b32 v40, 4, v0', f'buffer_store_dwordx4 v[2:5], v40, {srd(SWS)}, s58 offen']
        L += [
              's_lshl_b32 s58, s2, 7'] + ([f's_lshl_b32 s59, s{sW}, 15', 's_add_u32 s58, s58, s59'] if cfg.allw else []) + ['v_mov_b32 v40, s58', 'v_cmp_eq_u32 vcc, 0, ' + ('v1' if cfg.allw else 'v0'), 's_and_saveexec_b64 s[58:59], vcc', 's_cbranch_execz L_exit2']
        for k in range(16):
            L += [f'v_mov_b32 v42, s{sST+2*k}', f'v_mov_b32 v43, s{sST+2*k+1}', f'buffer_store_dwordx2 v[42:43], v40, {srd(SWS)}, 0 offen offset:{8*k}', 's_nop 1']
        L += ['L_exit2:', 's_endpgm']
    L += ['.p2align 4', 'L_code_end:']
    L += ['.section .rodata,"a"'] + kd(NAME + '_kernel', 512, 256)
    if cfg.nomfma: L = [l for l in L if not l.startswith('v_mfma')]
    txt = '\n'.join(l if (l.startswith(';') or l.startswith('.') or l.endswith(':') or l.startswith('  ')) else '    ' + l for l in L) + '\n'
    open(fname, 'w').write(txt)

if __name__ == '__main__':
    out = sys.argv[1] if len(sys.argv) > 1 else 'cdna_kernels/' + NAME + '.s'
    for a in sys.argv[2:]:
        k, v = a.split('=')
        assert hasattr(cfg, k), k
        val = {'True': True, 'False': False}.get(v, int(v) if v.isdigit() else v)
        setattr(cfg, k, val.replace('+', ' ') if isinstance(val, str) else val)
    build(out)
```

```python
import sys, struct
NAME = 'concat_heads__gqa_block_cached__mha_block_cached__near_ridge'

class Cfg:
    stamps = False
    kvpol = 'nt'
    wpol = ''
    rot = True
    warm = 1
    earlyK = True
    noA = False
    noB = False
    nomfma = False
    ramp = 2
    estore = True
    sleep = 1
    pk = True
    codepf = 1
    allw = False
    pvn = '1111101011111111'
    sn = '22112222'
    pvnA = 'x0111222111111111'
    snA = 'x00002221'
    expW = 1
    outpol = ''
    sync = 2
    parkO = 0
    pfK = 10
    pfpol = ''
    stA = False
    rampB = 4
    tailB = '111011'
    snB = '22122222'
    stB = False
    pro = 1
    tlb = False
    defer = False
    parkA = 0
    endp = '3110'
    fsp = 6
    noq = 0
    ql = 6
    pvn1 = '1111101011111111'
    sn2 = '22222222'
    xh = 0
    safe = True
    est = 12
    pfV = 0
    pfsel = 1
    pfw = 4
    stag = 0
    otl = '111011'
    b2 = False
    qn = '11122211011011'
    gq = 2
    sn1 = '22112222'
    half = True
    hv = 0
    hvpol = ''
    hvat = 15
    hv2 = 0
    hv2n = 6
    hvs = 0
    hb = 10
    endA = True
    pollpol = 'sc1'
    rdpol = 'sc1'
    stpol = 'sc1'
    jit = 0
    w3 = True
    word = '0123'
    fastq = True
    parkB = 0
    swap = True
    xb = 4
    gA = 1
    trace = False
    tailp = '110101'
    wl = 2
cfg = Cfg()

NQ = 6; QP = 4224; LEAD = 4
XB = 0; STAT = 49152; RING = 51200; RSZ = NQ * QP
LDS_TOTAL = RING + 4 * RSZ
PART = 43008
FLAGS = 384 * PART
SX, SW, SK, SV, SWO, SWS = 4, 8, 12, 16, 20, 24
sJ, sB, sW, sRS, sLC, sY, sPK, sPV, sT0, sT1, sT2, sU = range(28, 40)
sC = 40
sXC = 42
sFL, sPART, sXM, sBR = 46, 47, 48, 49
sTab = 50
sST = 64
SPF = 96
sRQ, sRO = 22, 23
sP1 = sY
SOUT = SV; SDBG = SX; sDO = sXM
vV, vWA, vWB, vOA, vK = 2, 6, 10, 14, 18
vX = 19
vTB = 22
vKB, vLin, vQW, vStW, vStR, vPW, vF6 = 26, 27, 28, 29, 30, 31, 32
vOW = 33
vTmp = 35
vM = 36
vSR = 48
vPF = 56
vXR = 60
vOld = 62; vZ = 63; vC1 = 19; vRdy = 20
vS = 64; vOUT = 160
aO = 96; aFR = 192; aONE = 248
M = lambda t: vM + 2 * t

def srd(n): return f's[{n}:{n+3}]'
def vr(b, n=4): return f'v[{b}:{b+n-1}]'
def ar(b, n=4): return f'a[{b}:{b+n-1}]'
MF = 'v_mfma_f32_16x16x32_bf16'

class Gen:
    def __init__(s, lab0):
        s.L = []; s.q = []; s.nlab = lab0
        s.stream = []
        s.pseq = 0; s.cseq = 0; s.freed = 0; s.owner = [-1] * NQ; s.tr = False; s.skipB = False; s.cold = []; s.b2 = False; s.done = set()
    def plan(s, kinds, start, i0=0):
        for i, k in enumerate(kinds): s.stream.append((k, (start + i) % NQ, i0 + i))
    def E(s, t):
        s.L.append(t)
        if t == 's_waitcnt lgkmcnt(0)': s.freed = s.cseq
        if t == 's_waitcnt vmcnt(0) ': s.done |= set(s.q); s.q = []
    def vm(s, t, tag):
        s.L.append(t); s.q.append(tag)
    def need(s, tag):
        if tag not in s.q: return None
        idx = max(i for i, t in enumerate(s.q) if t == tag)
        n = len(s.q) - 1 - idx
        assert n <= 63, n
        return f's_waitcnt vmcnt({n})'
    def lab(s, p):
        s.nlab += 1; return f'L_{p}{s.nlab}'
    def tr_start(s):
        if cfg.trace and s.tr:
            s.L += ['s_mov_b32 m0, s100', 's_nop 0', 'v_writelane_b32 v42, s96, m0', 'v_writelane_b32 v43, s98, m0', 's_add_u32 s100, s100, 1', 's_memrealtime s[96:97]']
    def stamp(s, k):
        if cfg.stamps: s.E(f's_memrealtime s[{sST+2*k}:{sST+2*k+1}]')
    def capture(s, f, lab0=None):
        keep = s.L; s.L = []
        if lab0 is not None: s.nlab = lab0
        f(); t = s.L; s.L = keep
        return t
    def rolled(s, n, body, cnt=sLC):
        l0 = s.nlab
        texts = [s.capture(body, l0) for _ in range(n)]
        for t in texts[1:]:
            assert t == texts[0], 'loop iterations differ:\n' + '\n'.join(f'{a} | {b}' for a, b in zip(texts[0], t) if a != b)
        lb = s.lab('loop')
        s.L += [f's_mov_b32 s{cnt}, {n}', f'{lb}:'] + texts[0] + [f's_sub_u32 s{cnt}, s{cnt}, 1', f's_cmp_lg_u32 s{cnt}, 0', f's_cbranch_scc1 {lb}']
    def emit_item(s, it):
        if isinstance(it, str): s.E(it)
        elif it[0] == 'vm':
            if ' m0,' in s.L[-1]: s.L.append('s_nop 0')
            s.vm(it[1], it[2])
        elif it[0] == 'need':
            w = s.need(it[1])
            assert w is not None or it[1] in s.done, it
            if w: s.E(w)
            if cfg.trace and s.tr: s.E('s_memrealtime s[98:99]')
    def emit_groups(s, G):
        for g in G:
            for it in g: s.emit_item(it)
    def interleave(s, mf, groups, fill=None, fstart=0):
        n = len(mf); g = len(groups)
        pos = {}
        for k in range(g):
            pos.setdefault(min(n - 1, (k * n) // max(g, 1)), []).append(k)
        fill = list(fill or []); nf = len(fill); done = 0
        for i, m in enumerate(mf):
            s.E(m)
            for k in pos.get(i, []):
                for it in groups[k]: s.emit_item(it)
            if i >= fstart:
                upto = (nf * (i - fstart + 1)) // (n - fstart)
                while done < upto or (done < nf and fill[done].startswith('s_cselect')):
                    s.L.append(fill[done])
                    if fill[done].startswith('buffer_'): s.q.append('misc')
                    done += 1
    @staticmethod
    def split(lst, n):
        cuts = [(len(lst) * i) // n for i in range(n + 1)]
        for k in range(1, n):
            while cuts[k] < len(lst) and lst[cuts[k]].startswith('s_cselect'): cuts[k] += 1
        return [lst[cuts[i]:max(cuts[i], cuts[i+1])] for i in range(n)]
    def gap(s, f, n, lo=0.0, hi=1.0):
        G = []
        for _ in range(n): G += s.prod()
        t = s.capture(f)
        pts = [i for i, x in enumerate(t) if (x.startswith('v_') or x.startswith('ds_')) and i > 0 and not t[i-1].startswith('s_cmp')]
        pos = {}
        for k in range(len(G)):
            fr = lo + (hi - lo) * (k + 0.5) / len(G)
            pos.setdefault(pts[min(len(pts) - 1, int(fr * len(pts)))], []).append(k)
        for i, x in enumerate(t):
            for k in pos.get(i, []):
                for it in G[k]: s.emit_item(it)
            s.L.append(x)

    def prod(s):
        kind, slot, idx = s.stream[s.pseq]
        assert s.owner[slot] < s.freed, (s.pseq, slot, s.owner[slot], s.freed)
        s.owner[slot] = s.pseq
        tag = ('q', s.pseq); s.pseq += 1
        if kind == 'WB' and s.skipB: return []
        G = [[f's_add_u32 m0, s{sRS}, {slot*QP}']]
        if kind == 'K':
            for p in range(4):
                G.append([('vm', f'buffer_load_dwordx4 v{vK}, {srd(SK)}, s{sPK} offen offset:{p*1024} {cfg.kvpol} lds', tag)])
                if p < 3: G[-1].append(f's_add_u32 m0, s{sRS}, {slot*QP + (p+1)*32}')
            G[-1].append(f's_add_u32 s{sPK}, s{sPK}, {0x4000 + (15 << 18 if s.b2 and idx == 15 else 0)}')
        else:
            vo, sr, so, pol = {'V': (vV, SV, sPV, cfg.kvpol), 'WA': (vWA, SW, sTab + idx, cfg.wpol), 'WB': (vWB, SW, sTab + idx - 8, cfg.wpol)}[kind]
            for p in range(4):
                G.append([('vm', f'buffer_load_dwordx4 v{vo+p}, {srd(sr)}, s{so} offen offset:{p*1024} {pol} lds', tag)])
            if kind == 'V': G[-1].append(f's_add_u32 s{sPV}, s{sPV}, {0x4000 + (15 << 18 if s.b2 and idx == 15 else 0)}')
        return G
    def x_loads(s, ms=range(4)):
        g = []
        for m in ms:
            for t in range(3):
                g += [f's_add_u32 m0, s{sXM}, {XB + (12*m + 2*t)*1024}', 's_nop 0',
                      f'buffer_load_dwordx4 v{vX+t}, {srd(SX)}, s{sXC+m} offen {cfg.wpol} lds']
        return g
    def table(s, lo, hi, n, rot, step, base):
        o = []
        if lo == 0:
            o += base + [f's_add_u32 s{sT2}, s{sT1}, {n*step}', f's_mul_i32 s{sT0}, s{rot[0]}, {rot[1]*step}', f's_add_u32 s{sTab}, s{sT0}, s{sT1}']
            lo = 1
        for k in range(lo, hi):
            o += [f's_add_u32 s{sT0}, s{sTab+k-1}, {step}', f's_cmp_ge_u32 s{sT0}, s{sT2}', f's_cselect_b32 s{sTab+k}, s{sT1}, s{sT0}']
        return o
    def wq_table(s, lo, hi): return s.table(lo, hi, 14, (sRQ, 2), 0x40000, [f's_lshl_b32 s{sT1}, s{sJ}, {9 if s.b2 else 10}'])
    def wq_head(s): return [f'v_add_u32 v{vWA+p}, 512, v{vWA+p}' for p in range(4)]
    def wo_head(s): return [f'v_add_u32 v{vWA+p}, {256*896}, v{vWA+p}' for p in range(8)]
    def w_to_wo(s):
        o = [f's_mov_b32 s{SW}, s{SWO}', f's_mov_b32 s{SW+1}, s{SWO+1}']
        o += s.table(0, 8, 8, (sRO, 1), 28672, [f's_mul_i32 s{sT1}, s{sJ}, {(256 if s.b2 else 512)*896}'])
        o += [f'v_mov_b32 v{vWA+p}, v{vOA+p}' for p in range(4)]
        return o

    def tg_bufs(s, T, par, ylds, base):
        a = base + par * (16 + (4 * T if ylds else 0))
        return a, a + 16
    def tg_fetch(s, T, st, ymode, base, bar=False, dst=None):
        ylds = ymode is not None
        a, y = s.tg_bufs(T, st & 1, ylds, base)
        if dst is not None: a = dst
        kind, slot, idx = s.stream[s.cseq]
        assert kind != 'K'
        tag = ('q', s.cseq); s.cseq += 1
        if kind == 'WB' and s.skipB: return []
        g0 = [('need', tag)] + (['s_barrier'] if bar else [])
        o = slot * QP
        rd = [[f'ds_read_b64_tr_b16 {ar(a+4*d,2)}, v{vTB+d} offset:{o}', f'ds_read_b64_tr_b16 {ar(a+4*d+2,2)}, v{vTB+d} offset:{o+2048}'] for d in range(4)]
        if ymode == 'x': yr = [f'ds_read_b128 {ar(y+4*t)}, v{vXR+(st&1)} offset:{XB + ((st%14)>>1)*6144 + t*2048}' for t in range(T)]
        elif ymode == 'p': yr = [f'ds_read_b128 {ar(y+4*t)}, v{vLin} offset:{XB + ((st*T*1024) % 49152) + t*1024}' for t in range(T)]
        G = [g0 + rd[0]]
        if ylds:
            h = (T + 1) // 2
            G += [yr[:h], rd[1], yr[h:], rd[2], rd[3]]
        else:
            G += [rd[1], rd[2], rd[3]]
        return G
    def tg_step(s, T, st, acc, pref, nprod, ymode, ystat=None, lacc=None, base=aFR, extra=None, c0=False, fill=None, head=None, bar=False, src=None, nomf=False, dual=None):
        ylds = ymode is not None
        a, y = s.tg_bufs(T, st & 1, ylds, base)
        if src is not None: a = src
        if not ylds: y = ystat
        s.E('s_waitcnt lgkmcnt(0)'); s.tr_start()
        for x in (head or []): s.E(x)
        mf = []
        for d in range(4):
            for t in range(T):
                c = vr(acc + (d * T + t) * 4)
                mf.append(f'{MF} {c}, {ar(a+4*d)}, {ar(y+4*t)}, {0 if c0 else c}')
        if dual:
            for d in range(4):
                for t in range(3):
                    c = vr(dual[0] + (d * 3 + t) * 4)
                    mf.append(f'{MF} {c}, {ar(a+4*d)}, {ar(dual[1]+4*t)}, {0 if c0 else c}')
        if lacc is not None:
            for t in range(T):
                c = vr(lacc + 4 * t)
                mf.append(f'{MF} {c}, {ar(aONE)}, {ar(y+4*t)}, {0 if c0 else c}')
        if cfg.noq and ymode == 'x': mf = [(m if cfg.noq == 2 and i % 2 else 's_nop 3') for i, m in enumerate(mf)]
        if nomf: mf = ['s_nop 7' if nomf == 1 else 's_nop 0']
        F = s.tg_fetch(T, st + 1, ymode, base, bar) if pref else []
        P = [extra] if extra else []
        for _ in range(nprod): P += s.prod()
        if lacc is not None: G = P + F
        elif F and P and not extra: G = F[:-1] + [F[-1] + P[0]] + P[1:]
        else: G = F + P
        s.interleave(mf, G, fill)
    def tg_phase(s, T, acc, nprods, ymode, lacc=None, base=aFR, c0=True, st0=0, first=True, last=True, bar=False, extra=None, heads=None, bars=(), fills=None, z=False, dual=None):
        if first: s.emit_groups(s.tg_fetch(T, st0, ymode, base, bar))
        n = len(nprods)
        for i, np_ in enumerate(nprods):
            s.tg_step(T, st0 + i, acc, not (last and i == n - 1), np_, ymode, None, lacc, base,
                      extra=(extra or {}).get(st0 + i), c0=((c0 and first or z) and i == 0), head=(heads or {}).get(st0 + i), bar=(st0 + i + 1) in bars, fill=(fills or {}).get(st0 + i), dual=(dual(st0 + i) if dual else None))
    def zero(s, base, n):
        for r in range(base, base + n): s.E(f'v_mov_b32 v{r}, 0')

    def k_fetch(s, dst):
        k0, slot, _ = s.stream[s.cseq]; k1, slot1, _ = s.stream[s.cseq + 1]
        assert k0 == 'K' and k1 == 'K' and slot1 == slot + 1
        s.cseq += 2
        tag = ('q', s.cseq - 1)
        rd = [f'ds_read_b128 {dst(k)}, v{vKB} offset:{slot*QP + k*64}' for k in range(8)]
        return [[('need', tag)] + rd[0:2], rd[2:4], rd[4:6], rd[6:8]]
    def s_phase(s, T, nprods, parked=0, hook=None, qb=0, fills=None, heads=None):
        buf = lambda tau: ((lambda k: vr(vOUT + tau * 32 + 4 * k)) if tau < parked else (lambda k: ar(aFR + (tau & 1) * 32 + 4 * k)))
        if not parked: s.emit_groups(s.k_fetch(buf(0)))
        for tau in range(8):
            if tau == 0 or tau >= parked: s.E('s_waitcnt lgkmcnt(0)'); s.tr_start()
            for x in (heads or {}).get(tau, []): s.E(x)
            mf = []
            for k in range(8):
                for t in range(T):
                    c = vr(vS + (tau * T + t) * 4)
                    qf = qb + ((t // 3) * 24 + k * 3 + (t % 3)) * 4
                    mf.append(f'{MF} {c}, {buf(tau)(k)}, {ar(qf)}, {c if k else 0}')
            F = s.k_fetch(buf(tau + 1)) if (tau < 7 and tau + 1 >= parked) else []
            P = []
            h = hook(tau) if hook else None
            if h: P += [h]
            for _ in range(nprods[tau]): P += s.prod()
            G = P + F
            while len(G) < 4: G = [[]] + G
            if tau > 0: G[-1] = G[-1] + s.tile_max(T, tau - 1)
            s.interleave(mf, G, (fills or {}).get(tau), 8 if tau == 0 else 0)
    def tile_max(s, T, tau):
        S = lambda t, r: vS + (tau * T + t) * 4 + r
        if tau == 0:
            return [f'v_max3_f32 v{M(t)}, v{S(t,0)}, v{S(t,1)}, v{S(t,2)}' for t in range(T)] + [f'v_max_f32 v{M(t)}, v{M(t)}, v{S(t,3)}' for t in range(T)]
        return [f'v_max3_f32 v{M(t)}, v{M(t)}, v{S(t,0)}, v{S(t,1)}' for t in range(T)] + [f'v_max3_f32 v{M(t)}, v{M(t)}, v{S(t,2)}, v{S(t,3)}' for t in range(T)]
    def sm_a(s, T):
        E = s.E
        for x in s.tile_max(T, 7): E(x)
        for op in ('v_permlane32_swap_b32', 'v_permlane16_swap_b32'):
            for t in range(T): E(f'v_mov_b32 v{M(t)+1}, v{M(t)}')
            E('s_nop 1')
            for t in range(T): E(f'{op} v{M(t)}, v{M(t)+1}')
            E('s_nop 1')
            for t in range(T): E(f'v_max_f32 v{M(t)}, v{M(t)}, v{M(t)+1}')
        for t in range(T): E(f'ds_write_b32 v{vStW}, v{M(t)} offset:{t*256}')
        E(f'v_mov_b32 v{vTmp}, 0x3f803f80')
        for r in range(4): E(f'v_accvgpr_write_b32 a{aONE+r}, v{vTmp}')
    def sm_rd(s, t0):
        for t in range(t0, t0 + 3): s.E(f'ds_read_b128 {vr(vSR+4*(t-t0))}, v{vStR} offset:{t*256}')
    def sm_b(s, t0):
        E = s.E
        for t in range(t0, t0 + 3):
            b = vSR + 4 * (t - t0); E(f'v_max3_f32 v{M(t)}, v{b}, v{b+1}, v{b+2}')
        for t in range(t0, t0 + 3):
            b = vSR + 4 * (t - t0); E(f'v_max_f32 v{M(t)}, v{M(t)}, v{b+3}')
        for t in range(t0, t0 + 3): E(f'v_mul_f32 v{M(t)}, s{sC}, v{M(t)}')
    def softmax(s, T):
        E = s.E
        E('s_nop 7'); E('s_nop 1')
        s.sm_a(T)
        E('s_waitcnt lgkmcnt(0)'); E('s_barrier')
        for t0 in range(0, T, 3):
            s.sm_rd(t0)
            E('s_waitcnt lgkmcnt(0)')
            s.sm_b(t0)
    def p_write(s, T, tau, t, reg):
        return f'ds_write_b64 v{vPW}, {vr(reg,2)} offset:{XB + 2*tau*T*1024 + t*1024}'
    def exp_pack(s, T, tau, dst=None, wtau=None):
        E = s.E
        for t0 in range(0, T, 3):
            regs = [(t, vS + (tau * T + t) * 4) for t in range(t0, t0 + 3)]
            for t, b in regs:
                if cfg.pk:
                    for r in (0, 2): E(f'v_pk_fma_f32 {vr(b+r,2)}, {vr(b+r,2)}, s[{sC}:{sC+1}], {vr(M(t),2)} op_sel_hi:[1,0,0] neg_lo:[0,0,1] neg_hi:[0,0,1]')
                else:
                    for r in range(4): E(f'v_fma_f32 v{b+r}, v{b+r}, s{sC}, -v{M(t)}')
            for t, b in regs:
                for r in range(4): E(f'v_exp_f32 v{b+r}, v{b+r}')
            E('s_nop 0')
            for t, b in regs:
                d = dst(t) if dst else b
                E(f'v_cvt_pk_bf16_f32 v{d}, v{b}, v{b+1}'); E(f'v_cvt_pk_bf16_f32 v{d+1}, v{b+2}, v{b+3}')
                if wtau is not None: E(s.p_write(T, wtau, t, d))
    def q_pack(s, acc, dst, nops=True):
        if nops: s.E('s_nop 7'); s.E('s_nop 1')
        for d in range(4):
            for t in range(3):
                a = acc + (d * 3 + t) * 4; o = dst + (d * 3 + t) * 2
                s.E(f'v_cvt_pk_bf16_f32 v{o}, v{a}, v{a+1}'); s.E(f'v_cvt_pk_bf16_f32 v{o+1}, v{a+2}, v{a+3}')
    def q_write(s, src, hd):
        for d in range(4):
            for t in range(3):
                o = src + (d * 3 + t) * 2
                s.E(f'ds_write_b64 v{vQW}, {vr(o,2)} offset:{XB + hd*24576 + (d>>1)*3072 + t*1024 + (d&1)*512}')
    def frag_read(s, n, off=0, dst=0, addr=vLin):
        for f in range(n): s.E(f'ds_read_b128 {ar(dst+4*f)}, v{addr} offset:{XB + off + f*1024}')
    def o_pack(s, T, acc, lacc, write_now, M=M, nops=True):
        E = s.E
        if nops: E('s_nop 7'); E('s_nop 1')
        for t in range(T): E(f'v_rcp_f32 v{M(t)}, v{lacc+4*t}')
        E('s_nop 0')
        W = []
        for kk in range(2):
            for t in range(T):
                a0 = acc + ((2 * kk) * T + t) * 4; a1 = acc + ((2 * kk + 1) * T + t) * 4
                for a in (a0, a1):
                    if cfg.pk:
                        for r in (0, 2): E(f'v_pk_mul_f32 {vr(a+r,2)}, {vr(a+r,2)}, {vr(M(t),2)} op_sel_hi:[1,0]')
                    else:
                        for r in range(4): E(f'v_mul_f32 v{a+r}, v{a+r}, v{M(t)}')
                E(f'v_cvt_pk_bf16_f32 v{a0}, v{a0}, v{a0+1}'); E(f'v_cvt_pk_bf16_f32 v{a0+1}, v{a0+2}, v{a0+3}')
                E(f'v_cvt_pk_bf16_f32 v{a0+2}, v{a1}, v{a1+1}'); E(f'v_cvt_pk_bf16_f32 v{a0+3}, v{a1+2}, v{a1+3}')
                w = f'ds_write_b128 v{vOW+kk}, {vr(a0)} offset:{XB + (t//3)*24576 + (t%3)*1024}'
                if write_now: E(w)
                else: W.append(w)
        return W
    def store_slice(s, sg):
        o = []
        for bb in range(2 if s.b2 else 1):
            base = ((vOUT if sg else vS) + bb * 48) if s.b2 else vOUT + sg * 48
            for u in range(2):
                o.append(f's_add_u32 s{sT0}, s{sP1 if sg else sPART}, {u*3072 + bb*16*PART}')
                for t in range(3):
                    a0 = base + (2 * u * 3 + t) * 4; a1 = a0 + 12
                    o += [f'v_cvt_pk_bf16_f32 v{a0}, v{a0}, v{a0+1}', f'v_cvt_pk_bf16_f32 v{a0+1}, v{a0+2}, v{a0+3}',
                          f'v_cvt_pk_bf16_f32 v{a0+2}, v{a1}, v{a1+1}', f'v_cvt_pk_bf16_f32 v{a0+3}, v{a1+2}, v{a1+3}',
                          f'buffer_store_dwordx4 {vr(a0)}, v{vF6}, {srd(SWS)}, s{sT0} offen offset:{t*1024} {cfg.stpol}']
        return o
    def o_proj(s, *a, **k):
        if not cfg.w3: return s.o_proj1(*a, **k)
        st0 = (list(s.q), s.pseq, s.cseq, s.freed, list(s.owner))
        s.skipB = True
        t3 = s.capture(lambda: s.o_proj1(*a, **k))
        q3 = list(s.q)
        s.skipB = False
        s.q, s.pseq, s.cseq, s.freed, s.owner = st0
        tm = s.capture(lambda: s.o_proj1(*a, **k))
        for tag in set(t for t in s.q if t != 'misc' and t[1] >= s.cseq):
            d = lambda q: len(q) - 1 - max(i for i, t in enumerate(q) if t == tag)
            assert d(q3) >= d(s.q), (tag, d(q3), d(s.q))
        l3, lj = s.lab('w3_'), s.lab('wj_')
        s.L += [f's_cmp_eq_u32 s{sW}, 3', f's_cbranch_scc1 {l3}'] + tm + [f'{lj}:']
        s.cold += [f'{l3}:'] + t3 + [f's_branch {lj}']
    def o_proj1(s, nprods, yb, c0=False, extra=None, fills=None, heads=None, primed=False, parked=0, dual=False):
        if not primed and not parked: s.emit_groups(s.tg_fetch(3, 0, None, aFR))
        for st in range(16):
            ab = (vOUT if st >> 3 else vS) if dual else vOUT + (st >> 3) * 48
            s.tg_step(3, st, ab, st < 15 and st + 1 >= parked, nprods[st], None, yb + (st & 7) * 12, None, aFR, (extra or {}).get(st),
                      c0=(c0 and st in (0, 8)), fill=(fills or {}).get(st), head=(heads or {}).get(st), src=(aO + 16 * st if st < parked else None),
                      nomf=((1 if st == 8 else 2) if (s.skipB and st >= 8) else 0), dual=((ab + 48, aO + (st & 7) * 12) if dual else None))
    def ready_add(s):
        return [] if cfg.sync == 1 else [f'buffer_atomic_add v{vC1}, v{vZ}, {srd(SDBG)}, s{sDO} offen sc1']
    def ready_load(s):
        return [] if cfg.sync == 1 else [f'buffer_load_dword v{vRdy}, v{vZ}, {srd(SDBG)}, s{sDO} offen sc1']
    def finish(s):
        E = s.E
        E('s_nop 7'); E('s_nop 1')
        rl = 'L_reduceB' if s.b2 else 'L_reduce'
        if cfg.w3: E(f's_cmp_eq_u32 s{sW}, 3'); E(f's_cbranch_scc1 {rl}')
        for x in s.store_slice(1): E(x)
        E(f's_branch {rl}')
        s.L += s.cold

    def setup_ids(s, br):
        E = s.E
        E('v_and_b32 v1, 63, v0'); E('v_lshrrev_b32 v40, 6, v0')
        E(f's_and_b32 s{sJ}, s2, 7'); E(f's_lshr_b32 s{sB}, s2, 4')
        if s.b2:
            E(f's_and_b32 s{sT0}, s{sB}, 1'); E(f's_lshl_b32 s{sJ}, s{sJ}, 1'); E(f's_add_u32 s{sJ}, s{sJ}, s{sT0}'); E(f's_and_b32 s{sB}, s{sB}, 14')
        E(f'v_readfirstlane_b32 s{sW}, v40')
        E('v_lshrrev_b32 v43, 3, v1')
        E('v_and_b32 v47, 7, v1')
        if cfg.rot:
            E(f's_mul_i32 s{sRQ}, s{sB}, 7'); E(f's_lshr_b32 s{sRQ}, s{sRQ}, 4'); E(f's_lshr_b32 s{sRO}, s{sB}, 1')
        else:
            E(f's_mov_b32 s{sRQ}, 0'); E(f's_mov_b32 s{sRO}, 0')
        E(f's_mul_i32 s{sRS}, s{sW}, {RSZ}'); E(f's_add_u32 s{sRS}, s{sRS}, {RING}')
    def setup_x(s):
        E = s.E
        E('v_and_b32 v45, 1, v40'); E('v_lshl_add_u32 v46, v45, 3, v43'); E(f'v_mul_u32_u24 v{vX}, 896, v46')
        E('v_lshrrev_b32 v46, 1, v46'); E('v_xor_b32 v46, v46, v47'); E(f'v_lshl_add_u32 v{vX}, v46, 4, v{vX}')
        E(f'v_add_u32 v{vX+1}, 14336, v{vX}'); E(f'v_add_u32 v{vX+2}, 28672, v{vX}')
        E(f's_lshr_b32 s{sT0}, s{sW}, 1'); E(f's_mul_i32 s{sXM}, s{sT0}, 6'); E(f's_and_b32 s{sT1}, s{sW}, 1'); E(f's_add_u32 s{sXM}, s{sXM}, s{sT1}'); E(f's_lshl_b32 s{sXM}, s{sXM}, 10')
        E(f's_add_u32 s{sT1}, s{sT0}, s{sRQ}'); E(f's_mul_i32 s{sT2}, s{sB}, 43008')
        for m in range(4):
            E(f's_add_u32 s{sXC+m}, s{sT1}, {2*m}'); E(f's_cmp_ge_u32 s{sXC+m}, 7'); E(f's_cselect_b32 s{sLC}, 7, 0'); E(f's_sub_u32 s{sXC+m}, s{sXC+m}, s{sLC}')
            E(f's_lshl_b32 s{sXC+m}, s{sXC+m}, 7'); E(f's_add_u32 s{sXC+m}, s{sXC+m}, s{sT2}')
        E(f's_cmp_eq_u32 s{sT0}, 1'); E(f's_cselect_b32 s{sXC+3}, 0x40000000, s{sXC+3}')
    def setup_w(s):
        E = s.E
        E('v_and_b32 v45, 6, v43'); E('v_xor_b32 v44, v47, v45'); E('v_lshlrev_b32 v44, 4, v44')
        E('v_lshl_add_u32 v44, v40, 7, v44')
        E('v_lshrrev_b32 v45, 2, v43'); E('v_lshlrev_b32 v45, 3, v45'); E('v_and_b32 v46, 3, v43'); E('v_add_u32 v45, v45, v46')
        E(f'v_lshl_add_u32 v{vWA}, v45, 13, v44')
        for p in range(1, 4): E(f'v_add_u32 v{vWA+p}, {(16*(p&1)+4*(p>>1))*8192 - p*1024}, v{vWA}')
    def setup_k(s, br):
        E = s.E
        E('v_lshrrev_b32 v45, 5, v1'); E('v_and_b32 v46, 31, v1'); E('v_xor_b32 v46, v46, v45'); E('v_lshlrev_b32 v46, 4, v46')
        E('v_lshl_add_u32 v46, v45, 9, v46'); E(f'v_lshl_add_u32 v{vK}, v40, 12, v46')
        E(f's_lshl_b32 s{sPK}, s{sB}, {4 if s.b2 else 3}'); E(f's_add_u32 s{sPK}, s{sPK}, s{sJ}')
        E(f's_add_u32 s{sPART}, s{sPK}, {128*br}'); E(f's_mul_i32 s{sPART}, s{sPART}, {PART}')
        E(f's_lshl_b32 s{sPK}, s{sPK}, {19 if br and not s.b2 else 18}'); E(f's_mov_b32 s{sPV}, s{sPK}')
        E(f'v_lshlrev_b32 v{vLin}, 4, v1')
    def setup_rd(s, k=True):
        E = s.E
        E('v_and_b32 v41, 15, v1')
        E('v_lshrrev_b32 v42, 4, v1')
        E('v_lshrrev_b32 v45, 2, v41')
        E('v_and_b32 v46, 1, v42'); E('v_lshl_add_u32 v45, v46, 2, v45')
        E('v_lshrrev_b32 v46, 1, v42'); E('v_lshlrev_b32 v46, 10, v46'); E('v_lshl_add_u32 v46, v45, 7, v46')
        E('v_and_b32 v47, 3, v41'); E('v_lshl_add_u32 v46, v47, 3, v46'); E(f'v_add_u32 v46, s{sRS}, v46')
        E('v_lshrrev_b32 v45, 1, v45')
        for d in range(4):
            E(f'v_xor_b32 v47, {d}, v45'); E(f'v_lshl_add_u32 v{vTB+d}, v47, 5, v46')
        E('v_lshrrev_b32 v45, 3, v41'); E('v_lshlrev_b32 v45, 10, v45'); E('v_and_b32 v46, 7, v41'); E('v_lshl_add_u32 v45, v46, 7, v45')
        E('v_lshrrev_b32 v46, 1, v41'); E('v_xor_b32 v46, v46, v42'); E(f'v_lshl_add_u32 v{vXR}, v46, 4, v45'); E(f'v_xor_b32 v{vXR+1}, 64, v{vXR}')
        if k: s.setup_kb()
    def setup_kb(s):
        E = s.E
        E('v_lshrrev_b32 v45, 1, v41'); E(f'v_mul_u32_u24 v{vKB}, 1056, v45'); E('v_and_b32 v45, 1, v41')
        E(f'v_lshl_add_u32 v{vKB}, v45, 9, v{vKB}'); E('v_xor_b32 v45, v45, v42'); E(f'v_lshl_add_u32 v{vKB}, v45, 4, v{vKB}')
        E(f'v_add_u32 v{vKB}, s{sRS}, v{vKB}')
    def setup_late(s, T, br):
        E = s.E
        E(f'v_lshl_add_u32 v{vV}, v43, 9, v44')
        for p in range(1, 4): E(f'v_add_u32 v{vV+p}, {p*3072}, v{vV}')
        E(f'v_mul_u32_u24 v{vOA}, 896, v43'); E(f'v_add_u32 v{vOA}, v{vOA}, v44')
        for p in range(1, 4): E(f'v_add_u32 v{vOA+p}, {p*(8*896-1024)}, v{vOA}')
        E(f's_add_u32 s{sP1}, s{sPART}, 24576')
        E(f's_cmp_eq_u32 s{sW}, 3'); E(f's_cselect_b32 s{sLC}, 0x40000000, 512'); E(f's_cselect_b32 s{sP1}, 0x40000000, s{sP1}')
        E(f's_mov_b32 s{sU}, 0')
        if cfg.swap:
            if cfg.w3:
                E(f's_cselect_b32 s{sC}, 0, s{sB}'); E(f's_bitcmp1_b32 s{sC}, {1 if s.b2 else 0}')
            else:
                E(f's_bitcmp1_b32 s{sB}, 0')
            E(f's_cselect_b32 s{sU}, s{sLC}, 0'); E(f's_cselect_b32 s{sLC}, 0, s{sLC}')
            E(f's_cselect_b32 s{sC}, s{sP1}, s{sPART}'); E(f's_cselect_b32 s{sP1}, s{sPART}, s{sP1}'); E(f's_mov_b32 s{sPART}, s{sC}')
        for p in range(4): E(f'v_add_u32 v{vWB+p}, s{sLC}, v{vOA+p}')
        for p in range(4): E(f'v_add_u32 v{vOA+p}, s{sU}, v{vOA+p}')
        E(f'v_mul_u32_u24 v45, 6144, v40'); E(f'v_add_u32 v{vF6}, v45, v{vLin}')
        E('v_lshrrev_b32 v46, 1, v42'); E('v_lshl_add_u32 v45, v46, 8, v45')
        E('v_lshl_add_u32 v45, v41, 4, v45'); E('v_and_b32 v47, 1, v42'); E(f'v_lshl_add_u32 v{vQW}, v47, 3, v45')
        E(f'v_mul_u32_u24 v45, {T*1024}, v46'); E('v_and_b32 v46, 1, v40'); E('v_lshl_add_u32 v46, v46, 1, v47')
        E('v_lshl_add_u32 v45, v46, 8, v45'); E('v_lshl_add_u32 v45, v41, 4, v45'); E('v_lshrrev_b32 v46, 1, v40'); E(f'v_lshl_add_u32 v{vPW}, v46, 3, v45')
        E(f'v_lshlrev_b32 v45, 4, v41'); E(f'v_add_u32 v{vStR}, {STAT}, v45'); E(f'v_lshl_add_u32 v{vStW}, v40, 2, v{vStR}')
        for kk in range(2):
            E(f's_lshl_b32 s{sLC}, s{sW}, 1'); E(f's_add_u32 s{sLC}, s{sLC}, {8+kk}'); E(f's_sub_u32 s{sLC}, s{sLC}, s{sRO}'); E(f's_and_b32 s{sLC}, s{sLC}, 7')
            E(f's_mul_i32 s{sLC}, s{sLC}, 3072'); E(f'v_add_u32 v{vOW+kk}, s{sLC}, v{vLin}')
        c = struct.unpack('<I', struct.pack('<f', 1.4426950408889634 / 16.0))[0]
        E(f's_mov_b32 s{sC}, {c:#x}'); E(f's_mov_b32 s{sC+1}, s{sC}'); E(f's_mov_b32 s{sBR}, {br}')
    def touch(s, br):
        E = s.E
        E(f's_lshl_b32 s{sFL}, s{sB}, 8'); E(f's_add_u32 s{sFL}, s{sFL}, {FLAGS + br*4096}')
        E(f'v_min_u32 v{vZ}, 1, v0'); E(f'v_lshlrev_b32 v{vZ}, 30, v{vZ}')
        E(f'buffer_load_dword v{vOld}, v{vZ}, {srd(SWS)}, s{sFL} offen sc1')
        if cfg.tlb:
            if br: E(f'buffer_load_dword v{vPF}, v{vZ}, {srd(SK)}, s{sPK} offen {cfg.kvpol}')
            E(f'buffer_load_dword v{vPF}, v{vZ}, {srd(SV)}, s{sPV} offen {cfg.kvpol}')
            E(f'buffer_load_dword v{vPF}, v{vZ}, {srd(SWS)}, s{sPART} offen sc1')
    def load_ptrs(s, br):
        E = s.E
        o = 40 * br
        E(f's_load_dwordx2 s[{SX}:{SX+1}], s[0:1], {o}')
        E(f's_load_dwordx2 s[{SW}:{SW+1}], s[0:1], {o+24}')
        E(f's_load_dwordx2 s[{SK}:{SK+1}], s[0:1], {o+8}')
        E(f's_load_dwordx2 s[{SV}:{SV+1}], s[0:1], {o+16}')
        E(f's_load_dwordx2 s[{SWO}:{SWO+1}], s[0:1], {o+32}')
        E(f's_load_dwordx2 s[{SWS}:{SWS+1}], s[0:1], 96')
        kv = 16 * (16 if br else 8) * 262144
        for r, n in ((SX, 16 * 43008), (SW, 448 * 8192), (SK, kv), (SV, kv), (SWS, FLAGS + 8192)):
            E(f's_mov_b32 s{r+2}, {n}'); E(f's_mov_b32 s{r+3}, 0x20000')
    def pf_loop(s, n):
        def body():
            for k in range(4):
                s.E(f'buffer_load_dwordx4 {vr(vPF)}, v{vLin}, {srd(SPF)}, s{sT2} offen')
                s.E(f's_add_u32 s{sT2}, s{sT2}, s{sT1}')
            s.E('s_waitcnt vmcnt(24)')
        s.rolled(n // 4, body)

F = NQ - LEAD
WQ = ['WA'] * 14; WO = ['WA'] * 8 + ['WB'] * 8
def WN(n, entry=LEAD, stay=False, nat=False):
    up = LEAD + cfg.wl - entry
    if stay: return [2] * up + [1] * (n - up)
    if nat: return [2] * up + [1] * (n - up - 6) + [int(c) for c in str(cfg.tailp).zfill(6)]
    return [2] * up + [1] * (n - up - cfg.wl - LEAD) + [0] * cfg.wl + [1] * LEAD
def ramp_np(n): return WN(n, cfg.ramp, nat=True)
pat = lambda p: [int(c) for c in str(p).lstrip('x')]

def es_fill(s):
    if cfg.safe: return dict(enumerate(Gen.split(s.store_slice(0), 16 - cfg.est), cfg.est))
    return dict(enumerate(Gen.split(s.store_slice(0), 6), 9))
def es_head():
    return {cfg.est: ['s_waitcnt vmcnt(0) ']} if cfg.safe else None
def q_both(s, started):
    E = s.E
    ql = cfg.ql
    s.tg_phase(3, vS, [2] * (ql - started) + [1] * (14 - ql + started), 'x', bar=True, extra={14 - ql: s.wq_head()})
    s.q_pack(vS, vS + 48)
    s.tg_phase(3, vS, [1] * (14 - ql) + (pat(str(cfg.tailp).zfill(6)) if ql == 6 else [2] * (4 - ql) + [1] * (2 * ql - 4)), 'x')
def q_misc(s):
    E = s.E
    E(f's_load_dwordx2 s[{SDBG}:{SDBG+1}], s[0:1], 88')
    for x in s.w_to_wo(): E(x)
    E(f's_lshl_b32 s{sT0}, s{sB}, 4'); E(f's_lshl_b32 s{sDO}, s{sBR}, 3'); E(f's_add_u32 s{sDO}, s{sDO}, s{sT0}'); E(f'v_mov_b32 v{vC1}, 1')
def q_exch(s):
    E = s.E
    q_misc(s)
    s.q_pack(vS, vS + 72)
    E('s_barrier')
    s.q_write(vS + 48, 0); s.q_write(vS + 72, 1)
    E('s_waitcnt lgkmcnt(0)'); E('s_barrier')
    E(f's_mov_b32 s{SDBG+2}, 256')

def path_B_text():
    s = Gen(1000); E = s.E
    pb = cfg.parkB; dfl = None
    for kinds, st in ((['K'] * (2 * pb), 0), (WQ, 2 * pb), (WQ, 2 * pb + 2), (['K'] * (16 - 2 * pb), 2 * pb + 4), (['V'] * 16, 2), (['K'] * 16, 0), (WO, 4)): s.plan(kinds, st)
    pk_ = cfg.parkO
    assert pk_ in (0, 6)
    if pk_: s.plan(WO[:6], 2); s.plan(['V'] * 16, 2); s.plan(WO[6:], 0, 6)
    else: s.plan(['V'] * 16, 2); s.plan(WO, 0)
    s.stamp(0)
    s.load_ptrs(1)
    if pb:
        s.setup_ids(1); s.setup_k(1)
        E('s_waitcnt lgkmcnt(0)')
        for _ in range(2): s.emit_groups(s.prod())
        s.touch(1); s.setup_x(); s.setup_w(); s.setup_rd(); s.setup_late(3, 1)
        for x in s.wq_table(0, 14): E(x)
        for _ in range(2 * pb - 2): s.emit_groups(s.prod())
        s.emit_groups([s.x_loads(range(cfg.xb))])
        if pb < 3:
            for _ in range(cfg.rampB): s.emit_groups(s.prod())
        for tau in range(pb):
            s.emit_groups(s.k_fetch(lambda k: vr(vOUT + tau * 32 + 4 * k)))
            if tau == 0 and pb == 3:
                E('s_waitcnt lgkmcnt(0)')
                for _ in range(cfg.rampB): s.emit_groups(s.prod())
        E('s_waitcnt lgkmcnt(0)')
    else:
        sb = (lambda k: s.stamp(k)) if cfg.stB else (lambda k: None)
        if cfg.pro == 0:
            s.setup_ids(1); s.setup_x(); s.setup_w()
            for x in s.wq_table(0, cfg.rampB): E(x)
            E('s_waitcnt lgkmcnt(0)')
            s.emit_groups([s.x_loads(range(cfg.xb))])
            for _ in range(cfg.rampB): s.emit_groups(s.prod())
            for x in s.wq_table(cfg.rampB, 14): E(x)
            s.setup_k(1); s.touch(1); s.setup_rd(); s.setup_late(3, 1)
        else:
            s.setup_ids(1); s.setup_x()
            sb(2)
            E('s_waitcnt lgkmcnt(0)')
            sb(3)
            s.emit_groups([s.x_loads(range(2) if cfg.xh else range(cfg.xb))])
            sb(4)
            s.setup_w()
            if cfg.defer:
                for x in s.wq_table(0, 8): E(x)
                for _ in range(2): s.emit_groups(s.prod())
                s.setup_rd(False)
                sb(5)
                for _ in range(cfg.rampB - 2): s.emit_groups(s.prod())
                def rest():
                    s.setup_k(1); s.touch(1); s.setup_kb(); s.setup_late(3, 1)
                dfl = {0: s.wq_table(8, 11), 1: s.wq_table(11, 14)}
                dfl.update(dict(enumerate(Gen.split(s.capture(rest), 11), 2)))
            else:
                for x in s.wq_table(0, 14): E(x)
                s.setup_k(1); s.touch(1); s.setup_rd(); s.setup_late(3, 1)
                sb(5)
                if cfg.xh: s.emit_groups([s.x_loads(range(2, 4))])
                for _ in range(cfg.rampB): s.emit_groups(s.prod())
        sb(6)
        if cfg.stB:
            st0_ = s.stamp
            s.stamp = lambda k: (None if 2 <= k <= 6 else st0_(k))
    if cfg.trace:
        s.tr = True; E('s_mov_b32 s100, 0'); E('s_memrealtime s[96:97]'); E('v_mov_b32 v42, 0'); E('v_mov_b32 v43, 0')
    if cfg.fastq:
        assert not pb and cfg.xb == 4
        cap = s.capture
        ql = cfg.ql
        s.tg_phase(3, vS, [2] * (ql - cfg.rampB) + [1] * (14 - ql + cfg.rampB), 'x', bar=True, extra={14 - ql: s.wq_head()}, last=False, fills=dfl)
        p1 = cap(lambda: s.q_pack(vS, vS + 48, False)); w1 = cap(lambda: s.q_write(vS + 48, 0)); r1 = cap(lambda: s.frag_read(24))
        fl = dict(enumerate(Gen.split(p1, 3), 15)); fl[22] = w1; fl.update(dict(enumerate(Gen.split(r1, 4), 24)))
        s.tg_phase(3, vOUT, [1] * (14 - ql) + (pat(cfg.tailB) if ql == 6 else [2] * (5 - ql) + [1] * (2 * ql - 5)), 'x', st0=14, first=False, z=True, fills=fl, heads={22: ['s_barrier'], 24: ['s_barrier']})
        s.stamp(1)
        p2 = cap(lambda: s.q_pack(vOUT, vOUT + 48, False)); w2 = cap(lambda: s.q_write(vOUT + 48, 1)); r2 = cap(lambda: s.frag_read(24, 24576, aO))
        fl = {0: p2, 1: w2, 2: cap(lambda: q_misc(s))}; fl.update(dict(enumerate(Gen.split(r2, 4), 3)))
        s.s_phase(3, pat(cfg.snB), fills=fl, heads={1: ['s_barrier'], 3: ['s_barrier', f's_mov_b32 s{SDBG+2}, 256']})
    else:
        q_both(s, cfg.rampB)
        s.stamp(1)
        def g0():
            q_exch(s); s.frag_read(24)
        q2 = s.capture(lambda: s.frag_read(24, 24576, aO))
        if pb:
            s.gap(g0, 1, 0.5, 1.0)
            sn = [1] + [0] * (pb - 1) + pat(cfg.sn)[:8 - pb]
        else:
            s.gap(g0, F); sn = pat(cfg.sn)
        s.s_phase(3, sn, parked=pb, fills=dict(enumerate(Gen.split(q2, 4), 2)))
    s.stamp(2)
    def g1():
        s.softmax(3)
        for tau in range(8): s.exp_pack(3, tau, wtau=tau)
        E('s_waitcnt lgkmcnt(0)'); E('s_barrier')
    s.gap(g1, NQ - (s.pseq - s.cseq), 0.1, 0.9)
    s.stamp(3)
    s.tg_phase(3, vOUT, pat(cfg.pvn1)[:12], 'p', lacc=vOUT + 48, heads={8: s.ready_add()}, last=False)
    def late():
        s.tg_phase(3, vOUT, pat(cfg.pvn1)[12:], 'p', lacc=vOUT + 48, st0=12, first=False, heads={12: ['s_barrier']})
        s.stamp(4)
        if cfg.trace: E('v_mov_b32 v44, v42'); E('v_mov_b32 v45, v43'); E('s_mov_b32 s100, 0')
        op = s.capture(lambda: s.o_pack(3, vOUT, vOUT + 48, True, M=lambda t: vSR + 2 * t, nops=False))
        of = s.capture(lambda: s.frag_read(24, 0, 0))
        fl = dict(enumerate(Gen.split(op, 2))); fl.update(dict(enumerate(Gen.split(of, 4), 3)))
        s.s_phase(3, pat(cfg.sn2), qb=aO, fills=fl, heads={3: ['s_barrier']})
        s.stamp(5)
        if cfg.expW:
            a_ = s.capture(lambda: s.sm_a(3)); r_ = s.capture(lambda: s.sm_rd(0)); b_ = s.capture(lambda: s.sm_b(0))
            exf = lambda: [s.exp_pack(3, tau, wtau=tau) for tau in range(8)]
            if cfg.expW == 2:
                fl = {1: a_, 2: r_, 3: b_}; fl.update(dict(enumerate(Gen.split(s.capture(exf), 12), 4))); hb = 2
            else:
                hb = cfg.hb; fl = dict(enumerate(Gen.split(a_, 4), 3)); fl.update({hb: r_, hb + 1: b_})
            if pk_:
                s.o_proj(WN(16, stay=True), 0, c0=True, fills=fl, heads={hb: ['s_barrier']}, extra={10: s.wo_head()})
                s.stamp(6)
                for k in range(6):
                    s.emit_groups(s.tg_fetch(3, 0, None, aFR, dst=aO + 16 * k))
                    if k in (1, 3):
                        E('s_waitcnt lgkmcnt(0)'); s.emit_groups(s.prod())
                E('s_waitcnt lgkmcnt(0)')
                s.gap(exf, 4, 0.0, 1.0)
            else:
                s.o_proj(WN(16, nat=True), 0, c0=True, fills=fl, heads={hb: ['s_barrier']})
                s.stamp(6)
                for x in s.wo_head(): E(x)
                if cfg.expW == 2:
                    for _ in range(F): s.emit_groups(s.prod())
                else:
                    s.gap(exf, F, 0.1, 0.9)
            E('s_waitcnt lgkmcnt(0)'); E('s_barrier')
        else:
            s.o_proj(WN(16, nat=True), 0, c0=True)
            s.stamp(6)
            for x in s.wo_head(): E(x)
            s.gap(g1, F, 0.1, 0.9)
    def early():
        s.tg_phase(3, vOUT, [3, 1, 1, 0], 'p', lacc=vOUT + 48, st0=12, first=False, heads={12: ['s_barrier']})
        s.stamp(4)
        s.emit_groups(s.tg_fetch(3, 0, None, aFR))
        s.o_pack(3, vOUT, vOUT + 48, True, nops=False)
        E('s_waitcnt lgkmcnt(0)'); E('s_barrier')
        of = s.capture(lambda: s.frag_read(24, 0, 0))
        for x in of[:6]: E(x)
        tl = pat(cfg.otl)
        s.o_proj([1, 1, 1, 2] + [1] * 6 + tl, 0, c0=True, fills=dict(enumerate(Gen.split(of[6:], 6))), primed=True, heads={10: ['s_barrier']})
        s.stamp(5)
        for x in s.wo_head(): E(x)
        sn = [2] * 8
        for k in range(sum(tl) - 4): sn[2 + k] = 1
        s.s_phase(3, sn, qb=aO)
        s.stamp(6)
        s.gap(g1, F, 0.1, 0.9)
    if not cfg.stag: late()
    else:
        z = (list(s.q), s.pseq, s.cseq, s.freed, list(s.owner)); st_keep = list(s.stream)
        p0 = s.pseq
        assert s.stream[p0][0] == 'K' and s.stream[p0][2] == 0
        s.stream = st_keep[:p0] + [(k, i % NQ, i) for i, k in enumerate(WO)] + [('K', (4 + i) % NQ, i) for i in range(16)] + st_keep[p0 + 32:]
        te = s.capture(early); ze = (list(s.q), s.pseq, s.cseq)
        s.q, s.pseq, s.cseq, s.freed, s.owner = z; s.stream = st_keep
        tlate = s.capture(late)
        assert ze[1:] == (s.pseq, s.cseq) and ze[0][-24:] == s.q[-24:]
        s.L += [f's_bitcmp1_b32 s{sB}, {cfg.stag - 1}', 's_cbranch_scc1 L_early'] + tlate + ['L_join:']
        s.cold += ['L_early:'] + te + ['s_branch L_join']
    s.stamp(7)
    ep = pat(cfg.endp)
    s.tg_phase(3, vS, pat(cfg.pvn)[:12] + ep, 'p', lacc=vS + 48, heads={4: s.ready_load(), 12: ['s_barrier']})
    s.stamp(8)
    if not pk_: s.emit_groups(s.tg_fetch(3, 0, None, aFR))
    def g2():
        s.o_pack(3, vS, vS + 48, True, nops=bool(pk_))
    if sum(ep) == 4: s.gap(g2, F, 0.0, 0.6)
    else: g2()
    E('s_waitcnt lgkmcnt(0)'); E('s_barrier')
    of = s.capture(lambda: s.frag_read(24, 0, 0))
    for x in of[:6]: E(x)
    s.stamp(9)
    fl = dict(enumerate(Gen.split(of[6:], cfg.fsp))); fl.update(es_fill(s))
    x5 = 1 if sum(ep) == 5 else 0
    if pk_: s.o_proj([x5] + [0] * 5 + [1] * 4 + [0] * 6, 0, fills=fl, parked=6)
    else: s.o_proj([1, 1, 1, 1 + x5] + [1] * 6 + [0] * 6, 0, fills=fl, primed=True, heads=es_head())
    for k in (10, 11): s.stamp(k)
    if cfg.trace:
        E('s_waitcnt lgkmcnt(0)'); s.tr_start()
        for i in range(4): E(f'v_mov_b32 v{2+i}, v{(44,45,42,43)[i]}')
    s.finish()
    return s.L

def path_B2_text():
    s = Gen(1000); E = s.E; s.b2 = True; cap = s.capture
    for i, sl in enumerate([0, 1, 2, 0, 1, 2, 3, 4, 5, 0, 1, 2, 3, 4]): s.stream.append(('WA', sl, i))
    for kinds, st in ((['K'] * 16, 0), (['V'] * 16, 4), (['K'] * 16, 2), (['V'] * 16, 0), (WO, 4)): s.plan(kinds, st)
    s.stamp(0)
    s.load_ptrs(1)
    s.setup_ids(1); s.setup_x()
    E('s_waitcnt lgkmcnt(0)')
    s.emit_groups([s.x_loads()])
    for m in range(4): E(f's_add_u32 s{sXC+m}, s{sXC+m}, 43008')
    for m in range(4):
        for t in range(3):
            E(f's_add_u32 m0, s{sRS}, {(3+t)*QP + m*1024}'); E('s_nop 0')
            E(f'buffer_load_dwordx4 v{vX+t}, {srd(SX)}, s{sXC+m} offen {cfg.wpol} lds')
    s.setup_w()
    for x in s.wq_table(0, 14): E(x)
    s.setup_k(1); s.touch(1); s.setup_rd(); s.setup_late(3, 1)
    E('v_lshrrev_b32 v45, 3, v41'); E(f'v_mul_u32_u24 v45, {RSZ-1024}, v45'); E(f'v_add_u32 v45, {RING + 3*QP}, v45')
    E(f'v_add_u32 v{vSR}, v45, v{vXR}'); E(f'v_add_u32 v{vSR+1}, v45, v{vXR+1}')
    for _ in range(3): s.emit_groups(s.prod())
    if cfg.trace:
        s.tr = True; E('s_mov_b32 s100, 0'); E('s_memrealtime s[96:97]'); E('v_mov_b32 v42, 0'); E('v_mov_b32 v43, 0')
    x1 = [f'ds_read_b128 {ar(12*st+4*t)}, v{vSR+(st&1)} offset:{((st>>1)&1)*2*RSZ + t*QP + (st>>2)*1024}' for st in range(14) for t in range(3)]
    s.emit_groups(s.tg_fetch(3, 0, 'x', aFR, True))
    for x in x1[:6]: E(x)
    fl = dict(enumerate(Gen.split(x1[6:], 2)))
    s.tg_phase(3, vS, pat(cfg.qn), 'x', first=False, z=True, fills=fl, heads={3: ['s_barrier'], 9: ['s_barrier']}, dual=lambda st: (vOUT, 12 * st))
    s.stamp(1)
    def g0():
        s.q_pack(vS, vS + 48)
        s.q_write(vS + 48, 0)
        E('s_waitcnt lgkmcnt(0)'); E('s_barrier')
        s.frag_read(24)
    s.gap(g0, cfg.gq, 0.3, 1.0)
    p2 = cap(lambda: s.q_pack(vOUT, vOUT + 48, False)); w2 = cap(lambda: s.q_write(vOUT + 48, 1)); r2 = cap(lambda: s.frag_read(24, 24576, aO))
    fl = {0: p2, 1: w2, 2: cap(lambda: q_misc(s))}; fl.update(dict(enumerate(Gen.split(r2, 4), 3)))
    s.s_phase(3, pat(cfg.sn1), fills=fl, heads={3: ['s_barrier', f's_mov_b32 s{SDBG+2}, 256']})
    s.stamp(2)
    def g1():
        s.softmax(3)
        for tau in range(8): s.exp_pack(3, tau, wtau=tau)
        E('s_waitcnt lgkmcnt(0)'); E('s_barrier')
    s.gap(g1, F, 0.1, 0.9)
    s.stamp(3)
    s.tg_phase(3, vOUT, pat(cfg.pvn), 'p', lacc=vOUT + 48, heads={8: s.ready_add(), 12: ['s_barrier']})
    s.stamp(4)
    if cfg.trace: E('v_mov_b32 v44, v42'); E('v_mov_b32 v45, v43'); E('s_mov_b32 s100, 0')
    op = cap(lambda: s.o_pack(3, vOUT, vOUT + 48, True, M=lambda t: vSR + 2 * t, nops=False))
    of = cap(lambda: s.frag_read(24, 0, 0))
    fl = dict(enumerate(Gen.split(op, 2))); fl.update(dict(enumerate(Gen.split(of, 4), 3)))
    s.s_phase(3, [2] * 8, qb=aO, fills=fl, heads={3: ['s_barrier']})
    s.stamp(5); s.stamp(6)
    s.gap(g1, F, 0.1, 0.9)
    s.stamp(7)
    s.tg_phase(3, vOUT, pat(cfg.pvn)[:12] + [3, 1, 1, 0], 'p', lacc=vOUT + 48, heads={4: s.ready_load(), 12: ['s_barrier']})
    s.stamp(8)
    s.emit_groups(s.tg_fetch(3, 0, None, aFR))
    s.o_pack(3, vOUT, vOUT + 48, True, nops=False)
    E('s_waitcnt lgkmcnt(0)'); E('s_barrier')
    of = cap(lambda: s.frag_read(24, 0, aO))
    for x in of[:6]: E(x)
    s.stamp(9)
    fl = dict(enumerate(Gen.split(of[6:], 6))); fl.update(dict(enumerate(Gen.split(s.store_slice(0), 6), 9)))
    s.o_proj([1, 1, 1, 2] + [1] * 6 + [0] * 6, 0, c0=True, fills=fl, primed=True, dual=True)
    for k in (10, 11): s.stamp(k)
    if cfg.trace:
        E('s_waitcnt lgkmcnt(0)'); s.tr_start()
        for i in range(4): E(f'v_mov_b32 v{2+i}, v{(44,45,42,43)[i]}')
    s.finish()
    return s.L

def path_A():
    s = Gen(2000); E = s.E
    park = 3 if cfg.earlyK else 0
    pa = cfg.parkA
    assert park and pa in (0, 6)
    for kinds, st in ((['K'] * 6, 0), (WQ, 0), (WQ, 2), (['K'] * 10, 4)): s.plan(kinds, st)
    if pa: s.plan(WO[:6], 2); s.plan(['V'] * 16, 2); s.plan(WO[6:], 0, 6); s.plan(WO, 4)
    else: s.plan(['V'] * 16, 2); s.plan(WO, 0); s.plan(WO, 4)
    s.stamp(0)
    s.load_ptrs(0)
    if cfg.warm: E(f's_load_dwordx4 s[{sST+8}:{sST+11}], s[0:1], 64')
    if cfg.xh: E(f's_load_dwordx2 s[{SPF}:{SPF+1}], s[0:1], 40')
    s.setup_ids(0); s.setup_k(0)
    if cfg.xh: s.setup_x()
    E('s_waitcnt lgkmcnt(0)')
    if cfg.xh:
        E(f's_mov_b32 s{SPF+2}, {16*43008}'); E(f's_mov_b32 s{SPF+3}, 0x20000')
        for m in (2, 3):
            for t in range(3): E(f'buffer_load_dwordx4 {vr(vPF)}, v{vX+t}, {srd(SPF)}, s{sXC+m} offen')
    def warm():
        E(f's_mul_i32 s{sT0}, s{sB}, 28'); E(f's_mul_i32 s{sT1}, s{sW}, 7'); E(f's_add_u32 s{sT0}, s{sT0}, s{sT1}')
        E(f's_mov_b32 s{SPF+2}, {448*8192}'); E(f's_mov_b32 s{SPF+3}, 0x20000')
        for c in str(cfg.word).lstrip('x'):
            ptr, isq = ((sST + 8, True), (SW, True), (sST + 10, False), (SWO, False))[int(c)]
            E(f's_mov_b32 s{SPF}, s{ptr}'); E(f's_mov_b32 s{SPF+1}, s{ptr+1}')
            if isq:
                E(f's_lshl_b32 s{sT2}, s{sT0}, 13'); E(f's_lshl_b32 s{sT1}, s{sJ}, 10')
            else:
                E(f's_lshl_b32 s{sT2}, s{sT0}, 10'); E(f's_mul_i32 s{sT1}, s{sJ}, {512*896}')
            E(f's_add_u32 s{sT2}, s{sT2}, s{sT1}')
            for k in range(7):
                E(f'buffer_load_dwordx4 {vr(vPF)}, v{vLin}, {srd(SPF)}, s{sT2} offen')
                if k < 6: E(f's_add_u32 s{sT2}, s{sT2}, {8192 if isq else 1024}')
    def wo_warm(own, head2):
        o = []
        n = 4 if head2 else 7
        o += [f's_mul_i32 s{sT2}, s{sB}, {14336 if head2 else 28672}', f's_mul_i32 s{sT1}, s{sW}, {3584 if head2 else 7168}', f's_add_u32 s{sT2}, s{sT2}, s{sT1}',
              f's_mul_i32 s{sT1}, s{sJ}, {512*896}', f's_add_u32 s{sT2}, s{sT2}, s{sT1}']
        if head2: o += [f's_add_u32 s{sT2}, s{sT2}, {256*896}']
        for k in range(n):
            o += [f'buffer_load_dwordx4 {vr(vOA)}, v{vLin}, {srd(SW if own else SPF)}, s{sT2} offen']
            if k < n - 1: o += [f's_add_u32 s{sT2}, s{sT2}, 1024']
        return o
    def code_pf(va, vd):
        lb = s.lab('pc')
        o = [f's_getpc_b64 s[{sT0}:{sT0+1}]', f'{lb}:', f's_sub_u32 s{sT0}, s{sT0}, {lb}-{NAME}_kernel', f's_subb_u32 s{sT0+1}, s{sT0+1}, 0',
             f's_lshl_b32 s{sT2}, s{sB}, 2', f's_add_u32 s{sT2}, s{sT2}, s{sW}', f's_mul_i32 s{sT2}, s{sT2}, 1408']
        for k in range(2):
            o += [f'v_add_u32 v{va}, s{sT2}, v{vLin}', f'v_min_u32 v{va}, L_code_end-{NAME}_kernel-16, v{va}',
                  f'v_mov_b32 v{va+1}, s{sT0+1}', f'v_add_co_u32 v{va}, vcc, s{sT0}, v{va}', 's_nop 1', f'v_addc_co_u32 v{va+1}, vcc, 0, v{va+1}, vcc',
                  f'global_load_dwordx4 {vr(vd)}, {vr(va,2)}, off']
            if k == 0: o += [f's_add_u32 s{sT2}, s{sT2}, 1024']
        return o
    sa = (lambda k: s.stamp(k)) if cfg.stA else (lambda k: None)
    sa(7)
    if cfg.codepf & 1 and cfg.xh != 2:
        for x in code_pf(48, vPF): E(x)
    if cfg.warm == 1: warm()
    if cfg.codepf & 1 and cfg.xh == 2:
        for x in code_pf(48, vPF): E(x)
    sa(8)
    if park:
        for _ in range(2): s.emit_groups(s.prod())
    s.touch(0)
    if not cfg.xh: s.setup_x()
    s.setup_w(); s.setup_rd(); s.setup_late(6, 0)
    for x in s.wq_table(0, 14): E(x)
    if park:
        for _ in range(4): s.emit_groups(s.prod())
    sa(9)
    if cfg.pfK:
        if cfg.pfsel: E(f's_bitcmp1_b32 s{sB}, {cfg.pfsel - 1}'); E('s_cbranch_scc0 L_nopf')
        E(f's_mov_b32 s{sT2}, s{sPK}')
        for k in range(cfg.pfK):
            for p in range(4): E(f'buffer_load_dwordx4 {vr(vPF)}, v{vK}, {srd(SK)}, s{sT2} offen offset:{p*1024} {cfg.pfpol}')
            E(f's_add_u32 s{sT2}, s{sT2}, 0x4000')
            if cfg.pfw < 63: E(f's_waitcnt vmcnt({cfg.pfw})')
        E(f's_mov_b32 s{sT2}, s{sPV}')
        for k in range(cfg.pfV):
            for p in range(4): E(f'buffer_load_dwordx4 {vr(vPF)}, v{vK}, {srd(SV)}, s{sT2} offen offset:{p*1024} {cfg.pfpol}')
            E(f's_add_u32 s{sT2}, s{sT2}, 0x4000')
            if cfg.pfw < 63: E(f's_waitcnt vmcnt({cfg.pfw})')
        if cfg.pfsel: E('L_nopf:')
    if cfg.warm == 2: warm()
    s.emit_groups([s.x_loads(range(cfg.xb))])
    sa(10)
    if park:
        for tau in range(3):
            s.emit_groups(s.k_fetch(lambda k: vr(vOUT + tau * 32 + 4 * k)))
            if tau == 0:
                E('s_waitcnt lgkmcnt(0)')
                for _ in range(cfg.ramp): s.emit_groups(s.prod())
        E('s_waitcnt lgkmcnt(0)')
    else:
        for _ in range(cfg.ramp): s.emit_groups(s.prod())
    s.stamp(1)
    q_both(s, cfg.ramp)
    s.stamp(2)
    def g0():
        q_exch(s); s.frag_read(48)
    sHV = sXC
    def hv_loads(n):
        o = []
        for k in range(n):
            o += [f'buffer_load_dwordx4 {vr(vOA)}, v{vLin}, {srd(SPF)}, s{sHV} offen offset:{p*1024} {cfg.hvpol}' for p in range(4)]
            o += [f's_add_u32 s{sHV}, s{sHV}, 0x4000']
        return o
    if cfg.hv2 or cfg.hvs:
        for x in [f's_load_dwordx2 s[{SPF}:{SPF+1}], s[0:1], 56', f's_mov_b32 s{SPF+2}, {256*262144}', f's_mov_b32 s{SPF+3}, 0x20000',
                  f's_lshl_b32 s{sHV}, s{sB}, 3', f's_add_u32 s{sHV}, s{sHV}, s{sJ}', f's_lshl_b32 s{sHV}, s{sHV}, 19', f's_lshl_b32 s{sT1}, s{sW}, 12',
                  f's_add_u32 s{sHV}, s{sHV}, s{sT1}', f's_add_u32 s{sHV}, s{sHV}, {524288 - (cfg.hv2 + cfg.hvs)*16384}']: E(x)
    if park:
        g0()
        hs = {1: s.ready_add(), 4: [f's_load_dwordx2 s[{SPF}:{SPF+1}], s[0:1], 72', f's_mov_b32 s{SPF+2}, {448*8192}', f's_mov_b32 s{SPF+3}, 0x20000'] if cfg.jit else []}
        if cfg.hvs: hs.update(dict(enumerate(Gen.split(hv_loads(cfg.hvs), 4), 4)))
        s.s_phase(6, pat(cfg.snA), parked=park, heads=hs)
    else:
        s.gap(g0, F)
        s.s_phase(6, pat(cfg.sn), heads={1: s.ready_add()})
    s.stamp(3)
    hold = lambda tau: (lambda t: vS + 48 + ((tau - 4) * 6 + t) * 2)
    def g1():
        s.softmax(6)
        for tau in range(4):
            s.exp_pack(6, tau, wtau=tau)
            if cfg.codepf & 2 and tau == 1:
                for x in code_pf(vXR, vOA): E(x)
            if cfg.jit & 1 and tau in (0, 2):
                for x in wo_warm(tau == 2, False): E(x)
        for tau in range(4, 8): s.exp_pack(6, tau, dst=hold(tau))
        E('s_waitcnt lgkmcnt(0)'); E('s_barrier')
    if pa:
        def g1a():
            s.softmax(6)
            for tau in range(2): s.exp_pack(6, tau, wtau=tau)
        def g1b():
            for tau in range(2, 4): s.exp_pack(6, tau, wtau=tau)
            for tau in range(4, 8): s.exp_pack(6, tau, dst=hold(tau))
            E('s_waitcnt lgkmcnt(0)'); E('s_barrier')
        s.gap(g1a, 6 - (s.pseq - s.cseq), 0.0, 0.7)
        for k in range(6): s.emit_groups(s.tg_fetch(3, 0, None, aFR, dst=aO + 16 * k))
        E('s_waitcnt lgkmcnt(0)')
        s.gap(g1b, cfg.gA + 1, 0.0, 0.8)
    else:
        s.gap(g1, cfg.gA, 0.1, 0.8)
    s.stamp(4)
    pv = pat(cfg.pvnA)
    s.tg_phase(6, vOUT, pv[:8], 'p', lacc=vS, base=0, heads=dict(enumerate(Gen.split(hv_loads(cfg.hv2), cfg.hv2n))) if cfg.hv2 else None)
    E('s_barrier')
    for tau in range(4, 8):
        for t in range(6): E(s.p_write(6, tau - 4, t, hold(tau)(t)))
    E('s_waitcnt lgkmcnt(0)'); E('s_barrier')
    if cfg.endA: pv = pv[:12] + [3, 1, 1, 0]
    hds = {9: s.ready_load()}; hfl = {}
    if cfg.hv:
        hds[10] = [f's_load_dwordx2 s[{SPF}:{SPF+1}], s[0:1], 56', f's_mov_b32 s{SPF+2}, {256*262144}', f's_mov_b32 s{SPF+3}, 0x20000',
                   f's_lshl_b32 s{sT2}, s{sB}, 3', f's_add_u32 s{sT2}, s{sT2}, s{sJ}', f's_lshl_b32 s{sT2}, s{sT2}, 19', f's_lshl_b32 s{sT1}, s{sW}, 12',
                   f's_add_u32 s{sT2}, s{sT2}, s{sT1}', f's_add_u32 s{sT2}, s{sT2}, {524288 - cfg.hv*16384}']
        o = []
        for k in range(cfg.hv):
            o += [f'buffer_load_dwordx4 {vr(vOA)}, v{vLin}, {srd(SPF)}, s{sT2} offen offset:{p*1024} {cfg.hvpol}' for p in range(4)]
            o += [f's_add_u32 s{sT2}, s{sT2}, 0x4000']
        hfl[cfg.hvat] = o
    s.tg_phase(6, vOUT, pv[8:], 'p', lacc=vS, base=0, c0=False, st0=8, heads=hds, fills=hfl)
    s.stamp(5)
    Wl = []
    def g2():
        Wl.extend(s.o_pack(6, vOUT, vS, False))
    if cfg.endA: g2()
    else: s.gap(g2, F, 0.0, 0.6)
    if cfg.codepf & 4:
        for x in code_pf(vXR, vOA): E(x)
    if cfg.jit & 2:
        for x in wo_warm(False, True): E(x)
    E('s_barrier')
    for w in Wl: E(w)
    if not pa: s.emit_groups(s.tg_fetch(3, 0, None, aFR))
    E('s_waitcnt lgkmcnt(0)'); E('s_barrier')
    of = s.capture(lambda: s.frag_read(48))
    for x in of[:6]: E(x)
    s.stamp(6)
    fl = dict(enumerate(Gen.split(of[6:24], cfg.fsp))); fl.update(dict(enumerate(Gen.split(of[24:], 8), 7)))
    xa = 1 if cfg.endA else 0
    if pa: s.o_proj([xa] + [0] * 5 + [1] * 10, 0, c0=True, fills=fl, parked=6, extra={10: s.wo_head()})
    else: s.o_proj([1, 1, 1, 1 + xa] + [1] * 12, 0, c0=True, fills=fl, primed=True, extra={10: s.wo_head()})
    s.o_proj([1] * 10 + [0] * 6, aO, fills=es_fill(s), heads=es_head())
    for k in range(11 if cfg.stA else 7, 12): s.stamp(k)
    s.finish()
    return s.L

def reduce_tail(b2=False):
    NP = 16 if b2 else 8
    sfx = 'B' if b2 else ''
    L = []; E = L.append
    sOld, sF2 = sPK, sPV
    def st(k):
        if cfg.stamps: E(f's_memrealtime s[{sST+2*k}:{sST+2*k+1}]')
    E('L_reduce' + sfx + ':')
    E(f's_load_dwordx2 s[{SOUT}:{SOUT+1}], s[0:1], 80')
    E(f'v_readfirstlane_b32 s{sOld}, v{vOld}'); E(f'v_readfirstlane_b32 s{sT1}, v{vRdy}')
    if b2:
        E(f's_mul_i32 s{sPART}, s{sB}, {16*PART}'); E(f's_add_u32 s{sPART}, s{sPART}, {128*PART}')
    else:
        E(f's_lshl_b32 s{sT0}, s{sBR}, 4'); E(f's_add_u32 s{sT0}, s{sT0}, s{sB}')
        E(f's_mul_i32 s{sPART}, s{sT0}, {8*PART}')
    E(f's_lshl_b32 s{sT2}, s{sW}, {4 if b2 else 3}'); E(f's_add_u32 s{sT2}, s{sT2}, s{sJ}')
    E('v_and_b32 v42, 15, v1'); E('v_mul_u32_u24 v42, 1792, v42'); E('v_lshrrev_b32 v43, 4, v1'); E('v_lshl_add_u32 v42, v43, 3, v42')
    E(f's_mul_i32 s{sY}, s{sB}, {48*1792}'); E(f's_mul_i32 s{sT0}, s{sBR}, 896'); E(f's_add_u32 s{sY}, s{sY}, s{sT0}')
    E(f's_mov_b32 s{sLC}, 0x400000'); E(f'v_add_u32 v44, 1, v{vOld}')
    E('s_waitcnt vmcnt(0) lgkmcnt(0)')
    E('s_barrier')
    st(12)
    E(f's_mov_b32 s{SOUT+2}, {16*48*896*2}'); E(f's_mov_b32 s{SOUT+3}, 0x20000')
    E(f's_cmp_lg_u32 s{sW}, 0'); E('s_cbranch_scc1 L_rwait' + sfx + '')
    if cfg.sync == 2:
        E('L_rdy' + sfx + ':')
        E(f's_cmp_ge_u32 s{sT1}, {NP}'); E('s_cbranch_scc1 L_rdyok' + sfx + '')
        E(f's_sub_u32 s{sLC}, s{sLC}, 1'); E('s_cbranch_scc1 L_rdyok' + sfx + '')
        E('s_sleep 8')
        E(f'buffer_load_dword v{vRdy}, v{vZ}, {srd(SDBG)}, s{sDO} offen sc1')
        E('s_waitcnt vmcnt(0)')
        E(f'v_readfirstlane_b32 s{sT1}, v{vRdy}')
        E('s_branch L_rdy' + sfx + '')
        E('L_rdyok' + sfx + ':')
        E(f'buffer_atomic_add v{vC1}, v{vZ}, {srd(SWS)}, s{sFL} offen sc0 sc1')
        E(f's_add_u32 s{sOld}, s{sOld}, {NP-1}')
        E('s_waitcnt vmcnt(0)')
        E(f'v_readfirstlane_b32 s{sT1}, v{vC1}')
        E(f's_cmp_eq_u32 s{sT1}, s{sOld}'); E('s_cbranch_scc1 L_rwait' + sfx + '')
        E(f's_add_u32 s{sOld}, s{sOld}, 1')
        E('L_poll' + sfx + ':')
        E(f'buffer_load_dword v41, v{vZ}, {srd(SWS)}, s{sFL} offen {cfg.pollpol}')
        E(f's_sub_u32 s{sLC}, s{sLC}, 1'); E('s_cbranch_scc1 L_rwait' + sfx + '')
        E('s_waitcnt vmcnt(0)')
        E(f'v_readfirstlane_b32 s{sT1}, v41')
        if cfg.sleep: E(f's_sleep {cfg.sleep}')
        E(f's_cmp_lg_u32 s{sT1}, s{sOld}'); E('s_cbranch_scc1 L_poll' + sfx + '')
    else:
        E(f'buffer_atomic_add v{vC1}, v{vZ}, {srd(SDBG)}, s{sDO} offen sc0 sc1')
        E('s_waitcnt vmcnt(0)')
        E(f'v_readfirstlane_b32 s{sT1}, v{vC1}')
        E(f's_cmp_lt_u32 s{sT1}, 7'); E('s_cbranch_scc1 L_poll' + sfx + '')
        E(f'buffer_store_dword v44, v{vZ}, {srd(SWS)}, s{sFL} offen sc1')
        E('s_branch L_rwait' + sfx + '')
        E('L_poll' + sfx + ':')
        E(f'buffer_load_dword v41, v{vZ}, {srd(SWS)}, s{sFL} offen {cfg.pollpol}')
        E(f's_sub_u32 s{sLC}, s{sLC}, 1'); E('s_cbranch_scc1 L_rwait' + sfx + '')
        E('s_waitcnt vmcnt(0)')
        E(f'v_readfirstlane_b32 s{sT1}, v41')
        if cfg.sleep: E(f's_sleep {cfg.sleep}')
        E(f's_cmp_eq_u32 s{sT1}, s{sOld}'); E('s_cbranch_scc1 L_poll' + sfx + '')
    E('L_rwait' + sfx + ':')
    E('s_barrier')
    st(13); st(14)
    def split(freg):
        if b2:
            E(f's_cmp_ge_u32 s{freg}, 42'); E(f's_cselect_b32 s{sLC}, {16*PART - 42*1024}, 0')
            E(f's_lshl_b32 s{sT0}, s{freg}, 10'); E(f's_add_u32 s{sT0}, s{sT0}, s{sLC}')
        else:
            E(f's_lshl_b32 s{sT0}, s{freg}, 10')
        E(f's_add_u32 s{sT0}, s{sT0}, s{sPART}')
    def loads(base, freg):
        split(freg)
        for j in range(NP):
            E(f'buffer_load_dwordx4 {vr(base+4*j)}, v{vLin}, {srd(SWS)}, s{sT0} offen {cfg.rdpol}')
            if j < NP - 1: E(f's_add_u32 s{sT0}, s{sT0}, {PART}')
    def task(base, freg, younger, defer=None):
        E(f's_mul_i32 s{sT0}, s{freg}, 171'); E(f's_lshr_b32 s{sT0}, s{sT0}, 10')
        E(f's_mul_i32 s{sT1}, s{sT0}, 6'); E(f's_sub_u32 s{sT1}, s{freg}, s{sT1}')
        if b2:
            E(f's_cmp_ge_u32 s{sT0}, 7'); E(f's_cselect_b32 s{sU}, {48*1792 - 7*128}, 0')
        E(f's_lshl_b32 s{sT0}, s{sT0}, 7'); E(f's_add_u32 s{sT0}, s{sT0}, s{sY}')
        if b2: E(f's_add_u32 s{sT0}, s{sT0}, s{sU}')
        E(f's_cmp_ge_u32 s{sT1}, 3'); E(f's_cselect_b32 s{sLC}, {64 - 3*16*1792}, 0'); E(f's_add_u32 s{sT0}, s{sT0}, s{sLC}')
        E(f's_mul_i32 s{sT1}, s{sT1}, {16*1792}'); E(f's_add_u32 s{sT0}, s{sT0}, s{sT1}')
        E(f's_mov_b32 s{sLC}, 0xffff0000')
        for j in range(NP):
            E(f's_waitcnt vmcnt({NP-1-j+younger})')
            for r in range(4):
                src = base + 4 * j + r
                if j == 0:
                    E(f'v_lshlrev_b32 v{48+2*r}, 16, v{src}'); E(f'v_and_b32 v{49+2*r}, s{sLC}, v{src}')
                else:
                    t = 44 + 2 * (r & 1)
                    E(f'v_lshlrev_b32 v{t}, 16, v{src}'); E(f'v_and_b32 v{t+1}, s{sLC}, v{src}')
                    E(f'v_pk_add_f32 {vr(48+2*r,2)}, {vr(48+2*r,2)}, {vr(t,2)}')
        for r in range(4): E(f'v_cvt_pk_bf16_f32 v{base+r}, v{48+2*r}, v{49+2*r}')
        if defer is not None:
            E(f's_mov_b32 s{defer}, s{sT0}'); return
        stores(base, sT0)
    def stores(base, so):
        E(f'buffer_store_dwordx2 {vr(base,2)}, v42, {srd(SOUT)}, s{so} offen {cfg.outpol}')
        E(f'buffer_store_dwordx2 {vr(base+2,2)}, v42, {srd(SOUT)}, s{so} offen offset:32 {cfg.outpol}')
    NW = 64 if b2 else 32
    E(f's_cmp_ge_u32 s{sT2}, {20 if b2 else 10}'); E('s_cbranch_scc1 L_r1' + sfx)
    E(f's_add_u32 s{sF2}, s{sT2}, {NW}')
    loads(128, sF2)
    loads(64, sT2)
    task(128, sF2, NP, defer=sF2)
    task(64, sT2, 0)
    stores(128, sF2)
    E('s_branch L_rend' + sfx)
    E('L_r1' + sfx + ':')
    loads(64, sT2)
    task(64, sT2, 0)
    E('L_rend' + sfx + ':')
    if cfg.stamps:
        E('s_waitcnt vmcnt(0)')
        st(15)
        E('s_branch L_stamps')
    else:
        E('s_endpgm')
    return L

def kd(name, nv, ao):
    return ['.p2align 6', f'.amdhsa_kernel {name}', f'  .amdhsa_next_free_vgpr {nv}', '  .amdhsa_next_free_sgpr 102', f'  .amdhsa_accum_offset {ao}',
            '  .amdhsa_group_segment_fixed_size 0', '  .amdhsa_kernarg_size 104', '  .amdhsa_user_sgpr_count 2',
            '  .amdhsa_user_sgpr_kernarg_segment_ptr 1', '  .amdhsa_system_sgpr_workgroup_id_x 1', '.end_amdhsa_kernel']

def build(fname):
    hdr = [l for l in open('cdna_kernels/' + NAME + '.s.ref').read().split('\n') if l.startswith(';') and '@launch' not in l and 'Override' not in l and 'grid=ceil' not in l]
    L = hdr[:]
    L.append(f'; @launch grid=(256,1,1) block=(256,1,1) lds={LDS_TOTAL}')
    L += [
        '; Design (generated by a script of mine; one workgroup = 4 waves x 512 registers per CU, 256 workgroups):',
        ';   wg -> j = wg&7 (head pair), branch = bit 3 (0: GQA path A, 1: MHA path B), b = wg>>4 (batch).',
        ';   Every operand stream (wq, K, V, wo) goes HBM/L2 -> per-wave LDS ring (LDS-DMA, 6 x 4KB slots) -> MFMA fragments',
        ';   (ds_read_b128 for K, ds_read_b64_tr_b16 for wq/V/wo). Q, P and O are exchanged between waves through LDS.',
        ';   Softmax uses the true row max over all 512 keys; row sums come from a ones-row MFMA on the bf16 P.',
        ';   Each workgroup writes one bf16 partial of the output projection (its two heads) to d_ws with write-through',
        ';   stores; the 8 workgroups of a (branch, batch) group then count arrivals, and each sums 1/8 of the output.',
    ]
    L += ['.amdgcn_target "amdgcn-amd-amdhsa--gfx950"', '.text', f'.globl {NAME}_kernel', '.p2align 8', f'.type {NAME}_kernel,@function', f'{NAME}_kernel:']
    L += ['s_cmp_ge_u32 s2, 256', 's_cbranch_scc1 L_exit', 's_bitcmp1_b32 s2, 3', 's_cbranch_scc0 ' + ('L_exit' if cfg.noA else 'L_pathA')] + (['s_branch L_exit'] if cfg.noB else [])
    if cfg.b2:
        L += path_B2_text(); L += reduce_tail(True)
    else:
        L += path_B_text()
    L += reduce_tail()
    L += ['L_exit:', 's_endpgm', 'L_pathA:']
    L += path_A()
    if cfg.stamps:
        L += ['L_stamps:', 's_waitcnt lgkmcnt(0)', f's_add_u32 s{SWS}, s{SWS}, 0xc800000', f's_addc_u32 s{SWS+1}, s{SWS+1}, 0']
        if cfg.trace: L += ['s_lshl_b32 s58, s2, 12', 's_add_u32 s58, s58, 0x40000', 'v_lshlrev_b32 v40, 4, v0', f'buffer_store_dwordx4 v[2:5], v40, {srd(SWS)}, s58 offen']
        L += [
              's_lshl_b32 s58, s2, 7'] + ([f's_lshl_b32 s59, s{sW}, 15', 's_add_u32 s58, s58, s59'] if cfg.allw else []) + ['v_mov_b32 v40, s58', 'v_cmp_eq_u32 vcc, 0, ' + ('v1' if cfg.allw else 'v0'), 's_and_saveexec_b64 s[58:59], vcc', 's_cbranch_execz L_exit2']
        for k in range(16):
            L += [f'v_mov_b32 v42, s{sST+2*k}', f'v_mov_b32 v43, s{sST+2*k+1}', f'buffer_store_dwordx2 v[42:43], v40, {srd(SWS)}, 0 offen offset:{8*k}', 's_nop 1']
        L += ['L_exit2:', 's_endpgm']
    L += ['.p2align 4', 'L_code_end:']
    L += ['.section .rodata,"a"'] + kd(NAME + '_kernel', 512, 256)
    if cfg.nomfma: L = [l for l in L if not l.startswith('v_mfma')]
    txt = '\n'.join(l if (l.startswith(';') or l.startswith('.') or l.endswith(':') or l.startswith('  ')) else '    ' + l for l in L) + '\n'
    open(fname, 'w').write(txt)

if __name__ == '__main__':
    out = sys.argv[1] if len(sys.argv) > 1 else 'cdna_kernels/' + NAME + '.s'
    for a in sys.argv[2:]:
        k, v = a.split('=')
        assert hasattr(cfg, k), k
        val = {'True': True, 'False': False}.get(v, int(v) if v.isdigit() else v)
        setattr(cfg, k, val.replace('+', ' ') if isinstance(val, str) else val)
    build(out)
```
